```python
import torch

def _softmax(x, axis=-1):
    return torch.softmax(x, dim=axis)

def _gelu(x):
    return torch.nn.functional.gelu(x, approximate='tanh')

def _silu(x):
    return torch.nn.functional.silu(x)

def _sigmoid(x):
    return torch.sigmoid(x)

def _layernorm(x, axis=-1, eps=1e-05):
    m = x.mean(dim=axis, keepdim=True)
    v = x.var(dim=axis, keepdim=True, unbiased=False)
    return (x - m) / torch.sqrt(v + eps)

def _scatter_add(tgt, idx, src, axis=0):
    return tgt.clone().index_add_(axis, idx, src)

def _segment_sum(src, seg, n):
    out = torch.zeros((n,) + src.shape[1:], dtype=src.dtype)
    return out.index_add_(0, seg, src)

def _pad(x, pw):
    flat = tuple((v for pair in reversed(pw) for v in pair))
    return torch.nn.functional.pad(x, flat)
kernel_name = 'gated_mix__sliding_local_dilated__memory_aug_recurrent_mem_tr__prompt'

def setup_inputs():

    _w = lambda a: (lambda t: t.to(torch.bfloat16) if t.is_floating_point() else t)(torch.as_tensor(a))

    def _A_setup():
        B, S, D = (1, 2048, 576)
        return {'x': _w((lambda *s: torch.randn(*s, dtype=torch.bfloat16) * 0.05)(B, S, D)), 'wqkv': _w((lambda *s: torch.randn(*s, dtype=torch.bfloat16) * 0.8)(D, 3 * D)), 'wo': _w((lambda *s: torch.randn(*s, dtype=torch.bfloat16) * 0.05)(D, D))}
    _A_in = _A_setup()

    def _B_setup():
        B, S, Dm = (1, 2048, 576)
        H, Dh = (32, 128)
        M, seg = (8, 32)
        seg = min(seg, S)
        S = S // seg * seg
        return {'x': _w((lambda *s: torch.randn(*s, dtype=torch.bfloat16) * 0.05)(B, S, Dm)), 'mem0': _w((lambda *s: torch.randn(*s, dtype=torch.bfloat16) * 1.6)(B, M, Dm)), 'Wq': _w((lambda *s: torch.randn(*s, dtype=torch.bfloat16) * 0.8)(Dm, H, Dh) * Dm ** (-0.5)), 'Wk': _w((lambda *s: torch.randn(*s, dtype=torch.bfloat16) * 0.8)(Dm, H, Dh) * Dm ** (-0.5)), 'Wv': _w((lambda *s: torch.randn(*s, dtype=torch.bfloat16) * 1.6)(Dm, H, Dh) * Dm ** (-0.5)), 'Wo': _w((lambda *s: torch.randn(*s, dtype=torch.bfloat16) * 1.6)(H, Dh, Dm) * (H * Dh) ** (-0.5)), 'seg_len': seg}
    _B_in = _B_setup()
    return {'A_x': _A_in['x'], 'A_wqkv': _A_in['wqkv'], 'A_wo': _A_in['wo'], 'B_x': _B_in['x'], 'B_mem0': _B_in['mem0'], 'B_Wq': _B_in['Wq'], 'B_Wk': _B_in['Wk'], 'B_Wv': _B_in['Wv'], 'B_Wo': _B_in['Wo'], 'B_seg_len': _B_in['seg_len'], 'gate_w': _w((lambda *s: torch.randn(*s, dtype=torch.bfloat16) * 0.05)(576) * 16.0)}

def reference(A_x, A_wqkv, A_wo, B_x, B_mem0, B_Wq, B_Wk, B_Wv, B_Wo, B_seg_len, gate_w):

    def _A_ref(x, wqkv, wo):
        B, S, D = x.shape
        H = 32
        Dh = D // H
        W, dil = (8, 2)
        qkv = (lambda x, *d: x.permute(*d))((x @ wqkv).reshape(B, S, 3, H, Dh), 2, 0, 3, 1, 4)
        q, k, v = (qkv[0], qkv[1], qkv[2])
        scale = Dh ** (-0.5)
        pos = torch.arange(S)
        off = torch.arange(W) * dil
        idx = pos[:, None] - off[None, :]
        mask = idx >= 0
        idx_c = torch.where(mask, idx, 0).reshape(-1)
        kg = k[:, :, idx_c, :].reshape(B, H, S, W, Dh)
        vg = v[:, :, idx_c, :].reshape(B, H, S, W, Dh)
        logits = torch.einsum('bhsd,bhswd->bhsw', q, kg) * scale
        logits = torch.where(mask[None, None, :, :], logits, -1000000000.0)
        attn = _softmax(logits, axis=-1)
        o = torch.einsum('bhsw,bhswd->bhsd', attn, vg)
        return (lambda x, *d: x.permute(*d))(o, 0, 2, 1, 3).reshape(B, S, D) @ wo

    def _B_ref(x, mem0, Wq, Wk, Wv, Wo, seg_len):
        B, S, Dm = x.shape
        H, Dh = (Wq.shape[1], Wq.shape[2])
        M = mem0.shape[1]
        scale = Dh ** (-0.5)
        n_seg = S // seg_len
        L = M + seg_len
        idx = torch.arange(L)
        mask = (idx[:, None] < M) | (idx[:, None] >= idx[None, :])
        mem = mem0
        outs = []
        for s in range(n_seg):
            xs = x[:, s * seg_len:(s + 1) * seg_len, :].clone()
            h = torch.concatenate([mem, xs], axis=1)
            q = torch.einsum('btd,dhe->bhte', h, Wq)
            k = torch.einsum('btd,dhe->bhte', h, Wk)
            v = torch.einsum('btd,dhe->bhte', h, Wv)
            scores = torch.einsum('bhqe,bhke->bhqk', q, k) * scale
            scores = torch.where(mask[None, None], scores, -1000000000.0)
            p = _softmax(scores, axis=-1)
            o = torch.einsum('bhqk,bhke->bhqe', p, v)
            o = torch.einsum('bhte,hed->btd', o, Wo)
            mem = o[:, :M, :].clone()
            outs.append(o[:, M:, :])
        return torch.concatenate(outs, axis=1)
    x = A_x
    g = _sigmoid((x * gate_w).sum(-1, keepdims=True))
    a = _A_ref(x, A_wqkv, A_wo)
    b = _B_ref(x, B_mem0, B_Wq, B_Wk, B_Wv, B_Wo, B_seg_len)
    return g * a + (1 - g) * b
```

```python
import re

def regs_of(tok):
    tok = tok.strip()
    tok = re.sub(r'^-', '', tok)
    m = re.match(r'^(?:abs\()?([vas])(\d+)\)?$', tok)
    if m: return [(m.group(1), int(m.group(2)))]
    m = re.match(r'^([vas])\[(\d+):(\d+)\]$', tok)
    if m: return [(m.group(1), i) for i in range(int(m.group(2)), int(m.group(3)) + 1)]
    if tok == 'vcc': return [('s', 'vcc')]
    if tok == 'exec': return [('s', 'exec')]
    if tok == 'm0': return [('s', 'm0')]
    return []

TRANS = ('v_exp_', 'v_log_', 'v_rcp_', 'v_rsq_', 'v_sqrt_', 'v_sin_', 'v_cos_')

class Ins:
    def __init__(s, text):
        s.text = text
        t = text.split(';')[0].strip()
        parts = t.split(None, 1)
        s.op = parts[0]
        rest = parts[1] if len(parts) > 1 else ''
        ops = [o.strip() for o in rest.split(',')] if rest else []
        flat = []
        s.mods = ''
        depth_fix = []
        i = 0
        m = re.search(r'\s(quad_perm|row_|op_sel|neg_lo|neg_hi|bitop3|offset|offen|abid|cbsz|sc0|sc1|nt\b|lds\b|dst_sel|src0_sel|clamp|mul:|div:)', ' ' + rest)
        if m:
            s.mods = rest[m.start():]
            rest = rest[:m.start()]
        s.ops = [o.strip() for o in rest.split(',')] if rest.strip() else []
        op = s.op
        s.kind = 'salu'
        R, W = [], []
        o = [regs_of(x) for x in s.ops]
        s.passes = 0
        if op.startswith('v_smfmac'):
            s.kind = 'mfma'; W = o[0]; s.C = o[0]; s.AB = o[1] + o[2] + o[3]; R = s.C + s.AB
            s.passes = 8 if '32x32' in op else 4
        elif op.startswith('v_mfma'):
            s.kind = 'mfma'; W = o[0]; s.C = o[3]; s.AB = o[1] + o[2]; R = s.C + s.AB
            s.passes = 8 if '32x32' in op else 4
        elif op.startswith('v_'):
            s.kind = 'valu'
            if 'swap' in op: W = o[0] + o[1]; R = o[0] + o[1]
            elif op.startswith('v_nop'): pass
            else:
                W = o[0]; R = sum(o[1:], [])
                if op.startswith(('v_add_co', 'v_addc_co', 'v_sub_co')): W = o[0] + o[1]; R = sum(o[2:], [])
                if op.startswith(('v_fmac', 'v_writelane', 'v_dot2c')) or 'bank_mask' in s.mods and 'bank_mask:0xf' not in s.mods or 'UNUSED_PRESERVE' in s.mods: R = R + o[0]
        elif op.startswith('ds_'):
            s.kind = 'ds'
            if op.startswith(('ds_read', 'ds_bpermute', 'ds_swizzle')): W = o[0]; R = sum(o[1:], [])
            else: R = sum(o, [])
        elif op.startswith(('buffer_', 'global_')):
            s.kind = 'vmem'
            if 'load' in op and ' lds' not in ' ' + s.mods and 'load_lds' not in op: W = o[0]; R = sum(o[1:], [])
            elif 'atomic' in op and 'sc0' in s.mods:
                W = o[0]; R = sum(o, []) if op.startswith('buffer') else sum(o[1:], [])
            else: R = sum(o, [])
            if ' lds' in ' ' + s.mods or 'load_lds' in op: R = R + [('s', 'm0')]
        elif op.startswith(('s_load', 's_memtime', 's_memrealtime', 's_buffer_load')):
            s.kind = 'smem'; W = o[0]; R = sum(o[1:], [])
        elif op.startswith(('s_cmp', 's_cbranch', 's_branch', 's_waitcnt', 's_nop', 's_barrier', 's_endpgm', 's_sleep', 's_setprio', 's_bitcmp')):
            R = sum(o, [])
        else:
            W = o[0] if o else []; R = sum(o[1:], [])
        s.R, s.W = set(R), set(W)
        s.dpp = s.kind == 'valu' and ('quad_perm' in s.mods or 'row_' in s.mods)
        s.trans = op.startswith(TRANS)
        s.wide_store = s.kind == 'vmem' and 'store' in op and ('x3' in op or 'x4' in op)

class Prog:
    def __init__(p, check=True):
        p.lines = []
        p.hist = []
        p.now = 0
        p.last_mfma = None
        p.ldsq = []
        p.vmq = []
        p.check = check
        p.nops_added = 0
        p.ool = []
    def raw(p, text): p.lines.append(text)
    def label(p, name, reset=True):
        p.lines.append(name + ':')
    def comment(p, t): p.lines.append('; ' + t)
    def need(p, ins):
        t = 0
        win = p.hist[-24:]
        for hi in range(len(win)):
            h = win[hi][0]
            d = 0
            hw = h.W
            if h.kind == 'valu':
                vw = {r for r in hw if r[0] in 'va'}; sw = {r for r in hw if r[0] == 's'}
                if ins.kind == 'mfma' and vw & ins.R: d = max(d, 2)
                if ins.kind == 'valu' and (ins.dpp or 'permlane' in ins.op) and vw & ins.R: d = max(d, 2)
                if ins.op.startswith(('v_readfirstlane', 'v_readlane')) and vw & ins.R: d = max(d, 1)
                if h.trans and ins.kind == 'valu' and not ins.trans and vw & ins.R: d = max(d, 1)
                if h.trans and ins.kind in ('ds', 'vmem') and vw & ins.R: d = max(d, 1)
                if sw & ins.R:
                    if ins.kind == 'valu': d = max(d, 4 if 'lane' in ins.op else 2)
                    if ins.kind == 'vmem': d = max(d, 5)
                    if ins.kind in ('salu', 'smem'): d = max(d, 1)
                if ('s', 'exec') in sw and ins.kind in ('mfma', 'valu'): d = max(d, 5)
                if h.op.startswith('v_dot'):
                    if ins.op == h.op:
                        if vw & set(regs_of(ins.ops[1]) + regs_of(ins.ops[2])): d = max(d, 3)
                    elif vw & (ins.R | ins.W): d = max(d, 3)
                if 'dst_sel' in h.mods and ins.kind == 'valu' and vw & (ins.R | ins.W): d = max(d, 1)
            elif h.kind == 'mfma':
                big = {4: 8, 8: 12}[h.passes]; ov = {4: 6, 8: 10}[h.passes]; war = {4: 3, 8: 7}[h.passes]
                if ins.kind == 'mfma':
                    if hw & set(ins.AB): d = max(d, big)
                    if hw & set(ins.C):
                        if not (set(ins.C) == hw and ins.op == h.op): d = max(d, ov)
                    elif hw & ins.W: d = max(d, ov)
                elif ins.kind in ('valu', 'ds', 'vmem'):
                    if hw & (ins.R | ins.W): d = max(d, big)
                    if ins.kind == 'valu' and set(h.C) & ins.W: d = max(d, war)
            elif h.kind == 'vmem' and h.wide_store:
                if regs_data(h) & ins.W: d = max(d, 2)
            elif h.kind == 'salu':
                if ('s', 'm0') in hw and ('s', 'm0') in ins.R and ins.kind in ('vmem', 'ds'): d = max(d, 1)
            if d:
                now = 0; lm = None
                for x, _ in win[hi:]:
                    if x.kind == 'mfma':
                        if lm is not None: now = max(now, lm)
                        lm = now + x.passes
                    now += (int(x.ops[0]) + 1) if x.op == 's_nop' else 1
                nat = max(now, lm) if (ins.kind == 'mfma' and lm is not None) else now
                if nat < d + 1: t = max(t, d + 1 - now)
        return t
    def e(p, text, tag=None):
        for line in text.strip().split('\n'):
            line = line.strip()
            if not line: continue
            if line.endswith(':') or line.startswith((';', '.')): p.lines.append(line); continue
            p._e(line, tag)
    def _e(p, text, tag):
        ins = Ins(text)
        if p.check:
            n = p.need(ins)
            p.nops_added += n
            while n > 0:
                k = min(n, 16); p.lines.append(f's_nop {k-1}'); p.hist.append((Ins(f's_nop {k-1}'), 0)); n -= k
            for q, nm in ((p.ldsq, 'lds'), (p.vmq, 'vm')):
                for tg, regs in q:
                    if regs & (ins.R | ins.W) and not (tg or '').startswith('!'):
                        raise Exception(f'{nm} result {tg} {sorted(regs & (ins.R|ins.W))} not waited before: {text}')
        if ins.op == 's_waitcnt':
            m = re.search(r'vmcnt\((\d+)\)', text)
            if m: k = int(m.group(1)); p.vmq = p.vmq[len(p.vmq) - k:] if k else []
            m = re.search(r'lgkmcnt\((\d+)\)', text)
            if m: k = int(m.group(1)); p.ldsq = p.ldsq[len(p.ldsq) - k:] if k else []
        if ins.kind == 'ds' : p.ldsq.append((tag, ins.W))
        if ins.kind == 'smem' and not ins.op.startswith('s_mem'): p.ldsq.append(('smem', ins.W))
        if ins.kind == 'vmem': p.vmq.append((tag, ins.W))
        p.lines.append(text)
        p.hist.append((ins, p.now))
        if ins.kind == 'mfma': p.last_mfma = (p.now, ins.passes)
        if ins.op == 's_nop': p.now += int(ins.ops[0]) + 1
        else: p.now += 1
    def _cnt(p, q, tags):
        if isinstance(tags, str): tags = [tags]
        idx = [i for i, (tg, _) in enumerate(q) if tg in tags]
        if not idx: return None
        return len(q) - 1 - max(idx)
    def wl(p, tags):
        n = p._cnt(p.ldsq, tags)
        if n is not None:
            assert not any(tg == 'smem' for tg, _ in p.ldsq)
            p.e(f's_waitcnt lgkmcnt({min(n, 15)})')
    def wv(p, tags):
        n = p._cnt(p.vmq, tags)
        if n is not None: p.e(f's_waitcnt vmcnt({min(n, 63)})')
    def fence(p, n=12):
        p.hist = []; p.last_mfma = None
    def text(p): return '\n'.join(p.lines + p.ool) + '\n'

def regs_data(ins):
    o = ins.ops[0] if ins.op.startswith('buffer') else ins.ops[1]
    return set(regs_of(o))

def vr(base, n=1):
    k, b = ('v', base) if base < 256 else ('a', base - 256)
    if n == 1: return f'{k}{b}'
    assert (base < 256) == (base + n - 1 < 256)
    return f'{k}[{b}:{b+n-1}]'
def sr(b, n=1): return f's{b}' if n == 1 else f's[{b}:{b+n-1}]'
```

```python
from asmgen import *
import math, struct

WS_X    = 0x0
WS_MEM  = 0x48000
WS_FLG  = 0x50000
WS_STMP = 0x60000
WS_KVM  = 0x800000
WS_KVX  = 0x1000000
WS_BYTES = 0x10000000
L_DUM = 0; L_SEL = 256; L_MEM = 1024; L_Q = 10240; L_K = 12288; L_XS = 14336; L_W = [16384, 16384 + 40960, 16384 + 81920, 16384 + 81920 + 32768]
S_WS, S_WQ, S_WK, S_WV, S_WO, S_M0, S_DBG = 4, 8, 12, 16, 20, 24, 28
sH, sW, sS, sT, sTn, sKV, sKVn, sPF, sKM, sBud = 32, 33, 34, 35, 36, 37, 38, 39, 40, 41
sX = [42, 43, 44, 45, 46]
sMEMo, sMEM1, sMEM8 = 47, 48, 49
sSC = 50
sONE = 52
sA, sB, sC, sD = 54, 55, 56, 57
sRU = 3
sEv, sFL = 100, 101
sST = 60
vIdx, vL16, vW, vL8, vTR, vXr, vTmp, vOr, vST, vRD, vMS, vMask = range(12)
KV = 12; VV = 52; AQ = 20; AK = 28; AV = 36; WST = 44; AS = [60, 64, 68, 72, 76]; SEL = 76
WBASE = 80
SCALE = struct.unpack('<I', struct.pack('<f', 128 ** -0.5 * math.log2(math.e)))[0]

def tile_order(w):
    return [w, (w+1) % 4, (w+2) % 4, (w+3) % 4, 4+w, 4+(w+1) % 4, 4+(w+2) % 4, 4+(w+3) % 4, 8]

class Alloc:
    def __init__(s, w):
        s.w = w
        s.ndt = 5 if w < 2 else 4
        s.lpairs = [('q', 0), ('q', 2), ('q', 4), ('k', 5), ('v', 7)]
        o = [(0, 0), (1, 0), (0, 1), (0, 2), (0, 3), (1, 1), (1, 2), (1, 3), (2, 0), (2, 1), (2, 2), (2, 3), (3, 0), (3, 1), (3, 2), (3, 3)]
        if s.ndt == 5:
            o += [(4, 0), (4, 1), (4, 2), (4, 3)]
            lpos = [0, 1, 3, 6, 8, 10, 12, 14, 16, 18]
        else:
            lpos = [0, 1, 3, 8, 11, 14]
        s.wo_order = o
        s.wo_l = [o[i] for i in lpos]
        s.reg = {}; s.lds = {}
        r = WBASE; off = 0
        for m, sl in s.lpairs:
            s.lds[(m, sl, 0)] = off; s.lds[(m, sl, 1)] = off + 2048; off += 4096
        for kj in s.wo_l:
            s.lds[('o',) + kj] = off; off += 2048
        for m in 'qkv':
            for sl in range(9):
                for T in range(2):
                    if (m, sl, T) not in s.lds: s.reg[(m, sl, T)] = r; r += 8
        for kj in o:
            if ('o',) + kj not in s.lds: s.reg[('o',) + kj] = r; r += 8
        assert r == 512, r
        s.ldsbytes = off

def setup_common(p):
    p.e(f"""
s_load_dwordx2 s[{S_M0}:{S_M0+1}], s[0:1], 32
s_load_dwordx2 s[{S_WQ}:{S_WQ+1}], s[0:1], 40
s_load_dwordx2 s[{S_WK}:{S_WK+1}], s[0:1], 48
s_load_dwordx2 s[{S_WV}:{S_WV+1}], s[0:1], 56
s_load_dwordx2 s[{S_WO}:{S_WO+1}], s[0:1], 64
s_load_dwordx2 s[{S_DBG}:{S_DBG+1}], s[0:1], 96
s_load_dwordx2 s[{S_WS}:{S_WS+1}], s[0:1], 104
""")
    for b, n in ((S_M0, 9216), (S_WQ, 4718592), (S_WK, 4718592), (S_WV, 4718592), (S_WO, 4718592), (S_DBG, 256), (S_WS, WS_BYTES)):
        p.e(f"s_mov_b32 s{b+2}, {n}\ns_mov_b32 s{b+3}, 0x20000")

def kvwait(nm, mask, val, vt, vz):
    return f"""
s_lshl_b32 s{sB}, s{sH}, 2
v_mov_b32 v{vz}, 0
L_kvw_{nm}:
buffer_load_dword v{vt}, v{vz}, s[{S_DBG}:{S_DBG+3}], s{sB} offen offset:128 sc0 sc1
s_sub_u32 s{sBud}, s{sBud}, 1
s_cbranch_scc1 L_exit
s_waitcnt vmcnt(0)
v_readfirstlane_b32 s{sA}, v{vt}
s_nop 0
s_and_b32 s{sA}, s{sA}, {mask}
s_cmp_lg_u32 s{sA}, {val}
s_cbranch_scc1 L_kvw_{nm}
"""

def prologue(p, w, red, cfg):
    al = Alloc(w)
    l, n, g, t0, t1, t2 = 20, 21, 22, 23, 24, 25
    vG1, vG2, vR1, vR2 = 26, 27, 28, 29
    p.e(f"""
v_and_b32 v{l}, 63, v0
v_and_b32 v{n}, 15, v0
v_bfe_u32 v{g}, v0, 4, 2
v_lshlrev_b32 v{vL16}, 4, v{l}
v_add_u32 v{vW}, {L_W[w]}, v{vL16}
v_bfe_u32 v{t0}, v{l}, 4, 1
v_lshlrev_b32 v{vG1}, 4, v{t0}
v_bfe_u32 v{t0}, v{l}, 2, 2
v_lshl_add_u32 v{vG1}, v{t0}, 1, v{vG1}
v_bfe_u32 v{t0}, v{l}, 5, 1
v_add_u32 v{vG1}, v{vG1}, v{t0}
v_lshlrev_b32 v{vG1}, 13, v{vG1}
v_and_b32 v{t0}, 3, v{l}
v_lshl_add_u32 v{vG1}, v{t0}, 4, v{vG1}
v_lshrrev_b32 v{t1}, 2, v{l}
v_mul_u32_u24 v{vG2}, 1152, v{t1}
v_lshl_add_u32 v{vG2}, v{t0}, 4, v{vG2}
v_lshrrev_b32 v{t1}, 2, v{n}
v_lshl_add_u32 v{t2}, v{g}, 3, v{t1}
v_lshlrev_b32 v{vR1}, 6, v{t2}
v_lshl_add_u32 v{vR1}, v{t0}, 3, v{vR1}
v_add_u32 v{vR1}, {L_W[w]}, v{vR1}
v_and_b32 v{t2}, 1, v{g}
v_lshlrev_b32 v{vR2}, 10, v{t2}
v_lshrrev_b32 v{t2}, 1, v{g}
v_lshl_add_u32 v{vR2}, v{t2}, 8, v{vR2}
v_and_b32 v{t2}, 1, v{t1}
v_lshl_add_u32 v{vR2}, v{t2}, 6, v{vR2}
v_lshrrev_b32 v{t2}, 1, v{t1}
v_lshl_add_u32 v{vR2}, v{t2}, 5, v{vR2}
v_lshl_add_u32 v{vR2}, v{t0}, 3, v{vR2}
v_add_u32 v{vR2}, {L_W[w]}, v{vR2}
s_lshl_b32 s{sA}, s{sH}, 8
s_add_u32 s{sA}, s{sA}, {64*w}
s_mul_i32 s{sB}, s{sH}, 147456
s_waitcnt lgkmcnt(0)
""")
    order = tile_order(w)
    items = []
    for m in 'qkv':
        for sl in range(9):
            if (m, sl, 0) in al.reg: items.append(('R', [(m, sl, 0), (m, sl, 1)]))
    wo_r = [('o',) + kj for kj in al.wo_order if ('o',) + kj in al.reg]
    for i in range(0, len(wo_r), 2): items.append(('R', wo_r[i:i+2]))
    nreg = len(items)
    for m, sl in al.lpairs: items.append(('L', [(m, sl, 0), (m, sl, 1)]))
    wo_l = [('o',) + kj for kj in al.wo_l]
    for i in range(0, len(wo_l), 2): items.append(('L', wo_l[i:i+2]))
    nslot = al.ldsbytes // 4096
    def slot(i): return (i - nreg) % nslot
    DEPTH = nslot - 1
    def issue(i):
        kind, tl = items[i]
        base = L_W[w] + 4096 * slot(i)
        for d in range(4):
            if tl[0][0] != 'o':
                m, sl, _ = tl[0]
                srd = {'q': S_WQ, 'k': S_WK, 'v': S_WV}[m]
                so = (64 * order[sl] + 32 * (d >> 1) + 8 * (d & 1)) * 8192
                p.e(f"s_add_u32 s{sC}, s{sA}, {so}\ns_mov_b32 m0, {base + 1024*d}")
                p.e(f"buffer_load_dwordx4 v{vG1}, s[{srd}:{srd+3}], s{sC} offen lds", tag=f"d{i}")
            else:
                _, k, j = tl[d >> 1]
                ks = (w + j) % 4; DT = 4 * k + w
                so = (32 * ks + 16 * (d & 1)) * 1152 + 64 * DT
                p.e(f"s_add_u32 s{sC}, s{sB}, {so}\ns_mov_b32 m0, {base + 1024*d}")
                p.e(f"buffer_load_dwordx4 v{vG2}, s[{S_WO}:{S_WO+3}], s{sC} offen lds", tag=f"d{i}")
    def consume(i):
        kind, tl = items[i]
        off = 4096 * slot(i)
        p.wv(f"d{i}")
        for x, t in enumerate(tl):
            dst = al.reg[t] if kind == 'R' else WST + 8 * x
            for q in range(4):
                if t[0] != 'o': a, o = vR1, off + 2048 * (q >> 1) + 256 * (q & 1) + 32 * t[2]
                else: a, o = vR2, off + 2048 * x + 64 * (8 * (q >> 1) + 2 * (q & 1))
                p.e(f"ds_read_b64_tr_b16 {vr(dst + 2*q, 2)}, v{a} offset:{o}", tag="tr")
        p.e("s_waitcnt lgkmcnt(0)")
        if kind == 'L':
            assert al.lds[tl[0]] == off and al.lds[tl[1]] == off + 2048
            for x in range(4):
                p.e(f"ds_write_b128 v{vW}, {vr(WST + 4*x, 4)} offset:{off + 1024*x}", tag="lw")
            p.e("s_waitcnt lgkmcnt(0)")
    for i in range(DEPTH): issue(i)
    p.e(f"""
v_bfe_u32 v{t0}, v{n}, 1, 1
v_and_b32 v{t1}, 1, v{n}
v_lshl_add_u32 v{t0}, v{t1}, 16, v{t0}
v_mul_u32_u24 v{t0}, 0xaaaa, v{t0}
v_add_u32 v{vIdx}, 0x44444444, v{t0}
v_lshlrev_b32 v{vL8}, 3, v{l}
v_lshrrev_b32 v{t2}, 5, v{l}
v_lshlrev_b32 v{t2}, 6, v{t2}
v_xor_b32 v{vL8}, v{vL8}, v{t2}
; vTR = (128c + 8*(4g + r)) ^ (64*(c>>1))   (c = n&3, r = n>>2)
v_lshrrev_b32 v{t2}, 2, v{l}
v_and_b32 v{vTR}, 3, v{n}
v_lshl_add_u32 v{vTR}, v{vTR}, 4, v{t2}
v_lshlrev_b32 v{vTR}, 3, v{vTR}
v_bfe_u32 v{t2}, v{n}, 1, 1
v_lshlrev_b32 v{t0}, 6, v{t2}
v_xor_b32 v{vTR}, v{vTR}, v{t0}
v_and_b32 v{t0}, 2, v{g}
v_xor_b32 v{vXr}, v{n}, v{t0}
v_lshlrev_b32 v{vXr}, 4, v{vXr}
v_lshl_add_u32 v{vXr}, v{t2}, 10, v{vXr}
v_and_b32 v{t0}, 1, v{g}
v_lshl_add_u32 v{vXr}, v{t0}, 3, v{vXr}
; vRD = g*256 + n3*128 + n1*64 + n2*32 + n0*16
v_lshlrev_b32 v{vRD}, 8, v{g}
v_lshl_add_u32 v{vRD}, v{t2}, 6, v{vRD}
v_bfe_u32 v{t0}, v{n}, 3, 1
v_lshl_add_u32 v{vRD}, v{t0}, 7, v{vRD}
v_bfe_u32 v{t0}, v{n}, 2, 1
v_lshl_add_u32 v{vRD}, v{t0}, 5, v{vRD}
v_and_b32 v{t0}, 1, v{n}
v_lshl_add_u32 v{vRD}, v{t0}, 4, v{vRD}
v_lshrrev_b32 v{t0}, 1, v{g}
v_and_b32 v{t1}, 1, v{g}
v_and_b32 v{t2}, 7, v{n}
v_lshrrev_b32 v{vOr}, 3, v{n}
; vST = w*16384 + (2*n3+(g>>1))*4096 + (h>>1)*256 + (g&1)*128 + (h&1)*64 + (n&7)*8
v_lshl_add_u32 v{vST}, v{vOr}, 1, v{t0}
v_lshlrev_b32 v{vST}, 12, v{vST}
v_lshl_add_u32 v{vST}, v{t1}, 7, v{vST}
v_lshl_add_u32 v{vST}, v{t2}, 3, v{vST}
s_lshr_b32 s{sC}, s{sH}, 1
s_lshl_b32 s{sC}, s{sC}, 8
s_and_b32 s{sD}, s{sH}, 1
s_lshl_b32 s{sD}, s{sD}, 6
s_add_u32 s{sC}, s{sC}, s{sD}
s_add_u32 s{sC}, s{sC}, {WS_X + 16384*w}
v_add_u32 v{vST}, s{sC}, v{vST}
; vOr = 256*g + 16*(4*(n>>2) + ((n>>1)&1))
v_and_b32 v{vOr}, 12, v{n}
v_bfe_u32 v{t2}, v{n}, 1, 1
v_add_u32 v{vOr}, v{vOr}, v{t2}
v_lshlrev_b32 v{vOr}, 4, v{vOr}
v_lshl_add_u32 v{vOr}, v{g}, 8, v{vOr}
""")
    for k in range(5): p.e(f"s_mov_b32 s{sX[k]}, {65536*k}")
    p.e(f"""
s_mov_b32 s{sMEMo}, {WS_MEM + 1024*w}
s_mov_b32 s{sMEM1}, {WS_MEM + 4096 + 1024*w}
s_mov_b32 s{sMEM8}, {WS_MEM + 8192 + 256*w}
s_mov_b32 s{sKVn}, {WS_MEM + 1024*((w+1)%4)}
s_mov_b32 s{sSC}, {SCALE:#x}
s_mov_b32 s{sSC+1}, {SCALE:#x}
s_mov_b32 s{sONE}, 0x3f803f80
s_mov_b32 s{sONE+1}, 0x3f803f80
v_and_b32 v{vMask}, 3, v{n}
v_cmp_eq_u32 vcc, 0, v{vMask}
v_cndmask_b32 v{vMask}, 0, 1, vcc
s_mov_b32 s{sS}, 0
s_mov_b32 s{sT}, -1
s_mov_b32 s{sTn}, 0
s_mov_b32 s{sBud}, {cfg.get('budget', 400000)}
s_lshl_b32 s{sKV}, s{sH}, 14
s_add_u32 s{sPF}, s{sKV}, {WS_KVX + 4096*w + 524288*cfg.get('pfd', 1)}
s_add_u32 s{sKV}, s{sKV}, {WS_KVX + 4096*w}
s_lshl_b32 s{sKM}, s{sH}, 12
s_add_u32 s{sKM}, s{sKM}, {WS_KVM + 1024*w}
v_mov_b64 v[{AV}:{AV+1}], 0
v_mov_b64 v[{AV+2}:{AV+3}], 0
""")
    if red:
        ub = {2: 0, 3: 32, 1: 64}[w]
        p.e(f"""
s_add_u32 s{sC}, s{sH}, {ub}
s_lshl_b32 s{sRU}, s{sC}, 12
v_bfe_u32 v{t0}, v{n}, 1, 1
v_bfe_u32 v{t1}, v{n}, 2, 1
v_and_b32 v{t2}, 1, v{n}
s_lshl_b32 s{sD}, s{sC}, 7
s_add_u32 s{sD}, s{sD}, {WS_MEM}
v_and_b32 v{vMS}, 7, v{n}
v_lshlrev_b32 v{vMS}, 2, v{vMS}
v_lshl_add_u32 v{vMS}, v{g}, 5, v{vMS}
v_add_u32 v{vMS}, s{sD}, v{vMS}
v_lshl_add_u32 v{t0}, v{t0}, 1, v{t1}
v_lshlrev_b32 v{t2}, 4, v{t2}
v_mov_b32 v{t1}, 0x3f80
v_lshlrev_b32 v{t1}, v{t2}, v{t1}
""")
        for j in range(4):
            p.e(f"v_cmp_eq_u32 vcc, {j}, v{t0}\nv_cndmask_b32 v{SEL+j}, 0, v{t1}, vcc")
        if w == 2:
            p.e(f"v_and_b32 v{t0}, 0x70, v{vL16}\nds_write_b128 v{t0}, v[{SEL}:{SEL+3}] offset:{L_SEL}", tag="z")
        for i in range(4):
            p.e(f"buffer_store_dwordx4 v[{AV}:{AV+3}], v{vRD}, s[{S_WS}:{S_WS+3}], s{sRU} offen offset:{1024*i} sc0 sc1", tag="init")
    if w == 0:
        p.e(f"v_lshlrev_b32 v{t0}, 2, v{l}\ns_lshl_b32 s{sC}, s{sH}, 8\ns_add_u32 s{sC}, s{sC}, {WS_FLG}\nbuffer_store_dword v{AV}, v{t0}, s[{S_WS}:{S_WS+3}], s{sC} offen sc0 sc1", tag="init")
        A = AS[0]; B = AS[1]
        p.e(f"""
s_cmp_ge_u32 s{sH}, 9
s_cbranch_scc1 L_nomem0
v_lshrrev_b32 v{t0}, 2, v{n}
v_and_b32 v{t1}, 1, v{n}
v_lshl_add_u32 v{t0}, v{t0}, 1, v{t1}
v_mul_u32_u24 v{t0}, 1152, v{t0}
v_lshrrev_b32 v{t1}, 1, v{g}
v_lshl_add_u32 v{t0}, v{t1}, 6, v{t0}
v_and_b32 v{t1}, 1, v{g}
v_lshl_add_u32 v{t0}, v{t1}, 4, v{t0}
v_bfe_u32 v{t1}, v{n}, 1, 1
v_lshl_add_u32 v{t0}, v{t1}, 3, v{t0}
s_lshl_b32 s{sC}, s{sH}, 7
buffer_load_dwordx2 v[{A}:{A+1}], v{t0}, s[{S_M0}:{S_M0+3}], s{sC} offen
buffer_load_dwordx2 v[{A+2}:{A+3}], v{t0}, s[{S_M0}:{S_M0+3}], s{sC} offen offset:32
s_mov_b32 s{sC}, 0x05040100
s_mov_b32 s{sD}, 0x07060302
s_waitcnt vmcnt(0)
v_perm_b32 v{B}, v{A+1}, v{A}, s{sC}
v_perm_b32 v{B+1}, v{A+3}, v{A+2}, s{sC}
v_perm_b32 v{B+2}, v{A+1}, v{A}, s{sD}
v_perm_b32 v{B+3}, v{A+3}, v{A+2}, s{sD}
v_or_b32 v{B}, 1, v{B}
s_lshl_b32 s{sC}, s{sH}, 10
s_add_u32 s{sC}, s{sC}, {WS_MEM}
buffer_store_dwordx4 v[{B}:{B+3}], v{vL16}, s[{S_WS}:{S_WS+3}], s{sC} offen sc0 sc1
L_nomem0:
""")
    p.e("s_waitcnt vmcnt(0) lgkmcnt(0)\ns_barrier")
    p.e(f"""
s_getreg_b32 s{sC}, hwreg(HW_REG_XCC_ID)
s_and_b32 s{sC}, s{sC}, 15
s_mul_i32 s{sD}, s{sC}, s{sC}
s_lshl_b32 s{sD}, s{sD}, 18
s_lshl_b32 s{sC}, s{sC}, 8
s_add_u32 s{sD}, s{sD}, s{sC}
s_add_u32 s58, s{sD}, 1
""")
    if w == 0:
        p.e(f"""
v_mov_b32 v{t0}, s58
v_mov_b32 v{t1}, 0
s_mov_b64 exec, 1
buffer_atomic_add v{t0}, v{t1}, s[{S_DBG}:{S_DBG+3}], 0 offen sc1
s_mov_b64 exec, -1
""")
    for i in range(len(items)):
        consume(i)
        if i + DEPTH < len(items): issue(i + DEPTH)
    nm = f"w{w}{'r' if red else ''}"
    p.e(f"""
v_mov_b32 v{t1}, 0
L_rdv_{nm}:
buffer_load_dword v{t0}, v{t1}, s[{S_DBG}:{S_DBG+3}], 0 offen sc0 sc1
s_sub_u32 s{sBud}, s{sBud}, 1
s_cbranch_scc1 L_exit
s_waitcnt vmcnt(0)
v_readfirstlane_b32 s{sC}, v{t0}
s_and_b32 s{sD}, s{sC}, 0xff
s_cmp_lg_u32 s{sD}, 32
s_cbranch_scc1 L_rdv_{nm}
{kvwait(nm + 'p', 0xff, 4, t0, t1) if cfg.get('fused') else ''}
s_mov_b32 m0, {L_DUM}
s_lshl_b32 s{sFL}, s{sH}, 7
s_add_u32 s{sFL}, s{sFL}, {WS_FLG}
s_mov_b32 s{sEv}, {4*cfg.get('kv_ck', 6) - 2 if cfg.get('fused') else 63}
s_lshl_b32 s58, s58, 5
s_cmp_eq_u32 s{sC}, s58
s_cbranch_scc{'0' if not cfg.get('force_slow') else '1'} L_slow_{nm}
""")

def loop(p, w, red, fast, cfg):
    al = Alloc(w)
    order = tile_order(w)
    nm = f"w{w}{'r' if red else ''}{'f' if fast else 's'}"
    ST = "" if fast else " sc0 sc1"
    LD = " sc1" if fast else " sc0 sc1"
    WSR = f"s[{S_WS}:{S_WS+3}]"
    a0, a1, a2, a3, a4 = AS
    stamps = cfg.get('stamps')
    sel = cfg.get('sel')
    def stamp(i):
        if cfg.get('trace') is not None and i != 0: return
        if stamps and (sel is None or i in sel or (i == 0 and sel)): p.e(f"s_memtime s[{sST+2*i}:{sST+2*i+1}]")
    acc = {'q': AQ, 'k': AK, 'v': AV}
    SLOT = [WST, KV, VV]
    def wreg(key, slot):
        return al.reg[key] if key in al.reg else SLOT[slot]
    def S(m, sl, T, a):
        key = (m, sl, T)
        if key in al.lds: p.wl("W0")
        p.e(f"v_smfmac_f32_16x16x64_bf16 {vr(acc[m] + 4*T, 4)}, {vr(a, 4)}, {vr(wreg(key, 0), 8)}, v{vIdx}")
    def fillh(key, slot, h):
        if cfg.get('now'): return
        p.e(f"ds_read_b128 {vr(SLOT[slot] + 4*h, 4)}, v{vW} offset:{al.lds[key] + 1024*h}", tag=f"W{slot}")
    def fh(i, T, h): fillh(al.lpairs[i] + (T,), 0, h)
    def rdA(sl, a): p.e(f"ds_read_b128 {vr(a, 4)}, v{vL16} offset:{L_MEM + 1024*order[sl]}", tag=f"A{sl}")
    A0 = f"buffer_load_dwordx4 {vr(a0, 4)}, v{vL16}, {WSR}, s{sMEMo} offen{LD}"
    A1 = f"buffer_load_dwordx4 {vr(a1, 4)}, v{vL16}, {WSR}, s{sMEM1} offen{LD}"
    A1 += f"\nbuffer_load_dword v{a4}, v{vTmp}, {WSR}, s{sMEM8} offen{LD}"
    dual = cfg.get('dual', True)
    AB = f"buffer_load_dwordx4 {vr(a2, 4)}, v{vL16}, {WSR}, s{sKVn} offen{LD}"
    KD = AK + 2
    PUB = f"buffer_store_dwordx4 {vr(KD, 4)}, v{vL16}, {WSR}, s{sKM} offen{cfg.get('pubflag', '')}"
    def zero(r, n):
        return "\n".join(f"v_mov_b64 {vr(r + i, 2)}, 0" for i in range(0, n, 2))
    BUD = f"s_sub_u32 s{sBud}, s{sBud}, 1\ns_cbranch_scc1 L_exit\n"
    def cnt(i): return f"s_add_u32 s{96+i}, s{96+i}, 1\n" if stamps else ""
    def loadK(s):
        for x, r in enumerate((KV, KV + 4, VV, VV + 4)): p.e(f"buffer_load_dwordx4 {vr(r, 4)}, v{vRD if x < 2 else vL16}, {WSR}, s{s} offen offset:{1024*x}", tag="K")
    kvlate = red and w in cfg.get('kvlate', (1, 3))
    a1mode = cfg.get('a1mode', 'late')

    p.fence()
    if stamps:
        for i in range(60, 100): p.e(f"s_mov_b32 s{i}, 0")
        p.e("s_memtime s[60:61]\ns_memrealtime s[62:63]\ns_waitcnt lgkmcnt(0)\ns_mov_b32 s84, s60\ns_sub_u32 s99, s62, s59")
    loadK(sKV)
    p.e(zero(AQ, 24))
    p.e(f"v_lshrrev_b32 v{vTmp}, 2, v{vL16}")
    fh(0, 0, 0); fh(0, 0, 1)
    p.e("s_waitcnt vmcnt(0)")
    p.e(A0, tag="A0")
    if dual: p.e(AB, tag="AB")
    if a1mode != 'late': p.e(A1, tag="A1")
    p.e("s_waitcnt vmcnt(0)")
    p.vmq = [("A0", set())] + ([("AB", set())] if dual else []) + ([("A1", set())] * 2 if a1mode == 'early' else []) + ([] if cfg.get('pubo', True) else [("pub", set())]) + ([("A1", set())] * 2 if a1mode == 'mid' else []) + ([("K", set())] * 4 if kvlate else [])
    p.raw(".p2align 6")
    p.e(f"L_top_{nm}:")
    p.fence()
    stamp(0)
    p.wv("A0")
    p.e(f"L_a0_{nm}:")
    ADD = lambda d, x, y: p.e(f"v_add_f32 v{d}, v{x}, v{y}")
    CVT = lambda d, x: p.e(f"v_cvt_pk_bf16_f32 v{d}, v{x}, v{x+1}")
    QP = lambda a: f"quad_perm:[{a}] row_mask:0xf bank_mask:0xf"
    c1, c2 = a4 + 1, a4 + 2
    refill0 = "\n".join(f"ds_read_b128 {vr(WST + 4*h, 4)}, v{vW} offset:{al.lds[al.lpairs[0] + (0,)] + 1024*h}" for h in range(2))
    A1a, A1b = A1.split("\n")
    S('q', 0, 0, a0)
    p.e(f"ds_write_b128 v{vL16}, {vr(a0, 4)} offset:{L_MEM + 1024*order[0]}", tag="wA0")
    S('k', 0, 0, a0); fh(0, 1, 0)
    if a1mode == 'late': p.e(A1a, tag="A1")
    if not dual: p.e(f"v_bitop3_b32 v{c1}, v{a0}, s{sT}, 1 bitop3:0x28")
    S('k', 0, 1, a0); fh(0, 1, 1)
    if a1mode == 'late': p.e(A1b, tag="A1")
    if dual:
        S('v', 0, 0, a0)
        p.wv("AB")
        p.e(f"v_bitop3_b32 v{c1}, v{a0}, v{a2}, s{sT} bitop3:0x7e")
        S('v', 0, 1, a0)
        p.e(f"v_and_b32 v{c1}, 1, v{c1}")
        S('q', 1, 0, a2)
        p.e(f"v_cmp_ne_u32 vcc, 0, v{c1}")
        S('q', 0, 1, a0); fh(1, 0, 0)
        S('q', 1, 1, a2)
        p.e(f"s_cbranch_vccnz L_ra0_{nm}")
        p.ool.append(f"L_ra0_{nm}:\n{A0}\n{AB}\n{cnt(0)}{BUD}{refill0}\ns_waitcnt vmcnt(0) lgkmcnt(0)\n{zero(AQ, 24)}\ns_nop 0\ns_branch L_a0_{nm}")
        stamp(1)
        p.wl("wA0"); p.e("s_barrier")
        rdA(2, a3)
        S('k', 1, 0, a2); fh(1, 0, 1)
        S('k', 1, 1, a2); rdA(3, a0)
        S('v', 1, 0, a2)
        S('v', 1, 1, a2)
    else:
        p.e(f"v_cmp_ne_u32 vcc, 0, v{c1}")
        S('v', 0, 0, a0)
        S('v', 0, 1, a0)
        p.e(f"s_cbranch_vccnz L_ra0_{nm}")
        p.ool.append(f"L_ra0_{nm}:\n{A0}\n{cnt(0)}{BUD}{refill0}\ns_waitcnt vmcnt(0) lgkmcnt(0)\n{zero(AQ, 24)}\ns_nop 0\ns_branch L_a0_{nm}")
        stamp(1)
        p.wl("wA0"); p.e("s_barrier")
        rdA(1, a2); rdA(2, a3)
        S('q', 0, 1, a0)
        rdA(3, a0)
        fh(1, 0, 0); fh(1, 0, 1)
        p.wl("A1")
        for m, T in (('q', 0), ('q', 1), ('k', 0), ('k', 1), ('v', 0), ('v', 1)): S(m, 1, T, a2)
    p.wl("A2")
    S('q', 2, 0, a3); fh(1, 1, 0)
    S('k', 2, 0, a3); fh(1, 1, 1)
    S('k', 2, 1, a3)
    p.wv("A1")
    wA1 = f"ds_write_b128 v{vL16}, {vr(a1, 4)} offset:{L_MEM + 1024*order[4]}"
    wA8 = f"ds_write_addtid_b32 v{a4} offset:{L_MEM + 8192 + 256*w}"
    ck = [f"v_bitop3_b32 v{c1}, v{a1}, s{sT}, 1 bitop3:0x28", f"v_bitop3_b32 v{c2}, v{a4}, s{sT}, v{vMask} bitop3:0x28", f"v_or_b32 v{c1}, v{c1}, v{c2}", f"v_cmp_ne_u32 vcc, 0, v{c1}"]
    p.e(wA1, tag="wA1")
    S('v', 2, 0, a3)
    p.e(wA8, tag="wA1")
    p.e(ck[0])
    S('v', 2, 1, a3)
    p.e(ck[1])
    S('q', 2, 1, a3); fh(2, 0, 0)
    p.e(ck[2])
    p.wl("A3")
    S('q', 3, 0, a0); fh(2, 0, 1)
    p.e(ck[3])
    S('q', 3, 1, a0)
    S('v', 3, 0, a0)
    p.e(f"s_cbranch_vccnz L_ra1_{nm}")
    p.e(f"L_a1_{nm}:")
    p.ool.append(f"L_ra1_{nm}:\n{A1}\n{cnt(1)}{BUD}s_waitcnt vmcnt(0)\n" + "\n".join(ck) + f"\ns_cbranch_vccnz L_ra1_{nm}\n{wA1}\n{wA8}\ns_waitcnt lgkmcnt(0)\ns_branch L_a1_{nm}")
    stamp(2)
    p.wl("wA1"); p.e("s_barrier")
    rdA(5, a2)
    pf = cfg.get('pf', True)
    S('k', 3, 0, a0); rdA(6, a3)
    if pf: p.e(f"v_lshlrev_b32 v{vTmp}, 2, v{vL16}")
    S('v', 3, 1, a0); rdA(8, a4)
    S('k', 3, 1, a0); rdA(7, a0)
    S('q', 4, 0, a1); fh(2, 1, 0)
    if pf: p.e(f"buffer_load_dword v{vTmp}, {WSR}, s{sPF} offen lds", tag="PF")
    p.wl("A5")
    S('q', 5, 0, a2); fh(2, 1, 1)
    S('q', 5, 1, a2)
    p.wl("A6"); S('q', 6, 0, a3)
    p.wl("A8"); S('q', 8, 0, a4)
    p.wl("A7"); S('q', 7, 0, a0)
    S('q', 4, 1, a1); fh(3, 0, 0)
    S('q', 6, 1, a3); fh(3, 0, 1)
    ADD(AQ, AQ, AQ + 2)
    S('q', 8, 1, a4)
    ADD(AQ + 1, AQ + 1, AQ + 3)
    S('q', 7, 1, a0)
    CVT(AQ + 2, AQ)
    S('k', 4, 0, a1)
    S('k', 6, 0, a3)
    ADD(AQ + 4, AQ + 4, AQ + 6); ADD(AQ + 5, AQ + 5, AQ + 7); CVT(AQ + 3, AQ + 4)
    S('k', 5, 0, a2)
    p.e(f"ds_write_b64 v{vL8}, {vr(AQ+2, 2)} offset:{L_Q + 512*w}", tag="wq")
    S('k', 8, 0, a4); fh(3, 1, 0)
    S('k', 7, 0, a0); fh(3, 1, 1)
    S('k', 4, 1, a1)
    trq = [f"ds_read_b64_tr_b16 {vr(AQ + 2*x, 2)}, v{vTR} offset:{L_Q + 512*x}" for x in range(4)]
    p.wl("wq"); p.e("s_barrier")
    p.e(trq[0], tag="Q0"); p.e(trq[1], tag="Q0")
    S('k', 6, 1, a3)
    p.e(trq[2], tag="Q1")
    ADD(AK, AK, AK + 2)
    S('k', 8, 1, a4)
    p.e(trq[3], tag="Q1")
    ADD(AK + 1, AK + 1, AK + 3)
    S('k', 5, 1, a2); fh(4, 1, 0)
    CVT(KD, AK)
    S('k', 7, 1, a0); fh(4, 1, 1)
    stamp(3)
    DX = KV
    p.wv("K")
    p.wl("Q0")
    p.e(f"v_mfma_f32_16x16x32_bf16 {vr(DX, 4)}, {vr(KV, 4)}, {vr(AQ, 4)}, 0")
    p.wl("Q1")
    p.e(f"v_mfma_f32_16x16x32_bf16 {vr(DX, 4)}, {vr(KV+4, 4)}, {vr(AQ+4, 4)}, {vr(DX, 4)}")
    ADD(AK + 4, AK + 4, AK + 6); ADD(AK + 5, AK + 5, AK + 7)
    CVT(KD + 1, AK + 4)
    p.e(f"ds_write_b64 v{vL8}, {vr(KD, 2)} offset:{L_K + 512*w}", tag="wk")
    S('v', 4, 0, a1)
    p.e(f"v_add_f32_dpp v{DX}, v{DX+2}, v{DX} {QP('2,3,0,1')}")
    p.e(f"v_add_f32_dpp v{DX+1}, v{DX+3}, v{DX+1} {QP('2,3,0,1')}")
    p.e(f"ds_write_b64 v{vXr}, {vr(DX, 2)} offset:{L_XS + 256*w}", tag="wx")
    S('v', 4, 1, a1)
    KA0, KA1 = a1, KV + 4
    trk = [f"ds_read_b64_tr_b16 {vr((KA0, KA1)[x >> 1] + 2*(x & 1), 2)}, v{vTR} offset:{L_K + 512*x}" for x in range(4)]
    X = a2
    XR = f"ds_read_b128 {vr(X, 4)}, v{vL16} offset:{L_XS}"
    if cfg.get('twobar', True):
        p.wl("wk"); p.e("s_barrier")
        p.e(trk[0], tag="K0"); p.e(trk[1], tag="K0")
        S('v', 5, 0, a2)
        p.e(trk[2], tag="K1"); p.e(trk[3], tag="K1")
        S('v', 5, 1, a2)
        p.wl("wx"); p.e("s_barrier")
        p.e(XR, tag="X")
        S('v', 7, 1, a0); fh(4, 0, 0)
    else:
        S('v', 5, 0, a2)
        S('v', 5, 1, a2)
        p.wl("wx"); p.e("s_barrier")
        p.e(trk[0], tag="K0"); p.e(trk[1], tag="K0")
        S('v', 7, 1, a0)
        p.e(trk[2], tag="K1"); p.e(trk[3], tag="K1")
        S('v', 6, 1, a3)
        p.e(XR, tag="X")
        S('v', 6, 0, a3); fh(4, 0, 0)
    DM = KA0
    p.wl("K0")
    p.e(f"v_mfma_f32_16x16x32_bf16 {vr(DM, 4)}, {vr(KA0, 4)}, {vr(AQ, 4)}, 0")
    fh(4, 0, 1)
    p.wl("K1")
    p.e(f"v_mfma_f32_16x16x32_bf16 {vr(DM, 4)}, {vr(KA1, 4)}, {vr(AQ+4, 4)}, {vr(DM, 4)}")
    stamp(4)
    MS_, MX, T1, T2 = AQ + 4, AQ + 5, AQ + 6, AQ + 7
    rest = [('v', 6, 1, a3), ('v', 8, 1, a4), ('v', 6, 0, a3), ('v', 8, 0, a4), ('v', 7, 0, a0)] if cfg.get('twobar', True) else [('v', 8, 1, a4), ('v', 8, 0, a4), ('v', 7, 0, a0)]
    def SR():
        if rest: S(*rest.pop(0))
    wkey = lambda i: ('o',) + al.wo_l[i]
    SR(); fillh(wkey(1), 1, 0)
    p.wl("X")
    p.e(f"v_max3_f32 v{MX}, v{X}, v{X+1}, v{X+2}")
    SR(); fillh(wkey(1), 1, 1)
    p.e(f"""
v_add_f32_dpp v{DM}, v{DM+2}, v{DM} {QP('2,3,0,1')}
v_add_f32_dpp v{DM+1}, v{DM+3}, v{DM+1} {QP('2,3,0,1')}
v_max_f32 v{MX}, v{MX}, v{X+3}
v_max_f32 v{MS_}, v{DM}, v{DM+1}
v_mul_f32 v{MS_}, s{sSC}, v{MS_}
v_max_f32_dpp v{MX}, v{MX}, v{MX} {QP('2,3,0,1')}
""")
    SR()
    M = AK; ONE = a3
    p.e(f"""
v_max_f32_dpp v{T1}, v{MS_}, v{MX} {QP('0,1,0,1')}
v_max_f32_dpp v{T2}, v{MS_}, v{MX} {QP('0,1,0,1')}
""")
    if rest: SR()
    else: p.e(f"v_mov_b64 {vr(ONE, 2)}, s[{sONE}:{sONE+1}]\nv_mov_b64 {vr(ONE+2, 2)}, s[{sONE}:{sONE+1}]")
    p.e(f"""
v_permlane16_swap_b32 v{T1}, v{T2}
v_max_f32 v{M}, v{T1}, v{T2}
v_max_f32 v{M+1}, v{T1}, v{T2}
""")
    late = bool(rest)
    if rest: SR()
    else: p.e(f"v_add_f32 v{AV+4}, v{AV+4}, v{AV+6}\nv_add_f32 v{AV+5}, v{AV+5}, v{AV+7}")
    p.e(f"""
v_permlane32_swap_b32 v{M}, v{M+1}
v_max_f32 v{M}, v{M}, v{M+1}
""")
    if late:
        for x in range(4): p.e(f"v_sub_f32 v{X+x}, v{X+x}, v{M}")
    else:
        p.e(f"""
v_pk_add_f32 {vr(X, 2)}, {vr(X, 2)}, {vr(M, 2)} op_sel_hi:[1,0] neg_lo:[0,1] neg_hi:[0,1]
v_pk_add_f32 {vr(X+2, 2)}, {vr(X+2, 2)}, {vr(M, 2)} op_sel_hi:[1,0] neg_lo:[0,1] neg_hi:[0,1]
""")
    p.e(f"""
v_exp_f32 v{X}, v{X}
v_exp_f32 v{X+1}, v{X+1}
v_exp_f32 v{X+2}, v{X+2}
v_exp_f32 v{X+3}, v{X+3}
v_cvt_pk_bf16_f32 v{AQ}, v{X}, v{X+1}
v_cvt_pk_bf16_f32 v{AQ+1}, v{X+2}, v{X+3}
v_pk_add_f32 {vr(AV, 2)}, {vr(AV, 2)}, {vr(AV+2, 2)}
v_mov_b32_dpp v{AQ+2}, v{AQ} {QP('2,3,0,1')}
v_mov_b32_dpp v{AQ+3}, v{AQ+1} {QP('2,3,0,1')}
v_pk_fma_f32 {vr(DM, 2)}, {vr(DM, 2)}, s[{sSC}:{sSC+1}], {vr(M, 2)} op_sel_hi:[1,1,0] neg_lo:[0,0,1] neg_hi:[0,0,1]
v_cvt_pk_bf16_f32 v{KD+2}, v{AV}, v{AV+1}
""")
    if late: p.e(f"v_pk_add_f32 {vr(AV+4, 2)}, {vr(AV+4, 2)}, {vr(AV+6, 2)}")
    stamp(5)
    DL = a2
    p.e(f"v_mfma_f32_16x16x32_bf16 {vr(AV, 4)}, {vr(VV, 4)}, {vr(AQ, 4)}, 0")
    if late: p.e(f"v_mov_b64 {vr(ONE, 2)}, s[{sONE}:{sONE+1}]\nv_mov_b64 {vr(ONE+2, 2)}, s[{sONE}:{sONE+1}]")
    p.e(f"""
v_cvt_pk_bf16_f32 v{KD+3}, v{AV+4}, v{AV+5}
v_exp_f32 v{DM}, v{DM}
v_mfma_f32_16x16x32_bf16 {vr(DL, 4)}, {vr(ONE, 4)}, {vr(AQ, 4)}, 0
v_exp_f32 v{DM+1}, v{DM+1}
v_mov_b32 v{AQ+5}, 0
v_cvt_pk_bf16_f32 v{AQ+4}, v{DM}, v{DM+1}
v_mfma_f32_16x16x32_bf16 {vr(AV+4, 4)}, {vr(VV+4, 4)}, {vr(AQ, 4)}, 0
v_cvt_pk_bf16_f32 v{AQ+7}, v{DM}, v{DM+1}
v_mov_b32 v{AQ+6}, 0
v_mfma_f32_16x16x16_bf16 {vr(DL, 4)}, {vr(ONE, 2)}, {vr(AQ+4, 2)}, {vr(DL, 4)}
""")
    fillh(wkey(0), 0, 0)
    p.e(f"v_mfma_f32_16x16x16_bf16 {vr(AV, 4)}, {vr(KD+2, 2)}, {vr(AQ+4, 2)}, {vr(AV, 4)}")
    fillh(wkey(0), 0, 1)
    p.e(f"v_mfma_f32_16x16x16_bf16 {vr(AV+4, 4)}, {vr(KD+2, 2)}, {vr(AQ+6, 2)}, {vr(AV+4, 4)}")
    p.e(f"v_rcp_f32 v{DL}, v{DL}")
    p.e(zero(a4, 4))
    for j in range(4): p.e(f"v_mul_f32 v{AV+j}, v{AV+j}, v{DL}")
    p.e(f"v_pk_mul_f32 {vr(AV+4, 2)}, {vr(AV+4, 2)}, {vr(DL, 2)} op_sel_hi:[1,0]")
    p.e(f"v_pk_mul_f32 {vr(AV+6, 2)}, {vr(AV+6, 2)}, {vr(DL, 2)} op_sel_hi:[1,0]")
    for j in range(4): CVT(AV + j, AV + 2*j)
    OA = [a0, a1, a2, a3]
    p.e(f"ds_write_b128 v{vL16}, {vr(AV, 4)} offset:{L_MEM + 1024*(4+w)}", tag="wo")
    p.e(f"ds_read_b128 {vr(OA[0], 4)}, v{vOr} offset:{L_MEM + 1024*(4+w)}", tag="O0")
    stamp(6)
    pubo = cfg.get('pubo', True)
    if pubo: p.e(PUB, tag="pub")
    fillh(wkey(2), 2, 0); fillh(wkey(2), 2, 1)
    FLAG = f"s_mov_b64 exec, 1\nbuffer_store_dword v{AK}, v{vL16}, {WSR}, s{sFL} offen sc0 sc1\ns_mov_b64 exec, -1"
    if cfg.get('fused') and w == 0: p.e(f"v_mov_b32 v{AK}, s{sS}"); p.e(FLAG, tag="flag")
    p.e(f"s_cmp_eq_u32 s{sS}, s{sEv}")
    p.e(zero(AQ, 4))
    p.e(f"s_cbranch_scc1 L_ev_{nm}")
    p.e(f"L_evb_{nm}:")
    p.ool.append(f"L_ev_{nm}:\ns_cmp_eq_u32 s{sS}, 63\ns_cbranch_scc1 L_done_{nm}\ns_mov_b32 s{sEv}, 63\n" + kvwait(nm, 0xff00, 0x400, AK+1, AK+6) + f"s_branch L_evb_{nm}")
    p.wl("wo"); p.e("s_barrier")
    for j in range(1, 4):
        p.e(f"ds_read_b128 {vr(OA[j], 4)}, v{vOr} offset:{L_MEM + 1024*(4 + (w+j) % 4)}", tag=f"O{j}")
    DACC = [a4, AQ, AQ + 4, AV + 4, AV]
    pend = []
    fq = []; nxt = [3]
    extra = zero(AQ + 4, 4).split("\n") + zero(AV + 4, 4).split("\n") + (zero(AV, 4).split("\n") if al.ndt == 5 else [])
    for i, (k, j) in enumerate(al.wo_order):
        key = ('o', k, j)
        p.wl(f"O{j}")
        if key in al.lds:
            sl = al.wo_l.index((k, j)) % 3
            p.wl(f"W{sl}")
        else: sl = None
        p.e(f"v_smfmac_f32_16x16x64_bf16 {vr(DACC[k], 4)}, {vr(OA[j], 4)}, {vr(wreg(key, sl), 8)}, v{vIdx} abid:1")
        if sl is not None and nxt[0] < len(al.wo_l):
            fq += [(wkey(nxt[0]), sl, 0), (wkey(nxt[0]), sl, 1)]; nxt[0] += 1
        if fq: fillh(*fq.pop(0))
        if pend and pend[0][0] <= i:
            _, ops = pend.pop(0)
            for o, tg in ops: p.e(o, tag=tg)
        elif extra: p.e(extra.pop(0))
        if j == 3:
            d = DACC[k]
            c0 = (f"v_cvt_pk_bf16_f32 v{d}, v{d}, v{d+1}", None)
            c1 = (f"v_cvt_pk_bf16_f32 v{d+1}, v{d+2}, v{d+3}", None)
            c2 = (f"v_bfi_b32 v{d}, 1, s{sT}, v{d}", None)
            c3 = (f"buffer_store_dwordx2 {vr(d, 2)}, v{vST}, {WSR}, s{sX[k]} offen{ST}", f"st{k}")
            if k <= cfg.get('wo_burst', 1): pend.append((i + 2, [c0, c1, c2, c3]))
            else: pend += [(i + 2, [c0]), (i + 3, [c1]), (i + 4, [c2, c3])]
        if i == 5: stamp(7)
    for _, ops in pend:
        for o, tg in ops: p.e(o, tag=tg)
    stamp(8)
    RD = a3
    p.e(f"s_add_u32 s{sS}, s{sS}, 1\ns_add_u32 s{sKV}, s{sKV}, {0 if cfg.get('nokv') else 524288}\ns_add_u32 s{sPF}, s{sPF}, 524288")
    RL = "\n".join(f"buffer_load_dwordx4 {vr(WST+4*i, 4)}, v{vRD}, {WSR}, s{sRU} offen offset:{1024*i}{LD}" for i in range(4))
    def delay(c):
        while c > 0:
            k = min(c, 16); p.e(f"s_nop {k-1}"); c -= k
    if red:
        p.e(f"v_and_b32 v{vTmp}, 0x70, v{vL16}")
        p.e(f"ds_read_b128 {vr(SEL, 4)}, v{vTmp} offset:{L_SEL}", tag="SEL")
        p.e(zero(AQ, 10)); p.e(zero(AK + 6, 10))
        wt = cfg.get('rwait', {2: 1, 3: 3, 1: 4})[w]
        if wt is not None: p.wv(f"st{wt}")
        delay(cfg.get('rdelay', {2: 0, 3: 0, 1: 0})[w])
        for i, x in enumerate(RL.split("\n")): p.e(x, tag=f"R{i}")
        stamp(9)
        p.wl("SEL")
        p.wv("R0")
        p.e(f"L_r_{nm}:")
        p.e(f"v_mfma_f32_16x16x32_bf16 {vr(RD, 4)}, {vr(WST, 4)}, {vr(SEL, 4)}, 0")
        p.wv("R1")
        p.e(f"v_mfma_f32_16x16x32_bf16 {vr(RD, 4)}, {vr(WST+4, 4)}, {vr(SEL, 4)}, {vr(RD, 4)}")
        p.e(f"v_bitop3_b32 v{a2}, v{WST}, v{WST+4}, s{sT} bitop3:0x7e")
        p.wv("R2")
        p.e(f"v_mfma_f32_16x16x32_bf16 {vr(RD, 4)}, {vr(WST+8, 4)}, {vr(SEL, 4)}, {vr(RD, 4)}")
        p.wv("R3")
        p.e(f"v_mfma_f32_16x16x32_bf16 {vr(RD, 4)}, {vr(WST+12, 4)}, {vr(SEL, 4)}, {vr(RD, 4)}")
        p.e(f"""
v_bitop3_b32 v{a2+1}, v{WST+8}, v{WST+12}, s{sT} bitop3:0x7e
v_bitop3_b32 v{a2}, v{a2}, v{a2+1}, 1 bitop3:0xa8
v_cmp_ne_u32 vcc, 0, v{a2}
s_cbranch_vccnz L_rr_{nm}
""")
        p.ool.append(f"L_rr_{nm}:\n{RL}\n{cnt(2)}{BUD}s_waitcnt vmcnt(0)\ns_branch L_r_{nm}")
        fh(0, 0, 0); fh(0, 0, 1)
        p.e(f"""
v_pk_add_f32 {vr(RD, 2)}, {vr(RD, 2)}, {vr(RD+2, 2)}
v_cvt_pk_bf16_f32 v{a2}, v{RD}, v{RD+1}
v_bfi_b32 v{a2}, v{vMask}, s{sTn}, v{a2}
""")
        p.e(f"buffer_store_dword v{a2}, v{vMS}, {WSR}, 0 offen{ST}", tag="ms")
        stamp(10)
        if not kvlate: loadK(sKV)
    else:
        p.e(zero(AQ, 10)); p.e(zero(AK + 6, 10))
        fh(0, 0, 0); fh(0, 0, 1)
        p.wv(f"st{cfg.get('kvwait', 4)}")
        loadK(sKV)
        stamp(9); stamp(10)
    p.e(f"s_not_b32 s{sT}, s{sT}\ns_not_b32 s{sTn}, s{sTn}\nv_lshrrev_b32 v{vTmp}, 2, v{vL16}")
    if cfg.get('abar', 'w2ack') == 'w2ack' and w == 2: p.wv("ms")
    delay(cfg.get('adelay', {0: 0, 1: 0, 2: 0, 3: 0})[w])
    if cfg.get('abar', 'w2ack'): p.e("s_barrier")
    p.e(A0, tag="A0")
    if dual: p.e(AB, tag="AB")
    if a1mode == 'early': p.e(A1, tag="A1")
    if not pubo: p.e(PUB, tag="pub")
    p.e(f"s_add_u32 s{sKM}, s{sKM}, 131072")
    p.e(zero(KD, 4))
    if a1mode == 'mid':
        delay(cfg.get('a1delay', 10))
        p.e(A1, tag="A1")
    if kvlate: loadK(sKV)
    if stamps:
        stamp(11)
        if sel is None or sel: p.e("s_waitcnt lgkmcnt(0)")
        for i in range(1, 12):
            if sel is None or i in sel: p.e(f"s_sub_u32 s{sA}, s{sST+2*i}, s{sST}\ns_add_u32 s{84+i}, s{84+i}, s{sA}")
    if stamps:
        p.e(f"s_cmp_eq_u32 s{sS}, 3\ns_cbranch_scc1 L_rst_{nm}")
        p.ool.append(f"L_rst_{nm}:\ns_memtime s[60:61]\ns_waitcnt lgkmcnt(0)\ns_sub_u32 s59, s60, s84\ns_mov_b32 s84, s60\n" + "".join(f"s_mov_b32 s{i}, 0\n" for i in range(85, 99)) + f"s_branch L_top_{nm}")
    p.e(f"s_branch L_top_{nm}")
    p.e(f"L_done_{nm}:")
    if not pubo: p.e(PUB)
    if cfg.get('fused'):
        p.e("s_waitcnt vmcnt(0)\ns_barrier")
        if w == 0: p.e(f"v_mov_b32 v{AK}, 64"); p.e(FLAG)
    if stamps:
        p.e("s_memtime s[60:61]\ns_waitcnt lgkmcnt(0)\ns_sub_u32 s84, s60, s84")
        p.e(f"s_lshl_b32 s{sA}, s{sH}, 8\ns_add_u32 s{sA}, s{sA}, {WS_STMP + 64*w}\ns_waitcnt vmcnt(0) lgkmcnt(0)\nv_mov_b32 v{vL16}, 0")
        p.e("s_lshr_b32 s59, s59, 4\ns_lshl_b32 s59, s59, 16\ns_or_b32 s99, s99, s59")
        for i in range(16): p.e(f"v_mov_b32 v{20+i}, s{84+i}")
        for i in range(4): p.e(f"buffer_store_dwordx4 v[{20+4*i}:{23+4*i}], v{vL16}, {WSR}, s{sA} offen offset:{16*i}")
    p.e("s_waitcnt vmcnt(0) lgkmcnt(0)\ns_endpgm")

def chain_body(cfg):
    out = []
    p = Prog()
    if cfg.get('stamps'): p.e("s_memrealtime s[98:99]\ns_waitcnt lgkmcnt(0)\ns_mov_b32 s59, s98")
    setup_common(p)
    p.e(f"""
v_lshrrev_b32 v1, 6, v0
v_readfirstlane_b32 s{sW}, v1
s_cmp_eq_u32 s{sW}, 0
s_cbranch_scc1 L_pro_w0
s_cmp_eq_u32 s{sW}, 2
s_cbranch_scc1 L_pro_w2r
s_cmp_eq_u32 s{sW}, 3
s_cbranch_scc1 L_pro_w3r
s_cmp_lt_u32 s{sH}, 8
s_cbranch_scc1 L_pro_w1r
s_branch L_pro_w1
L_exit:
s_endpgm
""")
    out.append(p.text())
    for w, red in ((0, False), (1, False), (1, True), (2, True), (3, True)):
        nm = f"w{w}{'r' if red else ''}"
        p = Prog()
        p.ldsq.append(('smem', set()))
        p.e(f"L_pro_{nm}:")
        prologue(p, w, red, cfg)
        n0 = p.nops_added
        loop(p, w, red, True, cfg)
        if cfg.get('verbose'): print(nm, "nops in loop", p.nops_added - n0)
        if cfg.get('trace') is not None:
            nv = len(cfg['trace'])
            txt = p.text(); i0 = txt.index(f"s_cbranch_scc0 L_slow_{nm}\n") + len(f"s_cbranch_scc0 L_slow_{nm}\n")
            pro, body = txt[:i0], txt[i0:]
            o = pro.replace("L_exit", f"L_exit_{nm}") + f"L_slow_{nm}:\ns_and_b32 s{sA}, s{sH}, {nv-1}\n"
            for v in range(nv): o += f"s_cmp_eq_u32 s{sA}, {v}\ns_cbranch_scc1 L_var{v}_{nm}\n"
            o += "s_endpgm\n"
            for v in range(nv):
                ls = body.split("\n")
                top = ls.index(f"L_top_{nm}f:")
                if cfg.get('solo'):
                    dn = ls.index(f"L_done_{nm}f:")
                    ls = ls[:top] + [x for x in ls[top:dn] if not (x.startswith('buffer_') and cfg['solo'] in x) ] + ls[dn:]
                cfg.setdefault('listing', {})[nm] = ls[top:]
                if cfg.get('refbar'):
                    bars = [x for x in range(top, len(ls)) if ls[x] == 's_barrier']
                    ls.insert(bars[cfg['refbar'] - 1] + 1, ls[top + 1]); del ls[top + 1]
                    cfg['listing'][nm] = ls[top:]
                for k, pos in sorted(enumerate(cfg['trace'][v]), key=lambda x: -x[1]):
                    ls.insert(top + pos, f"s_memtime s[{sST+2*k+2}:{sST+2*k+3}]")
                o += f"L_var{v}_{nm}:\n" + re.sub(rf"(L_\w+_{nm}f)", rf"\1_{v}", "\n".join(ls)).replace("L_exit", f"L_exit_{nm}")
            out.append(o + f"L_exit_{nm}:\ns_endpgm\n")
            continue
        out.append(p.text())
        p = Prog()
        p.e(f"L_slow_{nm}:")
        loop(p, w, red, False, cfg)
        out.append(p.text())
    t = "".join(out)
    if cfg.get('nocheck'): t = re.sub(r"s_cbranch_vccnz L_r\w+", "s_nop 0", t)
    if cfg.get('nosm'): t = re.sub(r"v_smfmac[^\n]*", "s_nop 0", t)
    if cfg.get('nobar'): t = re.sub(r"s_barrier", "s_nop 0", t)
    return t

if __name__ == "__main__":
    t = chain_body({'verbose': True})
    open('chain_body.s', 'w').write('.amdgcn_target "amdgcn-amd-amdhsa--gfx950"\n.text\n' + t)
```

```python
from asmgen import *
from chain import WS_KVM, WS_KVX, WS_BYTES, WS_FLG, SCALE
import math, struct
WS_QX  = 0x3000000
WS_O   = 0x4000000
WS_OA  = 0x5000000
WS_OMG = 0x5300000
F_KVM = WS_FLG
F_O = WS_FLG + 4096
f2u = lambda x: struct.unpack('<I', struct.pack('<f', x))[0]
NEG = f2u(-1e30)
SC = " sc0 sc1"
S_WS, S_X, S_W0, S_W1, S_W2, S_DBG, S_OUT, S_G = 4, 8, 12, 16, 20, 24, 28, 64
sP0, sP1, sW, sI, sBud = 32, 33, 34, 35, 36
sA, sB, sC, sD, sE, sF = 37, 38, 39, 40, 41, 42
sXs, sXm = 43, 44
sSCp = 46
sP2, sP3 = 48, 49
def R(b): return f"s[{b}:{b+3}]"
def srd(p, b, slot, n):
    p.e(f"s_load_dwordx2 s[{b}:{b+1}], s[0:1], {slot}\ns_mov_b32 s{b+2}, {n}\ns_mov_b32 s{b+3}, 0x20000")
MF = "v_mfma_f32_16x16x32_bf16"
XBUF = 36864

def poll(p, name, srdb, vaddr, soff, off, vt, test, sleep=4):
    p.e(f"""
s_branch {name}_in
{name}:
s_sleep {sleep}
{name}_in:
buffer_load_dword v{vt}, v{vaddr}, {R(srdb)}, {soff} offen offset:{off}{SC}
s_sub_u32 s{sBud}, s{sBud}, 1
s_cbranch_scc1 L_exit_w
s_waitcnt vmcnt(0)
{test}
s_cbranch_scc0 {name}
""")

def lanes(p, l, n, g):
    p.e(f"v_and_b32 v{l}, 63, v0\nv_and_b32 v{n}, 15, v0\nv_bfe_u32 v{g}, v0, 4, 2\nv_lshrrev_b32 v1, 6, v0\nv_readfirstlane_b32 s{sW}, v1")

def x_addr(p, vXg, vXr, l, n, g, t0, t1):
    p.e(f"""
v_lshrrev_b32 v{t0}, 2, v{l}
v_mul_u32_u24 v{vXg}, 1152, v{t0}
v_lshrrev_b32 v{t0}, 5, v{l}
v_lshlrev_b32 v{t0}, 1, v{t0}
v_and_b32 v{t1}, 3, v{l}
v_xor_b32 v{t0}, v{t0}, v{t1}
v_lshl_add_u32 v{vXg}, v{t0}, 4, v{vXg}
v_lshrrev_b32 v{t0}, 3, v{n}
v_lshlrev_b32 v{t0}, 1, v{t0}
v_xor_b32 v{t0}, v{t0}, v{g}
v_lshlrev_b32 v{t0}, 4, v{t0}
v_lshl_add_u32 v{vXr}, v{n}, 6, v{t0}
""")

def x_dma(j, vXg):
    return f"s_add_u32 s{sA}, s{sXs}, {128*j}\ns_add_u32 m0, s{sXm}, {4096*j}\ns_nop 0\nbuffer_load_dwordx4 v{vXg}, {R(S_X)}, s{sA} offen lds"

def load_weights(p, pairs, rowstride, vTr, sRing, nslot, wreg, mid=None):
    items = [(pi, kk) for pi in range(len(pairs)) for kk in range(9)]
    D = nslot - 1
    def issue(i):
        pi, kk = items[i]; b, va, so = pairs[pi]
        for d in range(4):
            p.e(f"s_add_u32 s{sA}, s{so}, {(64*kk + 16*d) * rowstride}\ns_add_u32 m0, s{sRing}, {4096*(i % nslot) + 1024*d}")
            p.e(f"buffer_load_dwordx4 v{va}, {R(b)}, s{sA} offen lds", tag=f"d{i}")
    for i in range(D): issue(i)
    if mid: mid()
    for i, (pi, kk) in enumerate(items):
        p.wv(f"d{i}")
        for T in range(2):
            for k2 in range(2):
                for q in range(2):
                    p.e(f"ds_read_b64_tr_b16 {vr(wreg(2*pi + T, 2*kk + k2) + 2*q, 2)}, v{vTr} offset:{4096*(i % nslot) + 2048*k2 + 256*q + 32*T}", tag="tr")
        p.e("s_waitcnt lgkmcnt(0)")
        if i + D < len(items): issue(i + D)

def gemm_block(p, NT, wreg, accreg, XS, vXr, vXg, w_is_a):
    def rd(ks):
        for tt in range(2): p.e(f"ds_read_b128 {vr(XS + 8*(ks & 1) + 4*tt, 4)}, v{vXr} offset:{(2*ks + tt) * 1024}", tag=f"x{ks}")
    rd(0)
    for ks in range(18):
        if ks + 1 < 18: rd(ks + 1)
        p.wl(f"x{ks}")
        for ti in range(NT):
            for tt in range(2):
                a = accreg(ti, tt); x = vr(XS + 8*(ks & 1) + 4*tt, 4); wv = vr(wreg(ti, ks), 4)
                A, B = (wv, x) if w_is_a(ti) else (x, wv)
                p.e(f"{MF} {vr(a, 4)}, {A}, {B}, {vr(a, 4) if ks else 0}")
            if ti == 1 and ks < 9: p.e(x_dma(ks, vXg), tag="xd")

def tr_addr(p, v, n, g, t0, rowbytes, gmul):
    p.e(f"""
v_lshrrev_b32 v{t0}, 2, v{n}
v_lshl_add_u32 v{t0}, v{g}, {gmul.bit_length()-1}, v{t0}
v_mul_u32_u24 v{v}, {rowbytes}, v{t0}
v_and_b32 v{t0}, 3, v{n}
v_lshl_add_u32 v{v}, v{t0}, 3, v{v}
""")

def role_q(cfg):
    p = Prog()
    sH, sR = sP0, sP1
    vL16, vXg, vXr, vKst, vGq, vGv, vTr, vZ, l, n, g, t0, t1 = range(1, 14)
    ACC, XS, WB = 16, 64, 80
    wreg = lambda ti, ks: WB + 72*ti + 4*ks
    acc = lambda ti, tt: ACC + 8*ti + 4*tt
    p.e("L_role_q:")
    srd(p, S_WS, 104, WS_BYTES); srd(p, S_X, 0, 2359296); srd(p, S_W0, 40, 4718592); srd(p, S_W1, 48, 4718592); srd(p, S_W2, 56, 4718592); srd(p, S_DBG, 96, 256)
    lanes(p, l, n, g)
    x_addr(p, vXg, vXr, l, n, g, t0, t1)
    tr_addr(p, vTr, n, g, t0, 64, 8)
    p.e(f"""
v_lshlrev_b32 v{vL16}, 4, v{l}
s_mul_i32 s{sB}, s{sW}, 20480
s_add_u32 s{sB}, s{sB}, {2*XBUF}
v_add_u32 v{vTr}, s{sB}, v{vTr}
v_lshrrev_b32 v{t0}, 2, v{l}
v_lshlrev_b32 v{t0}, 13, v{t0}
v_and_b32 v{t1}, 3, v{l}
v_lshl_add_u32 v{vGv}, v{t1}, 4, v{t0}
v_and_b32 v{t1}, 1, v{l}
v_lshl_add_u32 v{vGq}, v{t1}, 4, v{t0}
v_bfe_u32 v{t1}, v{l}, 1, 1
v_lshl_add_u32 v{vGq}, v{t1}, 6, v{vGq}
s_lshl_b32 s{sC}, s{sH}, 8
s_lshl_b32 s{sD}, s{sW}, 6
s_add_u32 s{sD}, s{sD}, s{sC}
s_lshr_b32 s{sE}, s{sW}, 1
s_lshl_b32 s{sE}, s{sE}, 7
s_add_u32 s{sC}, s{sC}, s{sE}
s_and_b32 s{sE}, s{sW}, 1
s_lshl_b32 s{sE}, s{sE}, 5
s_add_u32 s{sC}, s{sC}, s{sE}
s_lshl_b32 s{sXs}, s{sR}, 1
s_and_b32 s{sE}, s{sW}, 1
s_add_u32 s{sXs}, s{sXs}, s{sE}
s_mul_i32 s{sXs}, s{sXs}, 18432
s_lshr_b32 s{sE}, s{sW}, 1
s_lshl_b32 s{sE}, s{sE}, 6
s_add_u32 s{sXs}, s{sXs}, s{sE}
s_lshl_b32 s{sXm}, s{sW}, 10
s_mov_b32 s{sBud}, {cfg.get('budget', 400000)}
s_mov_b32 s{sSCp}, {SCALE:#x}
s_mov_b32 s{sSCp+1}, {SCALE:#x}
v_mov_b32 v{vZ}, 0
; vKst = (n>>2)*4096 + g*256 + (n&3)*16
v_lshrrev_b32 v{t0}, 2, v{n}
v_lshlrev_b32 v{vKst}, 12, v{t0}
v_lshl_add_u32 v{vKst}, v{g}, 8, v{vKst}
v_and_b32 v{t0}, 3, v{n}
v_lshl_add_u32 v{vKst}, v{t0}, 4, v{vKst}
s_waitcnt lgkmcnt(0)
""")
    def mid():
        for j in range(9): p.e(x_dma(j, vXg), tag="xd")
    load_weights(p, [(S_W0, vGq, sC), (S_W1, vGq, sC), (S_W2, vGv, sD)], 8192, vTr, sB, 5, wreg, mid)
    sQ, sK, sV = sC, sD, sE
    p.e(f"""
s_lshl_b32 s{sF}, s{sR}, 5
s_add_u32 s{sF}, s{sF}, s{sH}
s_lshl_b32 s{sQ}, s{sF}, 13
s_lshl_b32 s{sA}, s{sW}, 11
s_add_u32 s{sQ}, s{sQ}, s{sA}
s_add_u32 s{sQ}, s{sQ}, {WS_QX}
s_lshl_b32 s{sK}, s{sF}, 14
s_add_u32 s{sK}, s{sK}, {WS_KVX}
s_lshl_b32 s{sA}, s{sW}, 12
s_add_u32 s{sV}, s{sK}, s{sA}
s_lshr_b32 s{sA}, s{sW}, 1
s_lshl_b32 s{sA}, s{sA}, 10
s_add_u32 s{sK}, s{sK}, s{sA}
s_and_b32 s{sA}, s{sW}, 1
s_lshl_b32 s{sA}, s{sA}, 6
s_add_u32 s{sK}, s{sK}, s{sA}
s_mov_b32 s{sI}, 0
s_mov_b32 s{sP2}, {XBUF}
s_waitcnt vmcnt(0)
""")
    p.raw(".p2align 6")
    p.e("L_q_loop:")
    p.fence(); p.vmq = [("xd", set())] + [("st", set())] * 6
    p.wv("xd")
    p.e(f"""
s_barrier
s_add_u32 s{sXs}, s{sXs}, {4*XBUF}
s_add_u32 s{sXm}, s{sXm}, s{sP2}
""")
    gemm_block(p, 6, wreg, acc, XS, vXr, vXg, lambda ti: ti < 4)
    p.e(f"v_add_u32 v{vXr}, s{sP2}, v{vXr}\ns_sub_u32 s{sP2}, 0, s{sP2}")
    def pack(d, a, b):
        for i, x in enumerate((a, a + 2, b, b + 2)): p.e(f"v_cvt_pk_bf16_f32 v{d+i}, v{x}, v{x+1}")
    for tt in range(2):
        pack(XS + 4*tt, acc(0, tt), acc(1, tt))
        p.e(f"buffer_store_dwordx4 {vr(XS + 4*tt, 4)}, v{vL16}, {R(S_WS)}, s{sQ} offen offset:{1024*tt}", tag="st")
    for x in range(acc(2, 0), acc(4, 0), 2): p.e(f"v_pk_mul_f32 {vr(x, 2)}, {vr(x, 2)}, s[{sSCp}:{sSCp+1}]")
    for tt in range(2):
        pack(XS + 8 + 4*tt, acc(2, tt), acc(3, tt))
        p.e(f"buffer_store_dwordx4 {vr(XS + 8 + 4*tt, 4)}, v{vKst}, {R(S_WS)}, s{sK} offen offset:{128*tt}{SC}", tag="st")
    for T in range(2):
        pack(acc(0, T), acc(4 + T, 0), acc(4 + T, 1))
        p.e(f"buffer_store_dwordx4 {vr(acc(0, T), 4)}, v{vL16}, {R(S_WS)}, s{sV} offen offset:{2048 + 1024*T}{SC}", tag="st")
    CK = cfg.get('kv_ck', 6)
    p.e(f"""
s_add_u32 s{sQ}, s{sQ}, {4*32*8192}
s_add_u32 s{sK}, s{sK}, {4*32*16384}
s_add_u32 s{sV}, s{sV}, {4*32*16384}
s_add_u32 s{sI}, s{sI}, 1
s_cmp_eq_u32 s{sI}, {CK}
s_cbranch_scc1 L_q_sig
s_cmp_lt_u32 s{sI}, 16
s_cbranch_scc1 L_q_loop
L_q_sig:
s_waitcnt vmcnt(0)
s_barrier
s_cmp_lg_u32 s{sW}, 0
s_cbranch_scc1 L_q_sig2
s_cmp_eq_u32 s{sI}, {CK}
s_cselect_b32 s{sA}, 1, 256
v_mov_b32 v{t0}, s{sA}
s_lshl_b32 s{sA}, s{sH}, 2
s_mov_b64 exec, 1
buffer_atomic_add v{t0}, v{vZ}, {R(S_DBG)}, s{sA} offen offset:128 sc1
s_mov_b64 exec, -1
s_waitcnt vmcnt(0)
L_q_sig2:
s_cmp_lt_u32 s{sI}, 16
s_cbranch_scc1 L_q_loop
""")
    p.fence(); p.vmq = []
    Q, K, V, BI, ONE, DX, DM, XK, VM, P, PM, O, DL, M, vTk = 16, 32, 64, 80, 88, 92, 100, 108, 116, 120, 124, 128, 144, 148, 14
    poll(p, "L_q_init", S_DBG, vZ, 0, 0, t0, f"v_readfirstlane_b32 s{sA}, v{t0}\ns_and_b32 s{sA}, s{sA}, 0xff\ns_cmp_eq_u32 s{sA}, 32")
    sQ0, sQ1, sKx, sV0, sV1, sKM, sO, sFK, sFO, sS, sLb = range(50, 61)
    p.e(f"""
s_lshr_b32 s{sA}, s{sW}, 1
s_and_b32 s{sB}, s{sW}, 1
s_lshl_b32 s{sQ0}, s{sF}, 13
s_lshl_b32 s{sC}, s{sA}, 10
s_add_u32 s{sQ0}, s{sQ0}, s{sC}
s_add_u32 s{sQ0}, s{sQ0}, {WS_QX}
s_lshl_b32 s{sKx}, s{sF}, 14
s_add_u32 s{sKx}, s{sKx}, {WS_KVX}
s_lshl_b32 s{sC}, s{sB}, 13
s_add_u32 s{sV0}, s{sKx}, s{sC}
s_lshl_b32 s{sKM}, s{sF}, 12
s_lshl_b32 s{sC}, s{sW}, 10
s_add_u32 s{sKM}, s{sKM}, s{sC}
s_add_u32 s{sKM}, s{sKM}, {WS_KVM}
s_mov_b32 s{sLb}, s{sC}
s_lshl_b32 s{sC}, s{sR}, 1
s_add_u32 s{sC}, s{sC}, s{sA}
s_lshl_b32 s{sO}, s{sC}, 6
s_lshl_b32 s{sD}, s{sH}, 1
s_add_u32 s{sD}, s{sD}, s{sB}
s_add_u32 s{sO}, s{sO}, s{sD}
s_lshl_b32 s{sFO}, s{sO}, 2
s_add_u32 s{sFO}, s{sFO}, {F_O}
s_lshl_b32 s{sO}, s{sO}, 11
s_add_u32 s{sO}, s{sO}, {WS_O}
s_lshl_b32 s{sFK}, s{sH}, 7
s_add_u32 s{sFK}, s{sFK}, {F_KVM}
s_mov_b32 s{sS}, s{sR}
s_mov_b32 s{sI}, 0
s_lshl_b32 s{sA}, s{sA}, 4
v_add_u32 v{t0}, s{sA}, v{n}
v_lshlrev_b32 v{t1}, 2, v{g}
v_sub_u32 v{t0}, v{t0}, v{t1}
v_mov_b32 v{t1}, {NEG:#x}
""")
    for kt in range(2):
        for r in range(4): p.e(f"v_cmp_le_i32 vcc, {16*kt + r}, v{t0}\nv_cndmask_b32 v{BI + 4*kt + r}, v{t1}, v{vZ}, vcc")
    for i in range(4): p.e(f"v_mov_b32 v{ONE+i}, 0x3f803f80")
    p.e(f"""
v_mov_b32 v{PM+1}, 0
v_mov_b32 v{PM+2}, 0
v_lshrrev_b32 v{t0}, 2, v{l}
v_and_b32 v{vTk}, 3, v{n}
v_lshl_add_u32 v{vTk}, v{vTk}, 4, v{t0}
v_lshlrev_b32 v{vTk}, 4, v{vTk}
s_lshl_b32 s{sB}, s{sB}, 11
v_add_u32 v{vXr}, s{sB}, v{vL16}
""")
    p.e("L_at_loop:")
    p.fence()
    p.e(f"s_add_u32 s{sQ1}, s{sQ0}, 4096\ns_add_u32 s{sV1}, s{sV0}, 4096")
    for uT in range(4):
        p.e(f"buffer_load_dwordx4 {vr(Q + 4*uT, 4)}, v{vL16}, {R(S_WS)}, s{sQ0 if uT < 2 else sQ1} offen offset:{2048*(uT & 1)}", tag=f"Q{uT}")
        for kt in range(2):
            p.e(f"buffer_load_dwordx4 {vr(K + 16*kt + 4*uT, 4)}, v{vKst}, {R(S_WS)}, s{sKx} offen offset:{1024*(uT >> 1) + 64*(uT & 1) + 128*kt} sc1", tag=f"Q{uT}")
    for E in range(4):
        p.e(f"buffer_load_dwordx4 {vr(V + 4*E, 4)}, v{vL16}, {R(S_WS)}, s{sV0 if E < 2 else sV1} offen offset:{2048 + 1024*(E & 1)} sc1", tag="V")
    for uT in range(4):
        p.wv(f"Q{uT}")
        for kt in range(2):
            p.e(f"{MF} {vr(DX + 4*kt, 4)}, {vr(K + 16*kt + 4*uT, 4)}, {vr(Q + 4*uT, 4)}, {vr((DX if uT else BI) + 4*kt, 4)}")
    poll(p, "L_at_poll", S_WS, vZ, f"s{sFK}", 0, t0, f"v_readfirstlane_b32 s{sA}, v{t0}\ns_cmp_gt_u32 s{sA}, s{sS}", sleep=2)
    p.e(f"""
s_mov_b32 m0, s{sLb}
v_max3_f32 v{M}, v{DX}, v{DX+1}, v{DX+2}
buffer_load_dwordx4 v{vL16}, {R(S_WS)}, s{sKM} offen{SC} lds
v_max3_f32 v{M}, v{M}, v{DX+3}, v{DX+4}
v_max3_f32 v{M}, v{M}, v{DX+5}, v{DX+6}
v_max_f32 v{M}, v{M}, v{DX+7}
s_waitcnt vmcnt(0)
s_barrier
""")
    for wc in range(4): p.e(f"ds_read_b64_tr_b16 {vr(XK + 2*wc, 2)}, v{vTk} offset:{1024*wc}", tag=f"k{wc >> 1}")
    for b in range(2): p.e(f"ds_read_b64 {vr(VM + 2*b, 2)}, v{vXr} offset:{8 + 1024*b}", tag="vm")
    for u in range(2):
        p.wl(f"k{u}")
        for T in range(2):
            p.e(f"{MF} {vr(DM + 4*T, 4)}, {vr(XK + 4*u, 4)}, {vr(Q + 8*u + 4*T, 4)}, {vr(DM + 4*T, 4) if u else 0}")
    p.e(f"""
v_xor_b32 v{vTk}, 4096, v{vTk}
v_xor_b32 v{vXr}, 4096, v{vXr}
s_xor_b32 s{sLb}, s{sLb}, 4096
v_pk_add_f32 {vr(DM, 2)}, {vr(DM, 2)}, {vr(DM+6, 2)}
v_pk_mul_f32 {vr(DM, 2)}, {vr(DM, 2)}, s[{sSCp}:{sSCp+1}]
v_max3_f32 v{M+1}, v{M}, v{DM}, v{DM+1}
v_max3_f32 v{M}, v{M}, v{DM}, v{DM+1}
v_permlane16_swap_b32 v{M}, v{M+1}
v_max_f32 v{M+2}, v{M}, v{M+1}
v_max_f32 v{M+3}, v{M}, v{M+1}
v_permlane32_swap_b32 v{M+2}, v{M+3}
v_max_f32 v{M}, v{M+2}, v{M+3}
""")
    for x in (DX, DX + 2, DX + 4, DX + 6, DM):
        p.e(f"v_pk_add_f32 {vr(x, 2)}, {vr(x, 2)}, {vr(M, 2)} op_sel_hi:[1,0] neg_lo:[0,1] neg_hi:[0,1]")
    for x in list(range(DX, DX + 8)) + [DM, DM + 1]: p.e(f"v_exp_f32 v{x}, v{x}")
    for i in range(4): p.e(f"v_cvt_pk_bf16_f32 v{P+i}, v{DX+2*i}, v{DX+2*i+1}")
    p.e(f"v_cvt_pk_bf16_f32 v{PM}, v{DM}, v{DM+1}\nv_cvt_pk_bf16_f32 v{PM+3}, v{DM}, v{DM+1}")
    p.e(f"{MF} {vr(DL, 4)}, {vr(ONE, 4)}, {vr(P, 4)}, 0")
    for E in range(4): p.e(f"{MF} {vr(O + 4*E, 4)}, {vr(V + 4*E, 4)}, {vr(P, 4)}, 0")
    p.wl("vm")
    M16 = "v_mfma_f32_16x16x16_bf16"
    p.e(f"{M16} {vr(DL, 4)}, {vr(ONE, 2)}, {vr(PM, 2)}, {vr(DL, 4)}")
    for E in range(4): p.e(f"{M16} {vr(O + 4*E, 4)}, {vr(VM + 2*(E >> 1), 2)}, {vr(PM + 2*(E & 1), 2)}, {vr(O + 4*E, 4)}")
    p.e(f"v_rcp_f32 v{DL}, v{DL}")
    for b in range(2):
        for x in range(O + 8*b, O + 8*b + 8): p.e(f"v_mul_f32 v{x}, v{x}, v{DL}")
        for i in range(4): p.e(f"v_cvt_pk_bf16_f32 v{O + 8*b + i}, v{O + 8*b + 2*i}, v{O + 8*b + 2*i + 1}")
        p.e(f"buffer_store_dwordx4 {vr(O + 8*b, 4)}, v{vL16}, {R(S_WS)}, s{sO} offen offset:{1024*b}{SC}", tag="st")
    p.e(f"""
s_add_u32 s{sI}, s{sI}, 1
v_mov_b32 v{t1}, s{sI}
s_add_u32 s{sQ0}, s{sQ0}, {4*32*8192}
s_add_u32 s{sKx}, s{sKx}, {4*32*16384}
s_add_u32 s{sV0}, s{sV0}, {4*32*16384}
s_add_u32 s{sKM}, s{sKM}, {4*32*4096}
s_add_u32 s{sO}, s{sO}, {8*131072}
s_add_u32 s{sS}, s{sS}, 4
s_waitcnt vmcnt(0)
s_mov_b64 exec, 1
buffer_store_dword v{t1}, v{vZ}, {R(S_WS)}, s{sFO} offen{SC}
s_mov_b64 exec, -1
s_cmp_lt_u32 s{sI}, 16
s_cbranch_scc1 L_at_loop
s_waitcnt vmcnt(0)
s_endpgm
""")
    return p.text()

TS = 456; L_T = 2*XBUF; L_G = L_T + 192*TS
def role_aw(cfg):
    p = Prog()
    sHG, sRT, sTM, sCG = sP0, sP1, sP2, sP3
    vL16, vXg, vXr, vTw, vG0, vG1, vTr, vZ, l, n, g, t0, t1 = range(1, 14)
    ACC, XS, WB = 16, 64, 80
    wreg = lambda ti, ks: WB + 72*ti + 4*ks
    acc = lambda ti, tt: ACC + 8*ti + 4*tt
    sTog, sGw = 50, 51
    p.e("L_role_aw:")
    srd(p, S_WS, 104, WS_BYTES); srd(p, S_X, 0, 2359296); srd(p, S_W0, 8, 1990656); srd(p, S_W1, 16, 663552); srd(p, S_W2, 64, 4718592)
    srd(p, S_DBG, 96, 256); srd(p, S_OUT, 88, 2359296); srd(p, S_G, 80, 1152)
    lanes(p, l, n, g)
    x_addr(p, vXg, vXr, l, n, g, t0, t1)
    tr_addr(p, vTr, n, g, t0, 64, 8)
    p.e(f"""
v_lshlrev_b32 v{vL16}, 4, v{l}
s_mul_i32 s{sB}, s{sW}, 20480
s_add_u32 s{sB}, s{sB}, {L_T}
v_add_u32 v{vTr}, s{sB}, v{vTr}
v_mov_b32 v{vZ}, 0
""")
    for pr, vg in ((0, vG0), (1, vG1)):
        p.e(f"""
; piece P = min(8w + {4*pr} + (l&3), 26): (P/9)*1152 + (P%9)*16 + (l>>2)*3456
s_lshl_b32 s{sA}, s{sW}, 3
s_add_u32 s{sA}, s{sA}, {4*pr}
v_and_b32 v{t0}, 3, v{l}
v_add_u32 v{t0}, s{sA}, v{t0}
v_min_u32 v{t0}, 26, v{t0}
v_mul_u32_u24 v{t1}, 57, v{t0}
v_lshrrev_b32 v{t1}, 9, v{t1}
v_mul_u32_u24 v{t1}, {1152 - 144}, v{t1}
v_lshl_add_u32 v{t1}, v{t0}, 4, v{t1}
v_lshrrev_b32 v{t0}, 2, v{l}
v_mul_u32_u24 v{t0}, 3456, v{t0}
v_add_u32 v{vg}, v{t0}, v{t1}
""")
    p.e(f"""
s_mul_i32 s{sC}, s{sHG}, 144
s_mul_i32 s{sD}, s{sRT}, 11
s_and_b32 s{sE}, s{sW}, 1
s_add_u32 s{sD}, s{sD}, s{sE}
s_sub_u32 s{sD}, s{sD}, 1
s_max_i32 s{sE}, s{sD}, 0
s_lshr_b32 s{sF}, s{sW}, 1
s_lshl_b32 s{sF}, s{sF}, 6
s_mul_i32 s{sXs}, s{sE}, 18432
s_add_u32 s{sXs}, s{sXs}, s{sF}
s_mul_i32 s{sD}, s{sD}, 18432
s_add_u32 s{sD}, s{sD}, s{sF}
s_lshl_b32 s{sXm}, s{sW}, 10
s_mov_b32 s{sBud}, {cfg.get('budget', 400000)}
v_mul_u32_u24 v{vTw}, {TS}, v{n}
v_lshl_add_u32 v{vTw}, v{g}, 3, v{vTw}
s_lshl_b32 s{sA}, s{sW}, 7
s_add_u32 s{sA}, s{sA}, {L_T}
v_add_u32 v{vTw}, s{sA}, v{vTw}
v_lshlrev_b32 v14, 2, v{n}
v_add_u32 v14, {L_G}, v14
s_waitcnt lgkmcnt(0)
""")
    def mid():
        for j in range(9): p.e(x_dma(j, vXg), tag="xd")
    load_weights(p, [(S_W0, vG0, sC), (S_W0, vG1, sC)], 3456, vTr, sB, 5, wreg, mid)
    p.e(f"s_cmp_lg_u32 s{sW}, 3\ns_cbranch_scc1 L_a_nogate\nv_lshlrev_b32 v{t0}, 4, v{g}")
    for ks in range(18): p.e(f"buffer_load_dwordx4 {vr(wreg(2, ks), 4)}, v{t0}, {R(S_G)}, 0 offen offset:{64*ks}", tag="gw")
    p.e(f"""
L_a_nogate:
s_mov_b32 s{sXs}, s{sD}
s_mov_b32 s{sI}, 0
s_mov_b32 s{sTog}, {XBUF}
""")
    p.raw(".p2align 6")
    p.e("L_a_loop:")
    p.fence()
    p.e(f"""
s_waitcnt vmcnt(0)
s_barrier
s_add_u32 s{sXs}, s{sXs}, {XBUF}
s_add_u32 s{sXm}, s{sXm}, s{sTog}
""")
    gemm_block(p, 4, wreg, acc, XS, vXr, vXg, lambda ti: True)
    p.e(f"v_add_u32 v{vXr}, s{sTog}, v{vXr}\ns_sub_u32 s{sTog}, 0, s{sTog}")
    def put(ti):
        for tt in range(2):
            a = acc(ti, tt)
            p.e(f"v_cvt_pk_bf16_f32 v{a}, v{a}, v{a+1}\nv_cvt_pk_bf16_f32 v{a+1}, v{a+2}, v{a+3}")
            p.e(f"ds_write_b64 v{vTw}, {vr(a, 2)} offset:{16*TS*tt + 32*ti}", tag="tw")
    put(0); put(1)
    p.e(f"s_cmp_eq_u32 s{sW}, 3\ns_cbranch_scc1 L_a_gate")
    put(2); put(3)
    p.e(f"""
s_branch L_a_nog2
L_a_gate:
ds_write_b32 v14, v{acc(2, 0)}
ds_write_b32 v14, v{acc(2, 1)} offset:64
L_a_nog2:
v_add_u32 v{vTw}, {32*TS}, v{vTw}
v_add_u32 v14, 128, v14
s_add_u32 s{sI}, s{sI}, 1
s_cmp_lt_u32 s{sI}, 6
s_cbranch_scc1 L_a_loop
s_waitcnt vmcnt(0) lgkmcnt(0)
s_barrier
""")
    p.fence()
    Qr, Kr, Vr, S_, Or, PL, PH, vRow, vA, vTok, vGl = 16, 26, 100, 176, 184, 204, 212, 14, 15, 2, 3
    CA = f2u(18 ** -0.5 * math.log2(math.e))
    p.e(f"""
s_mov_b32 s{sI}, 0
s_mul_i32 s{sC}, s{sW}, 36
s_add_u32 s{sC}, s{sC}, {L_T}
s_mul_i32 s{sD}, s{sRT}, 176
s_mov_b32 s{sE}, {CA:#x}
s_mov_b32 s{sF}, {f2u(-math.log2(math.e)):#x}
L_la_loop:
v_add_u32 v{t0}, s{sI}, v{l}
v_min_u32 v{t0}, 175, v{t0}
v_add_u32 v{vTok}, s{sD}, v{t0}
v_add_u32 v{t0}, 16, v{t0}
v_mul_u32_u24 v{vRow}, {TS}, v{t0}
v_add_u32 v{vRow}, s{sC}, v{vRow}
v_lshlrev_b32 v{t0}, 2, v{t0}
v_add_u32 v{t0}, {L_G}, v{t0}
""")
    p.e(f"ds_read_b32 v{vGl}, v{t0}", tag="gl")
    def rd9(d, a, off, tag):
        for i in range(4): p.e(f"ds_read2_b32 {vr(d + 2*i, 2)}, v{a} offset0:{off//4 + 2*i} offset1:{off//4 + 2*i + 1}", tag=tag)
        p.e(f"ds_read_b32 v{d+8}, v{a} offset:{off + 32}", tag=tag)
    rd9(Qr, vRow, 0, "q")
    koff = lambda j: Kr + 10*(j & 3)
    for j in range(8):
        p.e(f"v_subrev_u32 v{vA}, {2*j*TS}, v{vRow}")
        rd9(koff(j), vA, 144, f"k{j}")
        if j >= 1:
            p.wl(f"k{j-1}")
            for i in range(9): p.e(f"v_dot2_f32_bf16 v{S_+j-1}, v{Qr+i}, v{koff(j-1)+i}, {f'v{S_+j-1}' if i else 0}")
    p.wl("k7")
    for i in range(9): p.e(f"v_dot2_f32_bf16 v{S_+7}, v{Qr+i}, v{koff(7)+i}, {f'v{S_+7}' if i else 0}")
    voff = lambda j: Vr + 10*(j & 3)
    for j in range(2):
        p.e(f"v_subrev_u32 v{vA}, {2*j*TS}, v{vRow}")
        rd9(voff(j), vA, 288, f"v{j}")
    p.e(f"v_mov_b32 v{t1}, {NEG:#x}")
    for j in range(8):
        p.e(f"v_mul_f32 v{S_+j}, s{sE}, v{S_+j}")
    for j in range(1, 8):
        p.e(f"v_cmp_le_u32 vcc, {2*j}, v{vTok}\nv_cndmask_b32 v{S_+j}, v{t1}, v{S_+j}, vcc")
    p.e(f"""
v_max3_f32 v{t0}, v{S_}, v{S_+1}, v{S_+2}
v_max3_f32 v{t0}, v{t0}, v{S_+3}, v{S_+4}
v_max3_f32 v{t0}, v{t0}, v{S_+5}, v{S_+6}
v_max_f32 v{t0}, v{t0}, v{S_+7}
""")
    for j in range(8): p.e(f"v_sub_f32 v{S_+j}, v{S_+j}, v{t0}")
    for j in range(8): p.e(f"v_exp_f32 v{S_+j}, v{S_+j}")
    for j in range(8): p.e(f"v_cvt_pk_bf16_f32 v{PL+j}, v{S_+j}, v{vZ}")
    for j in range(8): p.e(f"v_lshlrev_b32 v{PH+j}, 16, v{PL+j}")
    p.e(f"""
v_add_f32 v{t0}, v{PH}, v{PH+1}
v_add_f32 v{t1}, v{PH+2}, v{PH+3}
v_add_f32 v{t0}, v{t0}, v{PH+4}
v_add_f32 v{t1}, v{t1}, v{PH+5}
v_add_f32 v{t0}, v{t0}, v{PH+6}
v_add_f32 v{t1}, v{t1}, v{PH+7}
v_add_f32 v{t0}, v{t0}, v{t1}
v_mul_f32 v{t1}, s{sF}, v{vGl}
v_exp_f32 v{vGl}, v{t1}
v_exp_f32 v{t1}, -v{t1}
v_add_f32 v{vGl}, 1.0, v{vGl}
v_add_f32 v{t1}, 1.0, v{t1}
v_mul_f32 v{t0}, v{t0}, v{vGl}
v_rcp_f32 v{t0}, v{t0}
v_rcp_f32 v{t1}, v{t1}
""")
    for j in range(8):
        if j + 2 < 8:
            p.e(f"v_subrev_u32 v{vA}, {2*(j+2)*TS}, v{vRow}")
            rd9(voff(j + 2), vA, 288, f"v{j+2}")
        p.wl(f"v{j}")
        for i in range(9):
            for hh, P_ in ((0, PL), (1, PH)):
                o = Or + 2*i + hh
                p.e(f"v_dot2_f32_bf16 v{o}, v{voff(j)+i}, v{P_+j}, {f'v{o}' if j else 0}")
    p.e(f"""
s_or_b32 s{sA}, s{sHG}, s{sW}
s_cmp_lg_u32 s{sA}, 0
s_cbranch_scc1 L_la_noomg
v_lshlrev_b32 v{vA}, 2, v{vTok}
v_min_u32 v{vA}, 8192, v{vA}
s_mov_b32 s{sA}, {WS_OMG}
buffer_store_dword v{t1}, v{vA}, {R(S_WS)}, s{sA} offen{SC}
L_la_noomg:
""")
    for i in range(18): p.e(f"v_mul_f32 v{Or+i}, v{Or+i}, v{t0}")
    for i in range(9): p.e(f"v_cvt_pk_bf16_f32 v{Or+i}, v{Or+2*i}, v{Or+2*i+1}")
    for i in range(4): p.e(f"ds_write2_b32 v{vRow}, v{Or+2*i}, v{Or+2*i+1} offset0:{2*i} offset1:{2*i+1}", tag="ow")
    p.e(f"ds_write_b32 v{vRow}, v{Or+8} offset:32", tag="ow")
    p.e(f"""
s_add_u32 s{sI}, s{sI}, 64
s_cmp_lt_u32 s{sI}, 192
s_cbranch_scc1 L_la_loop
s_waitcnt lgkmcnt(0)
s_barrier
v_mul_u32_u24 v{vRow}, {TS}, v{n}
v_lshl_add_u32 v{vRow}, v{g}, 4, v{vRow}
s_add_u32 s{sA}, s{sW}, 1
s_mul_i32 s{sA}, s{sA}, {16*TS}
s_add_u32 s{sA}, s{sA}, {L_T}
v_add_u32 v{vRow}, s{sA}, v{vRow}
s_mul_i32 s{sD}, s{sRT}, 11
s_add_u32 s{sD}, s{sD}, s{sW}
s_mov_b32 s{sI}, s{sW}
s_mul_i32 s{sE}, s{sHG}, 2304
s_add_u32 s{sE}, s{sE}, {WS_OA}
L_oa_loop:
s_cmp_ge_u32 s{sD}, 128
s_cbranch_scc1 L_oa_done
""")
    p.fence()
    for x in range(3): p.e(f"ds_read2_b64 {vr(16 + 4*x, 4)}, v{vRow} offset0:{8*x} offset1:{8*x+1}", tag=f"o{x}")
    p.e(f"s_mul_i32 s{sA}, s{sD}, 18432\ns_add_u32 s{sA}, s{sA}, s{sE}")
    for x in range(3):
        p.wl(f"o{x}")
        if x == 2: p.e("s_mov_b64 exec, 0xffff")
        p.e(f"buffer_store_dwordx4 {vr(16 + 4*x, 4)}, v{vL16}, {R(S_WS)}, s{sA} offen offset:{1024*x}{SC}", tag="st")
    p.e(f"""
s_mov_b64 exec, -1
v_add_u32 v{vRow}, {64*TS}, v{vRow}
s_add_u32 s{sD}, s{sD}, 4
s_add_u32 s{sI}, s{sI}, 4
s_cmp_lt_u32 s{sI}, 11
s_cbranch_scc1 L_oa_loop
L_oa_done:
s_waitcnt vmcnt(0)
s_barrier
s_cmp_lg_u32 s{sW}, 0
s_cbranch_scc1 L_a_sig
v_mov_b32 v{t0}, 1
s_mov_b64 exec, 1
buffer_atomic_add v{t0}, v{vZ}, {R(S_DBG)}, 0 offen offset:4 sc1
s_mov_b64 exec, -1
L_a_sig:
""")
    p.fence(); p.vmq = []; p.ldsq = []
    vD0, vD1, vD2, vTrB, vTrA, vOl, vRw, vOut, vFl, vOm = 2, 3, 4, 5, 6, 7, 14, 15, 9, 10
    AB, AA, ST, WA, WBB = 16, 28, 40, 68, 128
    for d, vd in enumerate((vD0, vD1, vD2)):
        p.e(f"""
v_add_u32 v{t0}, {64*d}, v{l}
v_mul_u32_u24 v{t1}, 171, v{t0}
v_lshrrev_b32 v{t1}, 10, v{t1}
v_mul_u32_u24 v{t1}, {1152 - 96}, v{t1}
v_lshl_add_u32 v{vd}, v{t0}, 4, v{t1}
""")
    tr_addr(p, vTrB, n, g, t0, 96, 4)
    tr_addr(p, vTrA, n, g, t0, 96, 8)
    sRing, sWb, sWa, sOb, sOA, sOut, sOm, sFO, sRed = range(50, 59)
    p.e(f"""
s_lshl_b32 s{sRing}, s{sW}, 15
v_add_u32 v{vTrB}, s{sRing}, v{vTrB}
v_add_u32 v{vTrA}, s{sRing}, v{vTrA}
v_add_u32 v{vOl}, s{sRing}, v{vL16}
s_mul_i32 s{sA}, s{sCG}, 96
s_mul_i32 s{sWb}, s{sW}, {1024*1152}
s_add_u32 s{sWb}, s{sWb}, s{sA}
s_mul_i32 s{sWa}, s{sW}, {160*1152}
s_add_u32 s{sWa}, s{sWa}, s{sA}
v_mul_u32_u24 v{vOut}, 1152, v{n}
v_lshl_add_u32 v{vOut}, v{g}, 3, v{vOut}
s_lshl_b32 s{sB}, s{sW}, 5
s_add_u32 s{sA}, s{sA}, s{sB}
s_mul_i32 s{sOut}, s{sTM}, 18432
s_add_u32 s{sOA}, s{sOut}, {WS_OA}
s_add_u32 s{sOut}, s{sOut}, s{sA}
s_lshl_b32 s{sOb}, s{sTM}, 17
s_add_u32 s{sOb}, s{sOb}, s{sRing}
s_add_u32 s{sOb}, s{sOb}, {WS_O}
s_lshl_b32 s{sOm}, s{sTM}, 6
s_add_u32 s{sOm}, s{sOm}, {WS_OMG}
s_lshl_b32 s{sFO}, s{sTM}, 8
s_add_u32 s{sFO}, s{sFO}, {F_O}
v_lshlrev_b32 v{vFl}, 2, v{l}
v_lshlrev_b32 v{vOm}, 2, v{n}
v_add_u32 v{vRw}, 131072, v{vL16}
""")
    items = [('A', k) for k in range(5)] + [('B', k) for k in range(32)]
    nslot = 10; D = nslot - 1
    def issue(i):
        kind, k = items[i]
        p.e(f"s_add_u32 s{sA}, s{sWa if kind == 'A' else sWb}, {32*k*1152}")
        for d, vd in enumerate((vD0, vD1, vD2)):
            p.e(f"s_add_u32 m0, s{sRing}, {3072*(i % nslot) + 1024*d}")
            p.e(f"buffer_load_dwordx4 v{vd}, {R(S_W1 if kind == 'A' else S_W2)}, s{sA} offen lds", tag=f"d{i}")
    for i in range(D): issue(i)
    for i, (kind, k) in enumerate(items):
        p.wv(f"d{i}")
        for ct in range(3):
            for q in range(2):
                if kind == 'A': p.e(f"ds_read_b64_tr_b16 {vr(WA + 12*k + 4*ct + 2*q, 2)}, v{vTrA} offset:{3072*(i % nslot) + 96*4*q + 32*ct}", tag="tr")
                else: p.e(f"ds_read_b64_tr_b16 {vr(WBB + 12*k + 4*ct + 2*q, 2)}, v{vTrB} offset:{3072*(i % nslot) + 96*16*q + 32*ct}", tag="tr")
        p.e("s_waitcnt lgkmcnt(0)")
        if i + D < len(items): issue(i + D)
    poll(p, "L_w_init", S_DBG, vZ, 0, 0, t0, f"v_readfirstlane_b32 s{sA}, v{t0}\ns_and_b32 s{sA}, s{sA}, 0xff\ns_cmp_eq_u32 s{sA}, 32")
    poll(p, "L_w_adone", S_DBG, vZ, 0, 4, t0, f"v_readfirstlane_b32 s{sA}, v{t0}\ns_cmp_eq_u32 s{sA}, 96")
    p.e(f"s_mov_b32 s{sI}, 0\ns_mul_i32 s{sWa}, s{sW}, 5\ns_mul_i32 s{sRed}, s{sW}, 3072\nv_add_u32 v{vD0}, s{sRed}, v{vRw}\ns_lshl_b32 s{sA}, s{sW}, 10\nv_add_u32 v{vRw}, s{sA}, v{vRw}")
    p.e("L_w_loop:")
    p.fence()
    for k in range(5):
        p.e(f"s_add_u32 s{sA}, s{sWa}, {k}\ns_min_u32 s{sA}, s{sA}, 17\ns_lshl_b32 s{sA}, s{sA}, 10\ns_add_u32 s{sA}, s{sA}, s{sOA}")
        p.e(f"buffer_load_dwordx4 {vr(ST + 4*k, 4)}, v{vL16}, {R(S_WS)}, s{sA} offen sc1", tag=f"a{k}")
    p.e(f"buffer_load_dword v{t1}, v{vOm}, {R(S_WS)}, s{sOm} offen sc1", tag="om")
    for k in range(5):
        p.wv(f"a{k}")
        for ct in range(3): p.e(f"{MF} {vr(AA + 4*ct, 4)}, {vr(WA + 12*k + 4*ct, 4)}, {vr(ST + 4*k, 4)}, {vr(AA + 4*ct, 4) if k else 0}")
    poll(p, "L_w_poll", S_WS, vFl, f"s{sFO}", 0, t0, f"v_cmp_ge_u32 vcc, s{sI}, v{t0}\ns_nop 1\ns_cmp_eq_u64 vcc, 0", sleep=2)
    for k in range(32):
        if k % 4 == 0: p.e(f"s_add_u32 s{sA}, s{sOb}, {1024*k}\ns_add_u32 m0, s{sRing}, {1024*k}")
        p.e(f"buffer_load_dwordx4 v{vL16}, {R(S_WS)}, s{sA} offen offset:{1024*(k % 4)} sc1 lds", tag=f"o{k}")
    def rdo(k):
        p.wv(f"o{k}")
        p.e(f"ds_read_b128 {vr(ST + 4*(k % 4), 4)}, v{vOl} offset:{1024*k}", tag=f"r{k}")
    rdo(0); rdo(1)
    for k in range(32):
        if k + 2 < 32: rdo(k + 2)
        p.wl(f"r{k}")
        for ct in range(3): p.e(f"{MF} {vr(AB + 4*ct, 4)}, {vr(WBB + 12*k + 4*ct, 4)}, {vr(ST + 4*(k % 4), 4)}, {vr(AB + 4*ct, 4) if k else 0}")
    for ct in range(3):
        for r in range(4): p.e(f"v_fma_f32 v{AB + 4*ct + r}, v{AB + 4*ct + r}, v{t1}, v{AA + 4*ct + r}")
        p.e(f"ds_write_b128 v{vD0}, {vr(AB + 4*ct, 4)} offset:{1024*ct}", tag="rw")
    p.e(f"""
s_waitcnt lgkmcnt(0)
s_barrier
s_cmp_eq_u32 s{sW}, 3
s_cbranch_scc1 L_w_next
""")
    for x in range(4): p.e(f"ds_read_b128 {vr(ST + 4*x, 4)}, v{vRw} offset:{3072*x}", tag="rr")
    p.e(f"""
s_waitcnt lgkmcnt(0)
v_pk_add_f32 {vr(ST, 2)}, {vr(ST, 2)}, {vr(ST+4, 2)}
v_pk_add_f32 {vr(ST+2, 2)}, {vr(ST+2, 2)}, {vr(ST+6, 2)}
v_pk_add_f32 {vr(ST+8, 2)}, {vr(ST+8, 2)}, {vr(ST+12, 2)}
v_pk_add_f32 {vr(ST+10, 2)}, {vr(ST+10, 2)}, {vr(ST+14, 2)}
v_pk_add_f32 {vr(ST, 2)}, {vr(ST, 2)}, {vr(ST+8, 2)}
v_pk_add_f32 {vr(ST+2, 2)}, {vr(ST+2, 2)}, {vr(ST+10, 2)}
v_cvt_pk_bf16_f32 v{ST+20}, v{ST}, v{ST+1}
v_cvt_pk_bf16_f32 v{ST+21}, v{ST+2}, v{ST+3}
buffer_store_dwordx2 {vr(ST+20, 2)}, v{vOut}, {R(S_OUT)}, s{sOut} offen
L_w_next:
v_xor_b32 v{vD0}, 16384, v{vD0}
v_xor_b32 v{vRw}, 16384, v{vRw}
s_add_u32 s{sOut}, s{sOut}, {8*18432}
s_add_u32 s{sOA}, s{sOA}, {8*18432}
s_add_u32 s{sOb}, s{sOb}, {8*131072}
s_add_u32 s{sOm}, s{sOm}, 512
s_add_u32 s{sI}, s{sI}, 1
s_cmp_lt_u32 s{sI}, 16
s_cbranch_scc1 L_w_loop
s_waitcnt vmcnt(0)
s_endpgm
""")
    return p.text()
```

```python
from asmgen import *
import math, struct

WS_X    = 0x0
WS_MEM  = 0x48000
WS_FLG  = 0x50000
WS_SYN  = WS_MEM + 9216
WS_STMP = 0x60000
WS_TL   = 0x70000
WS_MH   = 0x800000
MHS = 10240
WS_KVX  = 0x1000000
WS_BYTES = 0x10000000
L_DUM = 0; L_SEL = 256; L_MEM = 1024; L_Q = 10240; L_K = 12288; L_XS = 14336; L_W = [16384, 16384 + 40960, 16384 + 81920, 16384 + 81920 + 32768]
S_WS, S_WQ, S_WK, S_WV, S_WO, S_M0, S_DBG = 4, 8, 12, 16, 20, 24, 28
sH, sW, sS, sT, sTn, sKV, sKVn, sPF, sKM, sBud = 32, 33, 34, 35, 36, 37, 38, 39, 40, 41
sX = [42, 43, 44, 45, 46]
sMEMo, sMEM1, sMEM8 = 47, 48, 49
sSC = 50
sONE = 52
sA, sB, sC, sD = 54, 55, 56, 57
sRU = 3
sEv, sFL = 100, 101
sSYw, sSYr = 33, 58
sPar = 38
sHALF = 0
sST = 60
vIdx, vL16, vW, vL8, vTR, vXr, vTmp, vOr, vST, vRD, vMS, vMask = range(12)
KV = 12; VV = 52; AQ = 20; AK = 28; AV = 36; WST = 44; AS = [60, 64, 68, 72, 76]; SEL = 76
WBASE = 80
SCALE = struct.unpack('<I', struct.pack('<f', 128 ** -0.5 * math.log2(math.e)))[0]

def tile_order(w):
    return list(range(9))

class Alloc:
    def __init__(s, w):
        s.w = w
        s.ndt = 5 if w < 2 else 4
        s.lpairs = [('q', 0), ('q', 3), ('q', 4), ('k', 5), ('v', 8)]
        o = [(0, 0), (1, 0), (0, 1), (0, 2), (0, 3), (1, 1), (1, 2), (1, 3), (2, 0), (2, 1), (2, 2), (2, 3), (3, 0), (3, 1), (3, 2), (3, 3)]
        if s.ndt == 5:
            o += [(4, 0), (4, 1), (4, 2), (4, 3)]
            lpos = [0, 1, 3, 6, 8, 10, 12, 14, 16, 18]
        else:
            lpos = [0, 1, 3, 6, 12, 14]
        s.wo_order = o
        s.wo_l = [o[i] for i in lpos]
        s.reg = {}; s.lds = {}
        r = WBASE; off = 0
        for m, sl in s.lpairs:
            s.lds[(m, sl, 0)] = off; s.lds[(m, sl, 1)] = off + 2048; off += 4096
        for kj in s.wo_l:
            s.lds[('o',) + kj] = off; off += 2048
        for m in 'qkv':
            for sl in range(9):
                for T in range(2):
                    if (m, sl, T) not in s.lds: s.reg[(m, sl, T)] = r; r += 8
        for kj in o:
            if ('o',) + kj not in s.lds: s.reg[('o',) + kj] = r; r += 8
        assert r == 512, r
        s.ldsbytes = off

def setup_common(p):
    p.e(f"""
s_load_dwordx2 s[{S_M0}:{S_M0+1}], s[0:1], 32
s_load_dwordx2 s[{S_WQ}:{S_WQ+1}], s[0:1], 40
s_load_dwordx2 s[{S_WK}:{S_WK+1}], s[0:1], 48
s_load_dwordx2 s[{S_WV}:{S_WV+1}], s[0:1], 56
s_load_dwordx2 s[{S_WO}:{S_WO+1}], s[0:1], 64
s_load_dwordx2 s[{S_DBG}:{S_DBG+1}], s[0:1], 96
s_load_dwordx2 s[{S_WS}:{S_WS+1}], s[0:1], 104
""")
    for b, n in ((S_M0, 9216), (S_WQ, 4718592), (S_WK, 4718592), (S_WV, 4718592), (S_WO, 4718592), (S_DBG, 256), (S_WS, WS_BYTES)):
        p.e(f"s_mov_b32 s{b+2}, {n}\ns_mov_b32 s{b+3}, 0x20000")

def tl(cfg, idx, va, vb, start=False):
    if not cfg.get('tl'): return ""
    t = f"s_waitcnt lgkmcnt(0)\ns_memrealtime s[92:93]\ns_waitcnt lgkmcnt(0)\nv_mov_b32 v{va}, s92\nv_mov_b32 v{vb}, 0\nbuffer_store_dword v{va}, v{vb}, s[4:7], s95 offen offset:{4*idx}\n"
    t += f"s_memtime s[92:93]\ns_waitcnt lgkmcnt(0)\nv_mov_b32 v{va}, s92\nbuffer_store_dword v{va}, v{vb}, s[4:7], s95 offen offset:{32+4*idx}\n"
    if start: t += f"v_mov_b32 v{va}, s94\nbuffer_store_dword v{va}, v{vb}, s[4:7], s95 offen\n"
    return t + "s_waitcnt vmcnt(0)\n"

def kvwait(nm):
    t = f"""
L_kvw_{nm}:
s_load_dwordx16 s[64:79], s[{S_WS}:{S_WS+1}], s{sFL} glc
s_sub_u32 s{sBud}, s{sBud}, 1
s_cbranch_scc1 L_exit
s_waitcnt lgkmcnt(0)
"""
    for i in range(65, 80): t += f"s_min_u32 s64, s64, s{i}\n"
    return t + f"""s_lshl_b32 s{sEv}, s64, 2
s_sub_u32 s{sEv}, s{sEv}, 1
s_cmp_ge_i32 s{sS}, s{sEv}
s_cbranch_scc1 L_kvw_{nm}
"""

def prologue(p, w, red, cfg):
    al = Alloc(w)
    l, n, g, t0, t1, t2 = 20, 21, 22, 23, 24, 25
    vG1, vG2, vR1, vR2 = 26, 27, 28, 29
    p.e(f"""
v_and_b32 v{l}, 63, v0
v_and_b32 v{n}, 15, v0
v_bfe_u32 v{g}, v0, 4, 2
v_lshlrev_b32 v{vL16}, 4, v{l}
v_add_u32 v{vW}, {L_W[w]}, v{vL16}
v_bfe_u32 v{t0}, v{l}, 3, 1
v_lshlrev_b32 v{vG1}, 3, v{t0}
v_bfe_u32 v{t0}, v{l}, 4, 2
v_lshl_add_u32 v{vG1}, v{t0}, 1, v{vG1}
v_bfe_u32 v{t0}, v{l}, 2, 1
v_add_u32 v{vG1}, v{vG1}, v{t0}
v_lshlrev_b32 v{vG1}, 13, v{vG1}
v_and_b32 v{t0}, 3, v{l}
v_lshl_add_u32 v{vG1}, v{t0}, 4, v{vG1}
v_lshrrev_b32 v{t1}, 2, v{l}
v_mul_u32_u24 v{vG2}, 1152, v{t1}
v_lshl_add_u32 v{vG2}, v{t0}, 4, v{vG2}
v_lshrrev_b32 v{t1}, 2, v{n}
v_lshl_add_u32 v{t2}, v{g}, 3, v{t1}
v_lshlrev_b32 v{vR1}, 6, v{t2}
v_lshl_add_u32 v{vR1}, v{t0}, 3, v{vR1}
v_add_u32 v{vR1}, {L_W[w]}, v{vR1}
v_and_b32 v{t2}, 1, v{g}
v_lshlrev_b32 v{vR2}, 10, v{t2}
v_lshrrev_b32 v{t2}, 1, v{g}
v_lshl_add_u32 v{vR2}, v{t2}, 8, v{vR2}
v_and_b32 v{t2}, 1, v{t1}
v_lshl_add_u32 v{vR2}, v{t2}, 6, v{vR2}
v_lshrrev_b32 v{t2}, 1, v{t1}
v_lshl_add_u32 v{vR2}, v{t2}, 3, v{vR2}
v_lshl_add_u32 v{vR2}, v{t0}, 4, v{vR2}
v_add_u32 v{vR2}, {L_W[w]}, v{vR2}
s_lshl_b32 s{sA}, s{sH}, 8
s_add_u32 s{sA}, s{sA}, {64*w}
s_mul_i32 s{sB}, s{sH}, 147456
s_waitcnt lgkmcnt(0)
""")
    order = tile_order(w)
    items = []
    for m in 'qkv':
        for sl in range(9):
            if (m, sl, 0) in al.reg: items.append(('R', [(m, sl, 0), (m, sl, 1)]))
    wo_r = [('o',) + kj for kj in al.wo_order if ('o',) + kj in al.reg]
    for i in range(0, len(wo_r), 2): items.append(('R', wo_r[i:i+2]))
    nreg = len(items)
    for m, sl in al.lpairs: items.append(('L', [(m, sl, 0), (m, sl, 1)]))
    wo_l = [('o',) + kj for kj in al.wo_l]
    for i in range(0, len(wo_l), 2): items.append(('L', wo_l[i:i+2]))
    nslot = al.ldsbytes // 4096
    def slot(i): return (i - nreg) % nslot
    DEPTH = nslot - 1
    def issue(i):
        kind, tl = items[i]
        base = L_W[w] + 4096 * slot(i)
        for d in range(4):
            if tl[0][0] != 'o':
                m, sl, _ = tl[0]
                srd = {'q': S_WQ, 'k': S_WK, 'v': S_WV}[m]
                so = (64 * order[sl] + 16 * d) * 8192
                p.e(f"s_add_u32 s{sC}, s{sA}, {so}\ns_mov_b32 m0, {base + 1024*d}")
                p.e(f"buffer_load_dwordx4 v{vG1}, s[{srd}:{srd+3}], s{sC} offen lds", tag=f"d{i}")
            else:
                _, k, j = tl[d >> 1]
                ks = (w + j) % 4; DT = 4 * k + w
                so = (32 * ks + 16 * (d & 1)) * 1152 + 64 * DT
                p.e(f"s_add_u32 s{sC}, s{sB}, {so}\ns_mov_b32 m0, {base + 1024*d}")
                p.e(f"buffer_load_dwordx4 v{vG2}, s[{S_WO}:{S_WO+3}], s{sC} offen lds", tag=f"d{i}")
    def consume(i):
        kind, tl = items[i]
        off = 4096 * slot(i)
        p.wv(f"d{i}")
        for x, t in enumerate(tl):
            dst = al.reg[t] if kind == 'R' else WST + 8 * x
            for q in range(4):
                if t[0] != 'o': a, o = vR1, off + 2048 * (q >> 1) + 256 * (q & 1) + 32 * t[2]
                else: a, o = vR2, off + 2048 * x + 64 * (8 * (q >> 1) + 2 * (q & 1))
                p.e(f"ds_read_b64_tr_b16 {vr(dst + 2*q, 2)}, v{a} offset:{o}", tag="tr")
        p.e("s_waitcnt lgkmcnt(0)")
        if kind == 'L':
            assert al.lds[tl[0]] == off and al.lds[tl[1]] == off + 2048
            for x in range(4):
                p.e(f"ds_write_b128 v{vW}, {vr(WST + 4*x, 4)} offset:{off + 1024*x}", tag="lw")
            p.e("s_waitcnt lgkmcnt(0)")
    for i in range(DEPTH): issue(i)
    p.e(f"""
v_bfe_u32 v{t0}, v{n}, 1, 1
v_and_b32 v{t1}, 1, v{n}
v_lshl_add_u32 v{t0}, v{t1}, 16, v{t0}
v_mul_u32_u24 v{t0}, 0xaaaa, v{t0}
v_add_u32 v{vIdx}, 0x44444444, v{t0}
v_lshlrev_b32 v{vL8}, 3, v{l}
v_lshrrev_b32 v{t2}, 5, v{l}
v_lshlrev_b32 v{t2}, 6, v{t2}
v_xor_b32 v{vL8}, v{vL8}, v{t2}
; vTR = (128c + 8*(4g + r)) ^ (64*(c>>1))   (c = n&3, r = n>>2)
v_lshrrev_b32 v{t2}, 2, v{l}
v_and_b32 v{vTR}, 3, v{n}
v_lshl_add_u32 v{vTR}, v{vTR}, 4, v{t2}
v_lshlrev_b32 v{vTR}, 3, v{vTR}
v_bfe_u32 v{t2}, v{n}, 1, 1
v_lshlrev_b32 v{t0}, 6, v{t2}
v_xor_b32 v{vTR}, v{vTR}, v{t0}
v_and_b32 v{t0}, 2, v{g}
v_xor_b32 v{vXr}, v{n}, v{t0}
v_lshlrev_b32 v{vXr}, 4, v{vXr}
v_lshl_add_u32 v{vXr}, v{t2}, 10, v{vXr}
v_and_b32 v{t0}, 1, v{g}
v_lshl_add_u32 v{vXr}, v{t0}, 3, v{vXr}
; vRD = g*256 + n3*128 + n1*64 + n2*32 + n0*16
v_lshlrev_b32 v{vRD}, 8, v{g}
v_lshl_add_u32 v{vRD}, v{t2}, 6, v{vRD}
v_bfe_u32 v{t0}, v{n}, 3, 1
v_lshl_add_u32 v{vRD}, v{t0}, 7, v{vRD}
v_bfe_u32 v{t0}, v{n}, 2, 1
v_lshl_add_u32 v{vRD}, v{t0}, 5, v{vRD}
v_and_b32 v{t0}, 1, v{n}
v_lshl_add_u32 v{vRD}, v{t0}, 4, v{vRD}
v_lshrrev_b32 v{t0}, 1, v{g}
v_and_b32 v{t1}, 1, v{g}
v_and_b32 v{t2}, 7, v{n}
v_lshrrev_b32 v{vOr}, 3, v{n}
; vST = w*16384 + (2*n3+(g>>1))*4096 + (h>>1)*256 + (g&1)*128 + (h&1)*64 + n2*32 + n0*16 + n1*8
v_lshl_add_u32 v{vST}, v{vOr}, 1, v{t0}
v_lshlrev_b32 v{vST}, 12, v{vST}
v_lshl_add_u32 v{vST}, v{t1}, 7, v{vST}
v_and_b32 v{t2}, 4, v{n}
v_lshl_add_u32 v{vST}, v{t2}, 3, v{vST}
v_and_b32 v{t2}, 1, v{n}
v_lshl_add_u32 v{vST}, v{t2}, 4, v{vST}
v_bfe_u32 v{t2}, v{n}, 1, 1
v_lshl_add_u32 v{vST}, v{t2}, 3, v{vST}
s_lshr_b32 s{sC}, s{sH}, 1
s_lshl_b32 s{sC}, s{sC}, 8
s_and_b32 s{sD}, s{sH}, 1
s_lshl_b32 s{sD}, s{sD}, 6
s_add_u32 s{sC}, s{sC}, s{sD}
s_add_u32 s{sC}, s{sC}, {WS_X + 16384*w}
v_add_u32 v{vST}, s{sC}, v{vST}
; vOr = 256*g + 16*(4*(n>>2) + ((n>>1)&1))
v_and_b32 v{vOr}, 12, v{n}
v_bfe_u32 v{t2}, v{n}, 1, 1
v_add_u32 v{vOr}, v{vOr}, v{t2}
v_lshlrev_b32 v{vOr}, 4, v{vOr}
v_lshl_add_u32 v{vOr}, v{g}, 8, v{vOr}
""")
    for k in range(5): p.e(f"s_mov_b32 s{sX[k]}, {65536*k}")
    p.e(f"""
s_mov_b32 s{sMEMo}, {WS_MEM}
s_mov_b32 s{sMEM1}, {WS_MEM + 4096}
s_mov_b32 s{sMEM8}, {WS_MEM + 8192}
s_mov_b32 s{sSC}, {SCALE:#x}
s_mov_b32 s{sSC+1}, {SCALE:#x}
s_mov_b32 s{sONE}, 0x3f803f80
s_mov_b32 s{sONE+1}, 0x3f803f80
v_and_b32 v{vMask}, 3, v{n}
v_cmp_eq_u32 vcc, 0, v{vMask}
v_cndmask_b32 v{vMask}, 0, 1, vcc
s_mov_b32 s{sS}, 0
s_mov_b32 s{sT}, -1
s_mov_b32 s{sTn}, 0
s_mov_b32 s{sBud}, {cfg.get('budget', 2000000)}
s_lshl_b32 s{sKV}, s{sH}, 14
s_add_u32 s{sPF}, s{sKV}, {WS_KVX + 4096*w + 524288*cfg.get('pfd', 1)}
s_add_u32 s{sKV}, s{sKV}, {WS_KVX + 4096*w}
s_mov_b32 s{sKM}, {WS_MH - WS_MEM + 64*MHS}
v_mov_b64 v[{AV}:{AV+1}], 0
v_mov_b64 v[{AV+2}:{AV+3}], 0
""")
    p.e(f"s_lshl_b32 s{sC}, s{sH}, 1\ns_add_u32 s{sC}, s{sC}, {w >> 1}\ns_cmp_eq_u32 s{sC}, 0\ns_cselect_b32 s{sC}, 64, s{sC}\ns_mul_i32 s{sC}, s{sC}, {MHS}\ns_add_u32 s{sC}, s{sC}, {WS_MH + 4096*(w & 1)}\ns_add_u32 s{sD}, s{sC}, 4096")
    for i in range(4): p.e(f"v_mov_b32 v{AV+4+i}, {w >> 1}")
    for i in range(4 + (w & 1)):
        p.e(f"buffer_store_dwordx4 v[{AV+4}:{AV+7}], v{vL16}, s[{S_WS}:{S_WS+3}], s{sC if i < 4 else sD} offen offset:{1024*(i & 3)} sc0 sc1", tag="init")
    if red:
        ub = {2: 0, 3: 32, 1: 64}[w]
        p.e(f"""
s_add_u32 s{sC}, s{sH}, {ub}
s_lshl_b32 s{sRU}, s{sC}, 12
v_and_b32 v{t0}, 1, v{n}
v_bfe_u32 v{t1}, v{n}, 2, 1
v_bfe_u32 v{t2}, v{n}, 1, 1
s_lshl_b32 s{sD}, s{sC}, 7
s_add_u32 s{sD}, s{sD}, {WS_MEM}
v_and_b32 v{vMS}, 7, v{n}
v_lshlrev_b32 v{vMS}, 2, v{vMS}
v_lshl_add_u32 v{vMS}, v{g}, 5, v{vMS}
v_add_u32 v{vMS}, s{sD}, v{vMS}
; the unit's timing word starts with the tag of mem0
s_lshl_b32 s{sSYw}, s{sC}, 2
s_add_u32 s{sSYw}, s{sSYw}, {WS_SYN}
v_mov_b32 v30, -1
s_mov_b64 exec, 1
buffer_store_dword v30, v{vL16}, s[{S_WS}:{S_WS+3}], s{sSYw} offen sc0 sc1
s_mov_b64 exec, -1
v_lshl_add_u32 v{t0}, v{t0}, 1, v{t1}
v_lshlrev_b32 v{t2}, 4, v{t2}
v_mov_b32 v{t1}, 0x3f80
v_lshlrev_b32 v{t1}, v{t2}, v{t1}
""")
        for j in range(4):
            p.e(f"v_cmp_eq_u32 vcc, {j}, v{t0}\nv_cndmask_b32 v{SEL+j}, 0, v{t1}, vcc")
        if w == 2:
            p.e(f"v_and_b32 v{t0}, 0x70, v{vL16}\nds_write_b128 v{t0}, v[{SEL}:{SEL+3}] offset:{L_SEL}", tag="z")
        for i in range(4):
            p.e(f"buffer_store_dwordx4 v[{AV}:{AV+3}], v{vRD}, s[{S_WS}:{S_WS+3}], s{sRU} offen offset:{1024*i} sc0 sc1", tag="init")
    if w == 0:
        p.e(f"v_lshlrev_b32 v{t0}, 2, v{l}\ns_lshl_b32 s{sC}, s{sH}, 8\ns_add_u32 s{sC}, s{sC}, {WS_FLG}\nbuffer_store_dword v{AV}, v{t0}, s[{S_WS}:{S_WS+3}], s{sC} offen sc0 sc1", tag="init")
        A = AS[0]; B = AS[1]
        p.e(f"""
s_cmp_ge_u32 s{sH}, 9
s_cbranch_scc1 L_nomem0
v_lshrrev_b32 v{t0}, 2, v{n}
v_and_b32 v{t1}, 1, v{n}
v_lshl_add_u32 v{t0}, v{t0}, 1, v{t1}
v_mul_u32_u24 v{t0}, 1152, v{t0}
v_lshl_add_u32 v{t0}, v{g}, 5, v{t0}
v_bfe_u32 v{t1}, v{n}, 1, 1
v_lshl_add_u32 v{t0}, v{t1}, 4, v{t0}
s_lshl_b32 s{sC}, s{sH}, 7
buffer_load_dwordx4 v[{B}:{B+3}], v{t0}, s[{S_M0}:{S_M0+3}], s{sC} offen
s_lshl_b32 s{sC}, s{sH}, 10
s_add_u32 s{sD}, s{sC}, {WS_MH}
s_add_u32 s{sC}, s{sC}, {WS_MEM}
s_waitcnt vmcnt(0)
v_or_b32 v{B}, 1, v{B}
buffer_store_dwordx4 v[{B}:{B+3}], v{vL16}, s[{S_WS}:{S_WS+3}], s{sC} offen sc0 sc1
buffer_store_dwordx4 v[{B}:{B+3}], v{vL16}, s[{S_WS}:{S_WS+3}], s{sD} offen sc0 sc1
L_nomem0:
""")
    p.e("s_waitcnt vmcnt(0) lgkmcnt(0)\ns_barrier")
    p.e(f"""
s_getreg_b32 s{sC}, hwreg(HW_REG_XCC_ID)
s_and_b32 s{sC}, s{sC}, 15
s_mul_i32 s{sD}, s{sC}, s{sC}
s_lshl_b32 s{sD}, s{sD}, 18
s_lshl_b32 s{sC}, s{sC}, 8
s_add_u32 s{sD}, s{sD}, s{sC}
s_add_u32 s58, s{sD}, 1
""")
    if w == 0:
        p.e(f"""
v_mov_b32 v{t0}, s58
v_mov_b32 v{t1}, 0
s_mov_b64 exec, 1
buffer_atomic_add v{t0}, v{t1}, s[{S_DBG}:{S_DBG+3}], 0 offen sc1
s_mov_b64 exec, -1
""")
    for i in range(len(items)):
        consume(i)
        if i + DEPTH < len(items): issue(i + DEPTH)
    nm = f"w{w}{'r' if red else ''}"
    p.e(f"""
{tl(cfg, 1, t0, t1, True)}
v_mov_b32 v{t1}, 0
L_rdv_{nm}:
buffer_load_dword v{t0}, v{t1}, s[{S_DBG}:{S_DBG+3}], 0 offen sc0 sc1
s_sub_u32 s{sBud}, s{sBud}, 1
s_cbranch_scc1 L_exit
s_waitcnt vmcnt(0)
v_readfirstlane_b32 s{sC}, v{t0}
s_and_b32 s{sD}, s{sC}, 0xff
s_cmp_lg_u32 s{sD}, 32
s_cbranch_scc1 L_rdv_{nm}
s_lshl_b32 s{sFL}, s{sH}, 7
s_add_u32 s{sFL}, s{sFL}, {WS_FLG}
{kvwait(nm + 'p') if cfg.get('fused') and w == 0 else ''}
s_barrier
{tl(cfg, 2, t0, t1)}
s_mov_b32 m0, {L_DUM}
s_lshl_b32 s{sD}, s58, 5
s_mov_b32 s{sHALF}, 0x3f003f00
s_mov_b32 s{sHALF+1}, 0x3f003f00
s_mov_b32 s{sSYr}, {WS_SYN}
s_cmp_eq_u32 s{sC}, s{sD}
s_cbranch_scc{'0' if not cfg.get('force_slow') else '1'} L_slow_{nm}
""")

PARAMS = dict(N=2, pd=0, r1=0, r2=0, r3=0, df=0, da=0, ds=0, d2=0, d3=0, a0=4)
SCRIPTS = {
 'base': {'0': "z f t b e", '1': "z f t b", '1r': "y f b wst4 z R r t",
          '2': "y f p7 wst1 d{r1} R b r F z t M4{N}{pd}", '3': "y f b wst3 z R r t"},
 'c':    {'0': "z f t b e", '1': "z f t b", '1r': "z f b wst4 d{r3} R r t",
          '2': "z wst1 d{r1} R f b p7 r d{df} F t d{ds} M0{N}{pd} D0123", '3': "z f b wst3 d{r2} R r t"},
 'ka':   {'0': "z f t b e l", '1': "z f t b", '1r': "z f b wst4 d{r3} R r t",
          '2': "z wst1 d{r1} R f b p7 r d{df} F t d{ds} M4{N}{pd}", '3': "z f b wst3 d{r2} R r t L"},
}
def loop(p, w, red, fast, cfg, probe=None):
    if probe is None:
        topq = []
        loop(Prog(), w, red, fast, cfg, topq)
    else: topq = []
    al = Alloc(w)
    nm = f"w{w}{'r' if red else ''}{'f' if fast else 's'}"
    ST = "" if fast else " sc0 sc1"
    LD = " sc1" if fast else " sc0 sc1"
    WSR = f"s[{S_WS}:{S_WS+3}]"
    a0, a1, a2, a3, a4 = AS
    stamps = cfg.get('stamps')
    sel = cfg.get('sel')
    def stamp(i):
        if cfg.get('trace') is not None and i != 0: return
        if stamps and (sel is None or i in sel or (i == 0 and sel)): p.e(f"s_memtime s[{sST+2*i}:{sST+2*i+1}]")
    acc = {'q': AQ, 'k': AK, 'v': AV}
    SLOT = [WST, a0, a2]
    role = f"{w}{'r' if red and w == 1 else ''}"
    script = {**SCRIPTS[cfg.get('policy', 'base')], **cfg.get('script', {})}[role]
    script = script.format(**{**PARAMS, **cfg.get('par', {})}).split()
    hooks = cfg.get('hooks', {'K': (6, 8, 9, 11), 'P': 14})
    def wreg(key, slot): return al.reg[key] if key in al.reg else SLOT[slot]
    nS = [0]
    def S(m, t, T, a):
        key = (m, t, T)
        if key in al.lds: p.wl("W0")
        for h, pos in hooks.items():
            if nS[0] == (pos[w] if isinstance(pos, tuple) else pos): hook(h)
        nS[0] += 1
        p.e(f"v_smfmac_f32_16x16x64_bf16 {vr(acc[m] + 4*T, 4)}, {vr(a, 4)}, {vr(wreg(key, 0), 8)}, v{vIdx}")
    def fillh(key, slot, h):
        p.e(f"ds_read_b128 {vr(SLOT[slot] + 4*h, 4)}, v{vW} offset:{al.lds[key] + 1024*h}", tag=f"W{slot}")
    def fh(i, T, h): fillh(al.lpairs[i] + (T,), 0, h)
    rdt = lambda t, a: f"ds_read_b128 {vr(a, 4)}, v{vL16} offset:{L_MEM + 1024*t}"
    def rdA(t, a): p.e(rdt(t, a), tag=f"A{t}")
    def dma(ts):
        o = []; cur = None
        for t in ts:
            if t >> 2 != cur:
                cur = t >> 2; o.append((f"s_mov_b32 m0, {L_MEM + 4096*cur}\ns_nop 0", None))
            o.append((f"buffer_load_dwordx4 v{vL16}, {WSR}, s{(sMEMo, sMEM1, sMEM8)[cur]} offen offset:{1024*(t & 3)}{LD} lds", f"D{t}"))
        return o
    def edma(ts):
        for x, tg in dma(ts): p.e(x, tag=tg)
    tdma = lambda ts: "\n".join(x for x, _ in dma(ts)) + "\n"
    PUB = f"buffer_store_dword v{a4+3}, v{vMS}, {WSR}, s{sKM} offen sc0 sc1"
    def zero(r, n): return "\n".join(f"v_mov_b64 {vr(r + i, 2)}, 0" for i in range(0, n, 2))
    BUD = f"s_sub_u32 s{sBud}, s{sBud}, 1\ns_cbranch_scc1 L_exit\n"
    def cnt(i): return f"s_add_u32 s{(96, 97, 98, 95)[i]}, s{(96, 97, 98, 95)[i]}, 1\n" if stamps else ""
    def loadK(which=(0, 1, 2, 3)):
        for x, r in enumerate((KV, KV + 4, VV, VV + 4)):
            if x in which: p.e(f"buffer_load_dwordx4 {vr(r, 4)}, v{vRD if x < 2 else vL16}, {WSR}, s{sKV} offen offset:{1024*x}", tag="K" if x < 2 else "V")
    def hook(h):
        if h[0] == 'K': loadK([int(c) for c in h[1:]] if h[1:] else (0, 1, 2, 3))
        elif h == 'E': edma([4 + w] + ([8] if w == 1 else []))
        elif h == 'P':
            if red: p.e(PUB, tag="pub")
        else: raise Exception(h)
    ADD = lambda d, x, y: p.e(f"v_add_f32 v{d}, v{x}, v{y}")
    CVT = lambda d, x: p.e(f"v_cvt_pk_bf16_f32 v{d}, v{x}, v{x+1}")
    QP = lambda a: f"quad_perm:[{a}] row_mask:0xf bank_mask:0xf"
    MF = "v_mfma_f32_16x16x32_bf16"; M16 = "v_mfma_f32_16x16x16_bf16"
    ck2 = lambda x, y: f"v_bitop3_b32 v{vTmp}, v{x}, v{y}, s{sT} bitop3:0x7e"
    ck1 = lambda x: f"v_bitop3_b32 v{vTmp}, v{vTmp}, v{x}, s{sT} bitop3:0xf6"
    ckA = f"v_and_b32 v{vTmp}, 1, v{vTmp}"; ckC = f"v_cmp_ne_u32 vcc, 0, v{vTmp}"

    TGA = f"v_bfe_u32 v{a4+1}, v{vL16}, 6, 1\nv_lshl_add_u32 v{a4+1}, v{a4+1}, 3, v{vL16}\nv_lshlrev_b32 v{a4+1}, 1, v{a4+1}"
    p.fence()
    if stamps:
        for i in range(60, 100): p.e(f"s_mov_b32 s{i}, 0")
        p.e("s_memtime s[60:61]\ns_memrealtime s[62:63]\ns_waitcnt lgkmcnt(0)\ns_mov_b32 s84, s60\ns_sub_u32 s99, s62, s59")
    loadK()
    p.e(zero(AQ, 24))
    fh(0, 0, 0); fh(0, 0, 1)
    p.e(TGA)
    p.e(f"s_mov_b32 s{sPar}, 1")
    edma(range(9))
    p.e("s_waitcnt vmcnt(0) lgkmcnt(0)")
    p.vmq = [(t, set()) for t in topq]
    p.ldsq = [("W0", set())] * 2
    i_top = len(p.lines)
    p.e(f"L_top_{nm}:")
    p.fence()
    stamp(0)
    b0 = cfg.get('b0', 1)
    p.wv(f"D{b0}"); p.e("s_barrier")
    for t in range(b0 + 1): rdA(t, AS[t])
    for h in cfg.get('top', ('E',)): hook(h)
    if b0 < 3:
        p.wv("D3"); p.e("s_barrier")
        for t in range(b0 + 1, 4): rdA(t, AS[t])
    p.e(f"L_s0_{nm}:")
    refill0 = "\n".join(f"ds_read_b128 {vr(WST + 4*h, 4)}, v{vW} offset:{al.lds[al.lpairs[0] + (0,)] + 1024*h}" for h in range(2))
    p.ool.append(f"L_ra0_{nm}:\n{cnt(0)}s_mov_b32 s{sPar}, 1\n" + tdma(range(4)) + BUD + refill0 + "\n" + zero(AQ, 24) + "\ns_waitcnt vmcnt(0)\n" +
                 "".join(rdt(t, AS[t]) + "\n" for t in range(4)) + f"s_branch L_s0_{nm}")
    p.wl("A0")
    stamp(1)
    S('k', 0, 0, a0)
    S('k', 0, 1, a0)
    S('v', 0, 0, a0)
    S('v', 0, 1, a0)
    p.wl("A1")
    S('q', 1, 0, a1)
    S('q', 0, 0, a0); fh(0, 1, 0)
    S('q', 1, 1, a1); fh(0, 1, 1)
    S('k', 1, 0, a1); p.wl("A3"); p.e(ck2(a0, a1))
    S('k', 1, 1, a1); p.e(f"v_bitop3_b32 v{a4}, v{a2}, v{a3}, s{sT} bitop3:0x7e")
    S('v', 1, 0, a1); p.e(f"v_bitop3_b32 v{vTmp}, v{vTmp}, v{a4}, 1 bitop3:0xa8")
    S('q', 0, 1, a0); fh(1, 0, 0); p.e(ckC)
    S('v', 1, 1, a1); fh(1, 0, 1)
    S('q', 2, 0, a2)
    p.e(f"s_cbranch_vccnz L_ra0_{nm}")
    S('q', 2, 1, a2)
    p.wv([f"D{t}" for t in range(4, 9)]); p.e("s_barrier")
    stamp(2)
    b4, b5, b6, b7, b8 = a4, a0, a1, a2, a3
    p.e(f"ds_read_b32 v{vTmp}, v{a4+1} offset:{L_MEM + 7168}", tag="TG")
    S('k', 2, 0, a2); rdA(5, b5)
    S('q', 3, 0, a3); rdA(6, b6)
    S('k', 2, 1, a2); rdA(4, b4)
    S('v', 2, 0, a2); fh(1, 1, 0)
    S('v', 2, 1, a2); fh(1, 1, 1); p.wl("A5"); p.e(ck2(vTmp, b5))
    S('k', 3, 0, a3); rdA(7, b7); p.wl("A6"); p.e(ck1(b6))
    S('k', 3, 1, a3); p.wl("A4"); p.e(ck1(b4)); p.e(ckA)
    S('v', 3, 0, a3); p.e(ckC)
    S('q', 3, 1, a3); fh(2, 0, 0); p.e(f"v_lshlrev_b32 v{vTmp}, 2, v{vL16}")
    S('v', 3, 1, a3); rdA(8, b8)
    p.e(f"s_cbranch_vccnz L_ra1_{nm}")
    p.e(f"L_a1_{nm}:")
    p.ool.append(f"L_ra1_{nm}:\n{cnt(1)}s_mov_b32 s{sPar}, 1\ns_waitcnt lgkmcnt(0)\ns_barrier\n" + tdma([4 + w] + ([8] if w == 0 else [])) + BUD + f"s_waitcnt vmcnt(0)\ns_barrier\n" +
                 "".join(rdt(t, a) + "\n" for t, a in ((4, b4), (5, b5), (6, b6), (7, b7), (8, b8))) + "s_waitcnt lgkmcnt(0)\n" +
                 "\n".join([ck2(b4, b5), ck1(b6), ck1(b7), ck1(b8), ckA, ckC]) + f"\nv_lshlrev_b32 v{vTmp}, 2, v{vL16}\ns_cbranch_vccnz L_ra1_{nm}\ns_branch L_a1_{nm}")
    pfpos = cfg.get('pf', 'q')
    def PF(pos):
        if pos == pfpos: p.e(f"s_mov_b32 m0, {L_DUM}\ns_nop 0\nbuffer_load_dword v{vTmp}, {WSR}, s{sPF} offen lds", tag="PF")
    PF('a')
    S('q', 5, 0, b5); fh(2, 0, 1)
    S('q', 6, 0, b6)
    p.wl("A7"); S('q', 7, 0, b7)
    p.wl("A8"); S('q', 8, 0, b8)
    S('q', 4, 0, b4); fh(2, 1, 0)
    S('q', 5, 1, b5); fh(2, 1, 1)
    S('q', 6, 1, b6); ADD(AQ, AQ, AQ + 2)
    S('q', 7, 1, b7); ADD(AQ + 1, AQ + 1, AQ + 3)
    S('q', 8, 1, b8); CVT(AQ + 2, AQ)
    S('q', 4, 1, b4); fh(3, 0, 0)
    S('k', 4, 0, b4); fh(3, 0, 1)
    S('k', 6, 0, b6)
    ADD(AQ + 4, AQ + 4, AQ + 6); ADD(AQ + 5, AQ + 5, AQ + 7); CVT(AQ + 3, AQ + 4)
    S('k', 7, 0, b7)
    p.e(f"ds_write_b64 v{vL8}, {vr(AQ+2, 2)} offset:{L_Q + 512*w}", tag="wq")
    S('k', 8, 0, b8)
    PF('q')
    S('k', 5, 0, b5); fh(3, 1, 0)
    S('k', 4, 1, b4); fh(3, 1, 1)
    trq = [f"ds_read_b64_tr_b16 {vr(AQ + 2*x, 2)}, v{vTR} offset:{L_Q + 512*x}" for x in range(4)]
    if cfg.get('bq', 0) == 0:
        p.wl("wq"); p.e("s_barrier")
        S('k', 6, 1, b6); p.e(trq[0], tag="Q0"); p.e(trq[1], tag="Q0"); ADD(AK, AK, AK + 2)
        S('k', 7, 1, b7); p.e(trq[2], tag="Q1"); ADD(AK + 1, AK + 1, AK + 3)
        S('k', 8, 1, b8); p.e(trq[3], tag="Q1"); CVT(AK + 2, AK)
        S('k', 5, 1, b5); fh(4, 1, 0)
    else:
        S('k', 6, 1, b6); ADD(AK, AK, AK + 2)
        p.wl("wq"); p.e("s_barrier")
        S('k', 7, 1, b7); p.e(trq[0], tag="Q0"); p.e(trq[1], tag="Q0"); ADD(AK + 1, AK + 1, AK + 3)
        S('k', 8, 1, b8); p.e(trq[2], tag="Q1"); p.e(trq[3], tag="Q1"); CVT(AK + 2, AK)
        S('k', 5, 1, b5); fh(4, 1, 0)
    stamp(3)
    DX = KV
    p.wv("K"); p.wl("Q0")
    p.e(f"{MF} {vr(DX, 4)}, {vr(KV, 4)}, {vr(AQ, 4)}, 0")
    fh(4, 1, 1)
    p.wl("Q1")
    p.e(f"{MF} {vr(DX, 4)}, {vr(KV+4, 4)}, {vr(AQ+4, 4)}, {vr(DX, 4)}")
    ADD(AK + 4, AK + 4, AK + 6); ADD(AK + 5, AK + 5, AK + 7); CVT(AK + 3, AK + 4)
    p.e(f"ds_write_b64 v{vL8}, {vr(AK+2, 2)} offset:{L_K + 512*w}", tag="wk")
    S('v', 4, 0, b4)
    p.e(f"v_add_f32_dpp v{DX}, v{DX+2}, v{DX} {QP('2,3,0,1')}")
    p.e(f"v_add_f32_dpp v{DX+1}, v{DX+3}, v{DX+1} {QP('2,3,0,1')}")
    p.e(f"ds_write_b64 v{vXr}, {vr(DX, 2)} offset:{L_XS + 256*w}", tag="wx")
    S('v', 4, 1, b4)
    PF('k')
    trk = [f"ds_read_b64_tr_b16 {vr(AK + 2*x, 2)}, v{vTR} offset:{L_K + 512*x}" for x in range(4)]
    X, P_, DM, DL, ONE, DO = KV, KV + 4, AK, AK + 4, a4, AQ
    wkey = lambda i: ('o',) + al.wo_l[i]
    p.wl("wk"); p.e("s_barrier")
    p.e(trk[0], tag="K0")
    S('v', 5, 0, b5); p.e(trk[1], tag="K0"); p.e(trk[2], tag="K1")
    S('v', 5, 1, b5); p.e(trk[3], tag="K1"); p.e(f"v_mov_b64 {vr(ONE, 2)}, s[{sONE}:{sONE+1}]")
    p.wl("wx"); p.e("s_barrier")
    p.e(f"ds_read_b128 {vr(X, 4)}, v{vL16} offset:{L_XS}", tag="X")
    S('v', 8, 1, b8); fh(4, 0, 0); p.e(f"v_mov_b64 {vr(ONE+2, 2)}, s[{sONE}:{sONE+1}]")
    p.wl("K0")
    p.e(f"{MF} {vr(DM, 4)}, {vr(AK, 4)}, {vr(AQ, 4)}, 0")
    fh(4, 0, 1)
    p.wl("K1")
    p.e(f"{MF} {vr(DM, 4)}, {vr(AK+4, 4)}, {vr(AQ+4, 4)}, {vr(DM, 4)}")
    stamp(4)
    PF('m')
    MS_, MX, T1, T2 = P_, P_ + 1, P_ + 2, P_ + 3
    M = AQ
    S('v', 6, 1, b6); p.wl("X"); p.e(f"v_max3_f32 v{MX}, v{X}, v{X+1}, v{X+2}")
    S('v', 6, 0, b6); fillh(wkey(1), 1, 0)
    p.e(f"""
v_add_f32_dpp v{DM}, v{DM+2}, v{DM} {QP('2,3,0,1')}
v_add_f32_dpp v{DM+1}, v{DM+3}, v{DM+1} {QP('2,3,0,1')}
v_max_f32 v{MX}, v{MX}, v{X+3}
v_max_f32 v{MS_}, v{DM}, v{DM+1}
v_mul_f32 v{MS_}, s{sSC}, v{MS_}
v_max_f32_dpp v{MX}, v{MX}, v{MX} {QP('2,3,0,1')}
""")
    S('v', 7, 1, b7); fillh(wkey(1), 1, 1)
    p.e(f"""
v_max_f32_dpp v{T1}, v{MS_}, v{MX} {QP('0,1,0,1')}
v_max_f32_dpp v{T2}, v{MS_}, v{MX} {QP('0,1,0,1')}
""")
    S('v', 7, 0, b7); fillh(wkey(2), 2, 0)
    p.e(f"""
v_permlane16_swap_b32 v{T1}, v{T2}
v_max_f32 v{M}, v{T1}, v{T2}
v_max_f32 v{M+1}, v{T1}, v{T2}
""")
    S('v', 8, 0, b8); fillh(wkey(2), 2, 1)
    p.e(f"""
v_permlane32_swap_b32 v{M}, v{M+1}
v_max_f32 v{M}, v{M}, v{M+1}
v_sub_f32 v{X}, v{X}, v{M}
v_sub_f32 v{X+1}, v{X+1}, v{M}
v_pk_add_f32 {vr(X+2, 2)}, {vr(X+2, 2)}, {vr(M, 2)} op_sel_hi:[1,0] neg_lo:[0,1] neg_hi:[0,1]
v_exp_f32 v{X}, v{X}
v_exp_f32 v{X+1}, v{X+1}
v_exp_f32 v{X+2}, v{X+2}
v_exp_f32 v{X+3}, v{X+3}
v_cvt_pk_bf16_f32 v{P_}, v{X}, v{X+1}
v_cvt_pk_bf16_f32 v{P_+1}, v{X+2}, v{X+3}
v_pk_fma_f32 {vr(DM, 2)}, {vr(DM, 2)}, s[{sSC}:{sSC+1}], {vr(M, 2)} op_sel_hi:[1,1,0] neg_lo:[0,0,1] neg_hi:[0,0,1]
v_mov_b32_dpp v{P_+2}, v{P_} {QP('2,3,0,1')}
v_mov_b32_dpp v{P_+3}, v{P_+1} {QP('2,3,0,1')}
v_exp_f32 v{DM}, v{DM}
""")
    p.wv("V")
    stamp(5)
    PM, HALF = X, X + 2
    p.e(f"""
{MF} {vr(DL, 4)}, {vr(ONE, 4)}, {vr(P_, 4)}, 0
v_exp_f32 v{DM+1}, v{DM+1}
{MF} {vr(DO, 4)}, {vr(VV, 4)}, {vr(P_, 4)}, 0
v_cvt_pk_bf16_f32 v{PM}, v{DM}, v{DM+1}
v_cvt_pk_bf16_f32 v{PM+1}, v{DM}, v{DM+1}
v_mov_b64 {vr(HALF, 2)}, s[{sHALF}:{sHALF+1}]
{MF} {vr(DO+4, 4)}, {vr(VV+4, 4)}, {vr(P_, 4)}, 0
v_cvt_pk_bf16_f32 v{AV}, v{AV}, v{AV+1}
v_cvt_pk_bf16_f32 v{AV+1}, v{AV+2}, v{AV+3}
{M16} {vr(DL, 4)}, {vr(HALF, 2)}, {vr(PM, 2)}, {vr(DL, 4)}
v_cvt_pk_bf16_f32 v{AV+2}, v{AV+4}, v{AV+5}
v_cvt_pk_bf16_f32 v{AV+3}, v{AV+6}, v{AV+7}
{M16} {vr(DO, 4)}, {vr(AV, 2)}, {vr(PM, 2)}, {vr(DO, 4)}
""")
    fillh(wkey(0), 0, 0)
    p.e(f"{M16} {vr(DO+4, 4)}, {vr(AV+2, 2)}, {vr(PM, 2)}, {vr(DO+4, 4)}")
    fillh(wkey(0), 0, 1)
    DACC = [DM, a4, AV + 4, AV, DL]
    p.e(f"v_rcp_f32 v{DL}, v{DL}")
    p.e(zero(DACC[0], 4))
    OA = [KV, KV + 4, VV, VV + 4]
    rdO = lambda j: p.e(f"ds_read_b128 {vr(OA[j], 4)}, v{vOr} offset:{L_MEM + 1024*(4 + (w+j) % 4)}", tag=f"O{j}")
    for T in range(2):
        for j in range(2): p.e(f"v_pk_mul_f32 {vr(DO+4*T+2*j, 2)}, {vr(DO+4*T+2*j, 2)}, {vr(DL, 2)} op_sel_hi:[1,0]")
        CVT(DO + 4*T, DO + 4*T); CVT(DO + 4*T + 1, DO + 4*T + 2)
        p.e(f"ds_write_b64 v{vL16}, {vr(DO + 4*T, 2)} offset:{L_MEM + 1024*(4+w) + 8*T}", tag="wo")
    zs = (zero(DACC[1], 4) + "\n" + zero(DACC[2], 4) + "\n" + zero(DACC[3], 4) + "\n" + zero(DACC[4], 4)).split("\n")
    p.e(zs.pop(0))
    rdO(0)
    for _ in range(cfg.get('oz', 7)): p.e(zs.pop(0))
    p.wl("wo"); p.e("s_barrier")
    rdO(1)
    if cfg.get('ord', 0) == 0: rdO(2); rdO(3)
    pend = []
    fq = []; nxt = [3]
    extra = zs
    for i, (k, j) in enumerate(al.wo_order):
        key = ('o', k, j)
        p.wl(f"O{j}")
        if key in al.lds:
            sl = al.wo_l.index((k, j)) % 3
            assert not any(x[0] == key for x in fq)
            p.wl(f"W{sl}")
        else: sl = None
        p.e(f"v_smfmac_f32_16x16x64_bf16 {vr(DACC[k], 4)}, {vr(OA[j], 4)}, {vr(wreg(key, sl), 8)}, v{vIdx} abid:1")
        if sl is not None and nxt[0] < len(al.wo_l):
            fq += [(wkey(nxt[0]), sl, 0), (wkey(nxt[0]), sl, 1)]; nxt[0] += 1
        if cfg.get('ord', 0) == 1 and i == 0: rdO(2); rdO(3)
        if fq and i >= cfg.get('wofd', 1): fillh(*fq.pop(0))
        if pend and pend[0][0] <= i:
            _, ops = pend.pop(0)
            for o, tg in ops: p.e(o, tag=tg)
        elif extra: p.e(extra.pop(0))
        if j == 3:
            d = DACC[k]
            c0 = (f"v_cvt_pk_bf16_f32 v{d}, v{d}, v{d+1}", None)
            c1 = (f"v_cvt_pk_bf16_f32 v{d+1}, v{d+2}, v{d+3}", None)
            c2 = (f"v_bfi_b32 v{d}, 1, s{sT}, v{d}", None)
            c3 = (f"buffer_store_dwordx2 {vr(d, 2)}, v{vST}, {WSR}, s{sX[k]} offen{ST}", f"st{k}")
            if k <= cfg.get('wo_burst', 1): pend.append((i + 2, [c0, c1, c2, c3]))
            else: pend += [(i + 2, [c0]), (i + 3, [c1]), (i + 4, [c2, c3])]
        if i == 6: stamp(7)
    assert not extra
    for _, ops in pend:
        for o, tg in ops: p.e(o, tag=tg)
    stamp(8)
    if stamps:
        stamp(11)
        if cfg.get('abs'): p.e(f"s_memrealtime s[{sST+4}:{sST+5}]")
        if sel is None or sel: p.e("s_waitcnt lgkmcnt(0)")
        if cfg.get('abs'):
            p.e(f"s_lshl_b64 exec, 1, s{sS}")
            for i in range(12):
                if i in (0, 2) or i in sel: p.e(f"v_mov_b32 v{80+i}, s{sST+2*i}")
            for i in range(4): p.e(f"v_mov_b32 v{92+i}, s{95+i}")
            p.e("s_mov_b64 exec, -1")
        else:
            for i in range(1, 12):
                if sel is None or i in sel: p.e(f"s_sub_u32 s{sA}, s{sST+2*i}, s{sST}\ns_add_u32 s{84+i}, s{84+i}, s{sA}")
        p.e(f"s_cmp_eq_u32 s{sS}, 3\ns_cbranch_scc1 L_rst_{nm}")
        p.ool.append(f"L_rst_{nm}:\ns_memtime s[60:61]\ns_waitcnt lgkmcnt(0)\ns_sub_u32 s59, s60, s84\ns_mov_b32 s84, s60\n" + "".join(f"s_mov_b32 s{i}, 0\n" for i in range(85, 99)) + f"s_branch L_ex_{nm}")
    p.e(f"s_branch L_ex_{nm}")
    i_ex = len(p.lines)
    p.e(f"L_ex_{nm}:")
    RD = VV; t1, t2 = VV + 4, VV + 5
    RL = "\n".join(f"buffer_load_dwordx4 {vr(a0+4*i, 4)}, v{vRD}, {WSR}, s{sRU} offen offset:{1024*i}{LD}" for i in range(4))
    def delay(c):
        while c > 0:
            k = min(c, 16); p.e(f"s_nop {k-1}"); c -= k
    def book():
        if red:
            p.e(f"v_and_b32 v{vTmp}, 0x70, v{vL16}")
            p.e(f"ds_read_b128 {vr(SEL, 4)}, v{vTmp} offset:{L_SEL}", tag="SEL")
        p.e(f"s_add_u32 s{sS}, s{sS}, 1\ns_add_u32 s{sKV}, s{sKV}, {0 if cfg.get('nokv') else 524288}\ns_add_u32 s{sPF}, s{sPF}, 524288")
        p.e(f"s_mul_i32 s{sKM}, s{sS}, {MHS}\ns_add_u32 s{sKM}, s{sKM}, {WS_MH - WS_MEM}\ns_not_b32 s{sT}, s{sT}\ns_not_b32 s{sTn}, s{sTn}")
    for act in script:
        op, arg = act[0], act[1:]
        if op == 'y': book()
        elif op == 'z':
            if 'y' not in script: book()
            p.e(zero(AQ, 24))
            if not red:
                p.e(f"s_cmp_eq_u32 s{sS}, 63\ns_cbranch_scc1 L_done_{nm}")
        elif op == 'e':
            if cfg.get('fused'):
                p.e(f"s_cmp_ge_u32 s{sS}, s{sEv}\ns_cbranch_scc1 L_ev_{nm}\nL_evb_{nm}:")
                p.ool.append(f"L_ev_{nm}:\n" + kvwait(nm) + f"s_branch L_evb_{nm}")
        elif op == 'f': fh(0, 0, 0); fh(0, 0, 1)
        elif op == 't': p.e(TGA)
        elif op == 'L':
            p.e(f"v_mov_b32 v{vTmp}, s{sS}"); p.e(f"ds_write_b32 v{vL16}, v{vTmp} offset:{L_K}", tag="lf")
        elif op == 'l':
            p.e(f"v_mov_b32 v{a1+3}, 0\nL_lw_{nm}:")
            p.e(f"ds_read_b32 v{a1+3}, v{vL16} offset:{L_K}", tag="!lw")
            p.e(f"v_cmp_ne_u32 vcc, s{sS}, v{a1+3}\ns_sub_u32 s{sBud}, s{sBud}, 1\n{zero(AQ, 4)}\ns_cbranch_scc1 L_exit\n{zero(AK, 6)}\ns_cbranch_vccnz L_lw_{nm}")
        elif op == 'w': p.wv(arg)
        elif op == 'd': delay(int(arg))
        elif op == 'R':
            for i, x in enumerate(RL.split("\n")): p.e(x, tag=f"R{i}")
            stamp(9)
        elif op == 'r':
            p.wl("SEL")
            p.wv("R0")
            p.e(f"L_r_{nm}:")
            for i in range(4):
                p.wv(f"R{i}")
                p.e(f"{MF} {vr(RD, 4)}, {vr(a0 + 4*i, 4)}, {vr(SEL, 4)}, {vr(RD, 4) if i else 0}")
                if i == 1: p.e(f"v_bitop3_b32 v{t1}, v{a0}, v{a1}, s{sTn} bitop3:0x7e")
            p.e(f"""
v_bitop3_b32 v{t2}, v{a2}, v{a3}, s{sTn} bitop3:0x7e
v_bitop3_b32 v{t1}, v{t1}, v{t2}, 1 bitop3:0xa8
v_cmp_ne_u32 vcc, 0, v{t1}
s_cmp_eq_u32 s{sS}, 63
v_pk_add_f32 {vr(RD, 2)}, {vr(RD, 2)}, {vr(RD+2, 2)}
v_cvt_pk_bf16_f32 v{t1}, v{RD}, v{RD+1}
v_bfi_b32 v{t1}, v{vMask}, s{sT}, v{t1}
s_cbranch_vccnz L_rr_{nm}
""")
            p.ool.append(f"L_rr_{nm}:\n{RL}\n{cnt(2)}{BUD}s_waitcnt vmcnt(0)\ns_branch L_r_{nm}")
            p.e(f"buffer_store_dword v{t1}, v{vMS}, {WSR}, 0 offen{ST}", tag="ms")
            stamp(10)
            p.e(f"v_mov_b32 v{a4+3}, v{t1}\ns_cbranch_scc1 L_done_{nm}")
        elif op in 'KP':
            if act not in hooks and act not in cfg.get('top', ('E',)) and not (op == 'K' and cfg.get('nok')): hook(act)
        elif op == 'b': p.e("s_barrier")
        elif op == 'D':
            edma([int(c) for c in arg])
            if arg[0] == '0': stamp(6)
        elif op == 'p':
            p.e(f"v_bfe_u32 v{vTmp}, v{vL16}, 2, {arg}\nv_mov_b32 v{KV}, s{sTn}\nv_mov_b32 v{KV+1}, s{sT}\ns_mov_b32 m0, {L_MEM}")
        elif op == 'F':
            p.e("s_mov_b64 exec, 1"); p.e(f"buffer_store_dword v{KV+1}, v{vL16}, {WSR}, s{sSYw} offen{ST}", tag="fl"); p.e("s_mov_b64 exec, -1")
        elif op == 'M':
            n, N = int(arg[0]), int(arg[1])
            if not fast: N = 1
            p.e(f"L_sp_{nm}:")
            p.e(f"buffer_load_dword v{KV}, v{vTmp}, {WSR}, s{sSYr} offen{LD}", tag="!sp")
            p.e(f"{cnt(3)}s_sub_u32 s{sBud}, s{sBud}, 1\ns_cbranch_scc1 L_exit")
            delay(cfg.get('lag', 0))
            for x, tg in dma(range(n))[1:]: p.e(x, tag="x")
            delay(int(arg[2:] or 0))
            p.e(f"s_waitcnt vmcnt({(N-1)*(n+1) + n})\nv_cmp_ne_u32 vcc, s{sT}, v{KV}\ns_cbranch_vccnz L_sp_{nm}")
            p.vmq = [(f"D{t}", set()) for t in range(n)] + [("!x", set())] * ((N-1)*(n+1))
            stamp(6)
        else: raise Exception(act)
    if probe is not None: probe.extend(t for t, _ in p.vmq)
    ls = p.lines
    p.lines = ls[:i_top] + [f"s_branch L_top_{nm}", ".p2align 6"] + ls[i_ex:] + ls[i_top:i_ex]
    p.e(f"L_done_{nm}:")
    p.fence(); p.ldsq = []; p.vmq = []
    if red: p.e(PUB)
    p.e(tl(cfg, 4, AK, AK + 1))
    if cfg.get('abs'):
        p.e(f"s_lshl_b32 s{sA}, s{sH}, 14\ns_add_u32 s{sA}, s{sA}, {0x100000 + 4096*w}")
        for i in range(4): p.e(f"buffer_store_dwordx4 v[{80+4*i}:{83+4*i}], v{vL16}, {WSR}, s{sA} offen offset:{1024*i}")
    if stamps:
        p.e("s_memtime s[60:61]\ns_waitcnt lgkmcnt(0)\ns_sub_u32 s84, s60, s84")
        p.e(f"s_lshl_b32 s{sA}, s{sH}, 8\ns_add_u32 s{sA}, s{sA}, {WS_STMP + 64*w}\ns_waitcnt vmcnt(0) lgkmcnt(0)\nv_mov_b32 v{vL16}, 0")
        p.e("s_lshr_b32 s59, s59, 4\ns_lshl_b32 s59, s59, 16\ns_or_b32 s99, s99, s59")
        for i in range(16): p.e(f"v_mov_b32 v{20+i}, s{84+i}")
        for i in range(4): p.e(f"buffer_store_dwordx4 v[{20+4*i}:{23+4*i}], v{vL16}, {WSR}, s{sA} offen offset:{16*i}")
    p.e("s_waitcnt vmcnt(0) lgkmcnt(0)\ns_endpgm")

def chain_body(cfg):
    out = []
    p = Prog()
    if cfg.get('stamps'): p.e("s_memrealtime s[98:99]\ns_waitcnt lgkmcnt(0)\ns_mov_b32 s59, s98")
    setup_common(p)
    p.e(f"""
v_lshrrev_b32 v1, 6, v0
v_readfirstlane_b32 s{sW}, v1
s_cmp_eq_u32 s{sW}, 0
s_cbranch_scc1 L_pro_w0
s_cmp_eq_u32 s{sW}, 2
s_cbranch_scc1 L_pro_w2r
s_cmp_eq_u32 s{sW}, 3
s_cbranch_scc1 L_pro_w3r
s_cmp_lt_u32 s{sH}, 8
s_cbranch_scc1 L_pro_w1r
s_branch L_pro_w1
L_exit:
s_endpgm
""")
    out.append(p.text())
    for w, red in ((0, False), (1, False), (1, True), (2, True), (3, True)):
        nm = f"w{w}{'r' if red else ''}"
        p = Prog()
        p.ldsq.append(('smem', set()))
        p.e(f"L_pro_{nm}:")
        prologue(p, w, red, cfg)
        n0 = p.nops_added
        loop(p, w, red, True, cfg)
        if cfg.get('verbose'): print(nm, "nops in loop", p.nops_added - n0)
        if cfg.get('trace') is not None:
            nv = len(cfg['trace'])
            txt = p.text(); i0 = txt.index(f"s_cbranch_scc0 L_slow_{nm}\n") + len(f"s_cbranch_scc0 L_slow_{nm}\n")
            pro, body = txt[:i0], txt[i0:]
            o = pro.replace("L_exit", f"L_exit_{nm}") + f"L_slow_{nm}:\ns_and_b32 s{sA}, s{sH}, {nv-1}\n"
            for v in range(nv): o += f"s_cmp_eq_u32 s{sA}, {v}\ns_cbranch_scc1 L_var{v}_{nm}\n"
            o += "s_endpgm\n"
            for v in range(nv):
                ls = body.split("\n")
                top = ls.index(f"L_ex_{nm}f:"); tp2 = ls.index(f"L_top_{nm}f:")
                if cfg.get('solo'):
                    dn = ls.index(f"L_done_{nm}f:")
                    ls = ls[:top] + [x for x in ls[top:dn] if not (x.startswith('buffer_') and cfg['solo'] in x) ] + ls[dn:]
                cfg.setdefault('listing', {})[nm] = ls[top:]
                if cfg.get('refbar'):
                    bars = [x for x in range(tp2, len(ls)) if ls[x] == 's_barrier']
                    ls.insert(bars[cfg['refbar'] - 1] + 1, ls[tp2 + 1]); del ls[tp2 + 1]
                    cfg['listing'][nm] = ls[top:]
                for k, pos in sorted(enumerate(cfg['trace'][v]), key=lambda x: -x[1]):
                    ls.insert(top + pos, f"s_memtime s[{sST+2*k+2}:{sST+2*k+3}]")
                o += f"L_var{v}_{nm}:\n" + re.sub(rf"(L_\w+_{nm}f)", rf"\1_{v}", "\n".join(ls)).replace("L_exit", f"L_exit_{nm}")
            out.append(o + f"L_exit_{nm}:\ns_endpgm\n")
            continue
        out.append(p.text())
        p = Prog()
        p.e(f"L_slow_{nm}:")
        loop(p, w, red, False, cfg)
        out.append(p.text())
    t = "".join(out)
    if cfg.get('nocheck'): t = re.sub(r"s_cbranch_vccnz L_r\w+", "s_nop 0", t)
    if cfg.get('nosm'): t = re.sub(r"v_smfmac[^\n]*", "s_nop 0", t)
    if cfg.get('nobar'): t = re.sub(r"s_barrier", "s_nop 0", t)
    return t

if __name__ == "__main__":
    t = chain_body({'verbose': True})
    open('chain_body.s', 'w').write('.amdgcn_target "amdgcn-amd-amdhsa--gfx950"\n.text\n' + t)
```

```python
from asmgen import *
from chain import WS_MH, MHS, WS_KVX, WS_BYTES, WS_FLG, SCALE, tl
import math, struct
WS_QX  = 0x3000000
WS_O   = 0x4000000
WS_OA  = 0x5000000
WS_OMG = 0x5300000
F_KV = WS_FLG
F_O = WS_FLG + 4096
f2u = lambda x: struct.unpack('<I', struct.pack('<f', x))[0]
NEG = f2u(-1e30)
SC = " sc0 sc1"
S_WS, S_X, S_W0, S_W1, S_W2, S_DBG, S_OUT, S_G = 4, 8, 12, 16, 20, 24, 28, 64
sP0, sP1, sW, sI, sBud = 32, 33, 34, 35, 36
sA, sB, sC, sD, sE, sF = 37, 38, 39, 40, 41, 42
sXs, sXm = 43, 44
sSCp = 46
sP2, sP3 = 48, 49
def R(b): return f"s[{b}:{b+3}]"
def srd(p, b, slot, n):
    p.e(f"s_load_dwordx2 s[{b}:{b+1}], s[0:1], {slot}\ns_mov_b32 s{b+2}, {n}\ns_mov_b32 s{b+3}, 0x20000")
MF = "v_mfma_f32_16x16x32_bf16"
XBUF = 36864

def poll(p, name, srdb, vaddr, soff, off, vt, test, sleep=4):
    p.e(f"""
s_branch {name}_in
{name}:
s_sleep {sleep}
{name}_in:
buffer_load_dword v{vt}, v{vaddr}, {R(srdb)}, {soff} offen offset:{off}{SC}
s_sub_u32 s{sBud}, s{sBud}, 1
s_cbranch_scc1 L_exit_w
s_waitcnt vmcnt(0)
{test}
s_cbranch_scc0 {name}
""")

def lanes(p, l, n, g):
    p.e(f"v_and_b32 v{l}, 63, v0\nv_and_b32 v{n}, 15, v0\nv_bfe_u32 v{g}, v0, 4, 2\nv_lshrrev_b32 v1, 6, v0\nv_readfirstlane_b32 s{sW}, v1")

def x_addr(p, vXg, vXr, l, n, g, t0, t1):
    p.e(f"""
v_lshrrev_b32 v{t0}, 2, v{l}
v_mul_u32_u24 v{vXg}, 1152, v{t0}
v_lshrrev_b32 v{t0}, 5, v{l}
v_lshlrev_b32 v{t0}, 1, v{t0}
v_and_b32 v{t1}, 3, v{l}
v_xor_b32 v{t0}, v{t0}, v{t1}
v_lshl_add_u32 v{vXg}, v{t0}, 4, v{vXg}
v_lshrrev_b32 v{t0}, 3, v{n}
v_lshlrev_b32 v{t0}, 1, v{t0}
v_xor_b32 v{t0}, v{t0}, v{g}
v_lshlrev_b32 v{t0}, 4, v{t0}
v_lshl_add_u32 v{vXr}, v{n}, 6, v{t0}
""")

def x_dma(j, vXg):
    return f"s_add_u32 s{sA}, s{sXs}, {128*j}\ns_add_u32 m0, s{sXm}, {4096*j}\ns_nop 0\nbuffer_load_dwordx4 v{vXg}, {R(S_X)}, s{sA} offen lds"

def load_weights(p, pairs, rowstride, vTr, sRing, nslot, wreg, mid=None):
    items = [(pi, kk) for pi in range(len(pairs)) for kk in range(9)]
    D = nslot - 1
    def issue(i):
        pi, kk = items[i]; b, va, so = pairs[pi]
        for d in range(4):
            p.e(f"s_add_u32 s{sA}, s{so}, {(64*kk + 16*d) * rowstride}\ns_add_u32 m0, s{sRing}, {4096*(i % nslot) + 1024*d}")
            p.e(f"buffer_load_dwordx4 v{va}, {R(b)}, s{sA} offen lds", tag=f"d{i}")
    for i in range(D): issue(i)
    if mid: mid()
    for i, (pi, kk) in enumerate(items):
        p.wv(f"d{i}")
        for T in range(2):
            for k2 in range(2):
                for q in range(2):
                    p.e(f"ds_read_b64_tr_b16 {vr(wreg(2*pi + T, 2*kk + k2) + 2*q, 2)}, v{vTr} offset:{4096*(i % nslot) + 2048*k2 + 256*q + 32*T}", tag="tr")
        p.e("s_waitcnt lgkmcnt(0)")
        if i + D < len(items): issue(i + D)

def gemm_block(p, NT, wreg, accreg, XS, vXr, vXg, w_is_a, mid=None):
    def rd(ks):
        for tt in range(2): p.e(f"ds_read_b128 {vr(XS + 8*(ks & 1) + 4*tt, 4)}, v{vXr} offset:{(2*ks + tt) * 1024}", tag=f"x{ks}")
    rd(0)
    for ks in range(18):
        if ks + 1 < 18: rd(ks + 1)
        p.wl(f"x{ks}")
        for ti in range(NT):
            for tt in range(2):
                a = accreg(ti, tt); x = vr(XS + 8*(ks & 1) + 4*tt, 4); wv = vr(wreg(ti, ks), 4)
                A, B = (wv, x) if w_is_a(ti) else (x, wv)
                p.e(f"{MF} {vr(a, 4)}, {A}, {B}, {vr(a, 4) if ks else 0}")
            if ti == 1 and ks < 9: p.e(x_dma(ks, vXg), tag="xd")
            if ti == 1 and ks == 10 and mid: mid()

def tr_addr(p, v, n, g, t0, rowbytes, gmul):
    p.e(f"""
v_lshrrev_b32 v{t0}, 2, v{n}
v_lshl_add_u32 v{t0}, v{g}, {gmul.bit_length()-1}, v{t0}
v_mul_u32_u24 v{v}, {rowbytes}, v{t0}
v_and_b32 v{t0}, 3, v{n}
v_lshl_add_u32 v{v}, v{t0}, 3, v{v}
""")

def role_q(cfg):
    p = Prog()
    sH, sR = sP0, sP1
    vL16, vXg, vXr, vKst, vGq, vGv, vTr, vZ, l, n, g, t0, t1 = range(1, 14)
    ACC, XS, WB = 16, 64, 80
    wreg = lambda ti, ks: WB + 72*ti + 4*ks
    acc = lambda ti, tt: ACC + 8*ti + 4*tt
    p.e("L_role_q:")
    srd(p, S_WS, 104, WS_BYTES); srd(p, S_X, 0, 2359296); srd(p, S_W0, 40, 4718592); srd(p, S_W1, 48, 4718592); srd(p, S_W2, 56, 4718592); srd(p, S_DBG, 96, 256)
    lanes(p, l, n, g)
    x_addr(p, vXg, vXr, l, n, g, t0, t1)
    tr_addr(p, vTr, n, g, t0, 64, 8)
    p.e(f"""
v_lshlrev_b32 v{vL16}, 4, v{l}
s_mul_i32 s{sB}, s{sW}, 20480
s_add_u32 s{sB}, s{sB}, {2*XBUF}
v_add_u32 v{vTr}, s{sB}, v{vTr}
v_lshrrev_b32 v{t0}, 2, v{l}
v_lshlrev_b32 v{t0}, 13, v{t0}
v_and_b32 v{t1}, 3, v{l}
v_lshl_add_u32 v{vGv}, v{t1}, 4, v{t0}
v_and_b32 v{t1}, 1, v{l}
v_lshl_add_u32 v{vGq}, v{t1}, 4, v{t0}
v_bfe_u32 v{t1}, v{l}, 1, 1
v_lshl_add_u32 v{vGq}, v{t1}, 6, v{vGq}
s_lshl_b32 s{sC}, s{sH}, 8
s_lshl_b32 s{sD}, s{sW}, 6
s_add_u32 s{sD}, s{sD}, s{sC}
s_lshr_b32 s{sE}, s{sW}, 1
s_lshl_b32 s{sE}, s{sE}, 7
s_add_u32 s{sC}, s{sC}, s{sE}
s_and_b32 s{sE}, s{sW}, 1
s_lshl_b32 s{sE}, s{sE}, 5
s_add_u32 s{sC}, s{sC}, s{sE}
s_lshl_b32 s{sXs}, s{sR}, 1
s_and_b32 s{sE}, s{sW}, 1
s_add_u32 s{sXs}, s{sXs}, s{sE}
s_mul_i32 s{sXs}, s{sXs}, 18432
s_lshr_b32 s{sE}, s{sW}, 1
s_lshl_b32 s{sE}, s{sE}, 6
s_add_u32 s{sXs}, s{sXs}, s{sE}
s_lshl_b32 s{sXm}, s{sW}, 10
s_mov_b32 s{sBud}, {cfg.get('budget', 400000)}
s_mov_b32 s{sSCp}, {SCALE:#x}
s_mov_b32 s{sSCp+1}, {SCALE:#x}
v_mov_b32 v{vZ}, 0
; vKst = (n>>2)*4096 + g*256 + (n&3)*16
v_lshrrev_b32 v{t0}, 2, v{n}
v_lshlrev_b32 v{vKst}, 12, v{t0}
v_lshl_add_u32 v{vKst}, v{g}, 8, v{vKst}
v_and_b32 v{t0}, 3, v{n}
v_lshl_add_u32 v{vKst}, v{t0}, 4, v{vKst}
s_waitcnt lgkmcnt(0)
""")
    def mid():
        for j in range(9): p.e(x_dma(j, vXg), tag="xd")
    load_weights(p, [(S_W0, vGq, sC), (S_W1, vGq, sC), (S_W2, vGv, sD)], 8192, vTr, sB, 5, wreg, mid)
    sQ, sK, sV = sC, sD, sE
    p.e(tl(cfg, 1, t0, t1, True))
    p.e(f"""
s_lshl_b32 s{sF}, s{sR}, 5
s_add_u32 s{sF}, s{sF}, s{sH}
s_lshl_b32 s{sQ}, s{sF}, 13
s_lshl_b32 s{sA}, s{sW}, 11
s_add_u32 s{sQ}, s{sQ}, s{sA}
s_add_u32 s{sQ}, s{sQ}, {WS_QX}
s_lshl_b32 s{sK}, s{sF}, 14
s_add_u32 s{sK}, s{sK}, {WS_KVX}
s_lshl_b32 s{sA}, s{sW}, 12
s_add_u32 s{sV}, s{sK}, s{sA}
s_lshr_b32 s{sA}, s{sW}, 1
s_lshl_b32 s{sA}, s{sA}, 10
s_add_u32 s{sK}, s{sK}, s{sA}
s_and_b32 s{sA}, s{sW}, 1
s_lshl_b32 s{sA}, s{sA}, 6
s_add_u32 s{sK}, s{sK}, s{sA}
s_mov_b32 s{sI}, 0
s_mov_b32 s{sP2}, {XBUF}
s_lshl_b32 s{sP3}, s{sH}, 5
s_lshl_b32 s{sA}, s{sR}, 2
s_add_u32 s{sP3}, s{sP3}, s{sA}
s_add_u32 s{sP3}, s{sP3}, s{sW}
s_lshl_b32 s{sP3}, s{sP3}, 2
s_add_u32 s{sP3}, s{sP3}, {F_KV}
""")
    poll(p, "L_q_init", S_DBG, vZ, 0, 0, t0, f"v_readfirstlane_b32 s{sA}, v{t0}\ns_and_b32 s{sA}, s{sA}, 0xff\ns_cmp_eq_u32 s{sA}, 32")
    PROG = f"v_mov_b32 v{t0}, s{sI}\ns_mov_b64 exec, 1\nbuffer_store_dword v{t0}, v{vZ}, {R(S_WS)}, s{sP3} offen{SC}\ns_mov_b64 exec, -1"
    def prog():
        p.wv("st"); p.e(PROG, tag="pg")
    p.raw(".p2align 6")
    p.e("L_q_loop:")
    p.fence(); p.vmq = [("xd", set()), ("pg", set())] + [("st", set())] * 6
    p.wv("xd")
    p.e(f"""
s_barrier
s_add_u32 s{sXs}, s{sXs}, {4*XBUF}
s_add_u32 s{sXm}, s{sXm}, s{sP2}
""")
    gemm_block(p, 6, wreg, acc, XS, vXr, vXg, lambda ti: ti < 4, prog)
    p.e(f"v_add_u32 v{vXr}, s{sP2}, v{vXr}\ns_sub_u32 s{sP2}, 0, s{sP2}")
    def pack(d, a, b):
        for i, x in enumerate((a, a + 2, b, b + 2)): p.e(f"v_cvt_pk_bf16_f32 v{d+i}, v{x}, v{x+1}")
    for tt in range(2):
        pack(XS + 4*tt, acc(0, tt), acc(1, tt))
        p.e(f"buffer_store_dwordx4 {vr(XS + 4*tt, 4)}, v{vL16}, {R(S_WS)}, s{sQ} offen offset:{1024*tt}", tag="st")
    for x in range(acc(2, 0), acc(4, 0), 2): p.e(f"v_pk_mul_f32 {vr(x, 2)}, {vr(x, 2)}, s[{sSCp}:{sSCp+1}]")
    for tt in range(2):
        pack(XS + 8 + 4*tt, acc(2, tt), acc(3, tt))
        p.e(f"buffer_store_dwordx4 {vr(XS + 8 + 4*tt, 4)}, v{vKst}, {R(S_WS)}, s{sK} offen offset:{128*tt}{SC}", tag="st")
    for T in range(2):
        pack(acc(0, T), acc(4 + T, 0), acc(4 + T, 1))
        p.e(f"buffer_store_dwordx4 {vr(acc(0, T), 4)}, v{vL16}, {R(S_WS)}, s{sV} offen offset:{2048 + 1024*T}{SC}", tag="st")
    p.e(f"""
s_add_u32 s{sQ}, s{sQ}, {4*32*8192}
s_add_u32 s{sK}, s{sK}, {4*32*16384}
s_add_u32 s{sV}, s{sV}, {4*32*16384}
s_add_u32 s{sI}, s{sI}, 1
s_cmp_lg_u32 s{sI}, 1
s_cbranch_scc1 L_q_n1
s_waitcnt vmcnt(0)
{PROG}
{tl(cfg, 2, t0, t1)}
s_waitcnt vmcnt(0)
L_q_n1:
s_cmp_lt_u32 s{sI}, 16
s_cbranch_scc1 L_q_loop
s_waitcnt vmcnt(0)
{PROG}
s_barrier
""")
    p.fence(); p.vmq = []
    p.e(tl(cfg, 3, t0, t1))
    Q, K, V, BI, ONE, DX, DM, KM, VM, P, PM, O, DL, M, MA, MS, AC, KG = 16, 32, 64, 80, 92, 96, 104, 108, 124, 132, 136, 140, 156, 160, 164, 176, 192, 208
    vMr, vL4, vMk, vEw, vVr = 14, 15, vGq, vGv, vXr
    sQ0, sQ1, sKx, sV0, sV1, sMH, sO, sMH8, sFO, sTg, sMH1 = range(50, 61)
    L_KX, L_VX = 9216, 13312
    p.e(f"""
s_lshr_b32 s{sA}, s{sW}, 1
s_and_b32 s{sB}, s{sW}, 1
s_lshl_b32 s{sQ0}, s{sF}, 13
s_lshl_b32 s{sC}, s{sA}, 10
s_add_u32 s{sQ0}, s{sQ0}, s{sC}
s_add_u32 s{sQ0}, s{sQ0}, {WS_QX}
s_lshl_b32 s{sKx}, s{sF}, 14
s_add_u32 s{sKx}, s{sKx}, {WS_KVX}
s_lshl_b32 s{sC}, s{sB}, 13
s_add_u32 s{sV0}, s{sKx}, s{sC}
s_mul_i32 s{sMH}, s{sR}, {MHS}
s_add_u32 s{sMH}, s{sMH}, {WS_MH}
s_and_b32 s{sTg}, s{sR}, 1
s_sub_u32 s{sTg}, s{sTg}, 1
s_lshl_b32 s{sC}, s{sR}, 1
s_add_u32 s{sC}, s{sC}, s{sA}
s_lshl_b32 s{sO}, s{sC}, 6
s_lshl_b32 s{sD}, s{sH}, 1
s_add_u32 s{sD}, s{sD}, s{sB}
s_add_u32 s{sO}, s{sO}, s{sD}
s_lshl_b32 s{sFO}, s{sO}, 2
s_add_u32 s{sFO}, s{sFO}, {F_O}
s_lshl_b32 s{sO}, s{sO}, 11
s_add_u32 s{sO}, s{sO}, {WS_O}
s_mov_b32 s{sI}, 0
s_lshl_b32 s{sA}, s{sA}, 4
v_add_u32 v{t0}, s{sA}, v{n}
v_lshlrev_b32 v{t1}, 2, v{g}
v_sub_u32 v{t0}, v{t0}, v{t1}
v_mov_b32 v{t1}, {NEG:#x}
""")
    for kt in range(2):
        for r in range(4): p.e(f"v_cmp_le_i32 vcc, {16*kt + r}, v{t0}\nv_cndmask_b32 v{BI + 4*kt + r}, v{t1}, v{vZ}, vcc")
    p.e(f"v_cmp_gt_u32 vcc, 2, v{g}")
    for r in range(4): p.e(f"v_cndmask_b32 v{BI + 8 + r}, v{t1}, v{vZ}, vcc")
    for i in range(4): p.e(f"v_mov_b32 v{ONE+i}, 0x3f803f80")
    p.e(f"""
v_lshrrev_b32 v{t0}, 1, v{g}
v_lshlrev_b32 v{vMr}, 8, v{t0}
v_and_b32 v{t0}, 1, v{g}
v_lshl_add_u32 v{vMr}, v{t0}, 5, v{vMr}
v_bfe_u32 v{t0}, v{n}, 1, 2
v_lshl_add_u32 v{vMr}, v{t0}, 6, v{vMr}
v_and_b32 v{t0}, 1, v{n}
v_lshl_add_u32 v{vMr}, v{t0}, 4, v{vMr}
s_lshl_b32 s{sA}, s{sW}, 8
v_lshl_add_u32 v{vL4}, v{l}, 2, s{sA}
s_lshl_b32 s{sA}, s{sW}, 10
v_add_u32 v{vEw}, s{sA}, v{vL16}
s_lshl_b32 s{sB}, s{sB}, 11
v_add_u32 v{vVr}, s{sB}, v{vL16}
v_and_b32 v{t0}, 3, v{n}
v_cmp_eq_u32 vcc, 0, v{t0}
v_cndmask_b32 v{vMk}, 0, 1, vcc
""")
    p.e("L_at_loop:")
    p.fence()
    p.e(f"s_add_u32 s{sQ1}, s{sQ0}, 4096\ns_add_u32 s{sV1}, s{sV0}, 4096\ns_add_u32 s{sMH1}, s{sMH}, 4096\ns_add_u32 s{sMH8}, s{sMH}, 8192")
    for uT in range(4):
        p.e(f"buffer_load_dwordx4 {vr(Q + 4*uT, 4)}, v{vL16}, {R(S_WS)}, s{sQ0 if uT < 2 else sQ1} offen offset:{2048*(uT & 1)}", tag=f"Q{uT}")
        for kt in range(2):
            p.e(f"buffer_load_dwordx4 {vr(K + 16*kt + 4*uT, 4)}, v{vKst}, {R(S_WS)}, s{sKx} offen offset:{1024*(uT >> 1) + 64*(uT & 1) + 128*kt} sc1", tag=f"Q{uT}")
    for E in range(4):
        p.e(f"buffer_load_dwordx4 {vr(V + 4*E, 4)}, v{vL16}, {R(S_WS)}, s{sV0 if E < 2 else sV1} offen offset:{2048 + 1024*(E & 1)} sc1", tag="V")
    for uT in range(4):
        p.wv(f"Q{uT}")
        for kt in range(2):
            p.e(f"{MF} {vr(DX + 4*kt, 4)}, {vr(K + 16*kt + 4*uT, 4)}, {vr(Q + 4*uT, 4)}, {vr((DX if uT else BI) + 4*kt, 4)}")
    p.e(f"""
v_max3_f32 v{M}, v{DX}, v{DX+1}, v{DX+2}
v_max3_f32 v{M}, v{M}, v{DX+3}, v{DX+4}
v_max3_f32 v{M}, v{M}, v{DX+5}, v{DX+6}
v_max_f32 v{M}, v{M}, v{DX+7}
s_branch L_at_in
L_at_poll:
s_sleep 2
L_at_in:
buffer_load_dwordx4 {vr(MA, 4)}, v{vEw}, {R(S_WS)}, s{sMH} offen{SC}
buffer_load_dwordx4 {vr(MA+4, 4)}, v{vEw}, {R(S_WS)}, s{sMH1} offen{SC}
buffer_load_dword v{MA+8}, v{vL4}, {R(S_WS)}, s{sMH8} offen{SC}
s_sub_u32 s{sBud}, s{sBud}, 1
s_cbranch_scc1 L_exit_w
s_waitcnt vmcnt(0)
v_bitop3_b32 v{t0}, v{MA}, v{MA+4}, s{sTg} bitop3:0x7e
v_bitop3_b32 v{t1}, v{MA+8}, s{sTg}, v{vMk} bitop3:0x28
v_and_or_b32 v{t0}, v{t0}, 1, v{t1}
v_cmp_ne_u32 vcc, 0, v{t0}
s_cbranch_vccnz L_at_poll
ds_write_b128 v{vEw}, {vr(MA, 4)}
ds_write_b128 v{vEw}, {vr(MA+4, 4)} offset:4096
ds_write_b32 v{vL4}, v{MA+8} offset:8192
s_waitcnt lgkmcnt(0)
s_barrier
""")
    def rdm(ks): p.e(f"ds_read_b128 {vr(MS + 4*(ks & 3), 4)}, v{vMr} offset:{512*ks}", tag=f"m{ks}")
    for ks in range(3): rdm(ks)
    for ks in range(18):
        if ks + 3 < 18: rdm(ks + 3)
        p.wl(f"m{ks}")
        x = vr(MS + 4*(ks & 3), 4)
        for j in range(4):
            wv = vr(wreg(2 + j, ks), 4); a = vr(AC + 4*j, 4)
            A_, B_ = (wv, x) if j < 2 else (x, wv)
            p.e(f"{MF} {a}, {A_}, {B_}, {a if ks else 0}")
    for x in range(AC, AC + 8): p.e(f"v_mul_f32 v{x}, s{sSCp}, v{x}")
    for i in range(4): p.e(f"v_cvt_pk_bf16_f32 v{KG+i}, v{AC+2*i}, v{AC+2*i+1}")
    p.e(f"ds_write_b128 v{vEw}, {vr(KG, 4)} offset:{L_KX}", tag="e")
    for i in range(4, 8): p.e(f"v_cvt_pk_bf16_f32 v{KG+i}, v{AC+2*i}, v{AC+2*i+1}")
    p.e(f"ds_write_b128 v{vEw}, {vr(KG+4, 4)} offset:{L_VX}", tag="e")
    p.e("s_waitcnt lgkmcnt(0)\ns_barrier")
    for uT in range(4): p.e(f"ds_read_b128 {vr(KM + 4*uT, 4)}, v{vL16} offset:{L_KX + 1024*uT}", tag=f"k{uT}")
    for b in range(2): p.e(f"ds_read_b128 {vr(VM + 4*b, 4)}, v{vVr} offset:{L_VX + 1024*b}", tag="vm")
    for uT in range(4):
        p.wl(f"k{uT}")
        p.e(f"{MF} {vr(DM, 4)}, {vr(KM + 4*uT, 4)}, {vr(Q + 4*uT, 4)}, {vr(DM if uT else BI + 8, 4)}")
    p.e(f"""
v_max3_f32 v{M}, v{M}, v{DM}, v{DM+1}
v_max3_f32 v{M+1}, v{M}, v{DM+2}, v{DM+3}
v_max3_f32 v{M}, v{M}, v{DM+2}, v{DM+3}
v_permlane16_swap_b32 v{M}, v{M+1}
v_max_f32 v{M+2}, v{M}, v{M+1}
v_max_f32 v{M+3}, v{M}, v{M+1}
v_permlane32_swap_b32 v{M+2}, v{M+3}
v_max_f32 v{M}, v{M+2}, v{M+3}
""")
    for x in range(DX, DX + 12, 2):
        p.e(f"v_pk_add_f32 {vr(x, 2)}, {vr(x, 2)}, {vr(M, 2)} op_sel_hi:[1,0] neg_lo:[0,1] neg_hi:[0,1]")
    for x in range(DX, DX + 12): p.e(f"v_exp_f32 v{x}, v{x}")
    for i in range(6): p.e(f"v_cvt_pk_bf16_f32 v{P+i}, v{DX+2*i}, v{DX+2*i+1}")
    p.e(f"{MF} {vr(DL, 4)}, {vr(ONE, 4)}, {vr(P, 4)}, 0")
    for E in range(4): p.e(f"{MF} {vr(O + 4*E, 4)}, {vr(V + 4*E, 4)}, {vr(P, 4)}, 0")
    p.wl("vm")
    M16 = "v_mfma_f32_16x16x16_bf16"
    p.e(f"{M16} {vr(DL, 4)}, {vr(ONE, 2)}, {vr(PM, 2)}, {vr(DL, 4)}")
    for E in range(4): p.e(f"{M16} {vr(O + 4*E, 4)}, {vr(VM + 2*E, 2)}, {vr(PM, 2)}, {vr(O + 4*E, 4)}")
    p.e(f"v_rcp_f32 v{DL}, v{DL}")
    for b in range(2):
        for x in range(O + 8*b, O + 8*b + 8): p.e(f"v_mul_f32 v{x}, v{x}, v{DL}")
        for i in range(4): p.e(f"v_cvt_pk_bf16_f32 v{O + 8*b + i}, v{O + 8*b + 2*i}, v{O + 8*b + 2*i + 1}")
        p.e(f"buffer_store_dwordx4 {vr(O + 8*b, 4)}, v{vL16}, {R(S_WS)}, s{sO} offen offset:{1024*b}{SC}", tag="st")
    p.e(f"""
s_add_u32 s{sI}, s{sI}, 1
v_mov_b32 v{t1}, s{sI}
s_add_u32 s{sQ0}, s{sQ0}, {4*32*8192}
s_add_u32 s{sKx}, s{sKx}, {4*32*16384}
s_add_u32 s{sV0}, s{sV0}, {4*32*16384}
s_add_u32 s{sMH}, s{sMH}, {4*MHS}
s_add_u32 s{sO}, s{sO}, {8*131072}
s_waitcnt vmcnt(0)
s_mov_b64 exec, 1
buffer_store_dword v{t1}, v{vZ}, {R(S_WS)}, s{sFO} offen{SC}
s_mov_b64 exec, -1
s_cmp_lt_u32 s{sI}, 16
s_cbranch_scc1 L_at_loop
s_waitcnt vmcnt(0)
{tl(cfg, 5, t0, t1)}
s_endpgm
""")
    return p.text()

TS = 456; L_T = 2*XBUF; L_G = L_T + 192*TS
def role_aw(cfg):
    p = Prog()
    sHG, sRT, sTM, sCG = sP0, sP1, sP2, sP3
    vL16, vXg, vXr, vTw, vG0, vG1, vTr, vZ, l, n, g, t0, t1 = range(1, 14)
    ACC, XS, WB = 16, 64, 80
    wreg = lambda ti, ks: WB + 72*ti + 4*ks
    acc = lambda ti, tt: ACC + 8*ti + 4*tt
    sTog, sGw = 50, 51
    p.e("L_role_aw:")
    srd(p, S_WS, 104, WS_BYTES); srd(p, S_X, 0, 2359296); srd(p, S_W0, 8, 1990656); srd(p, S_W1, 16, 663552); srd(p, S_W2, 64, 4718592)
    srd(p, S_DBG, 96, 256); srd(p, S_OUT, 88, 2359296); srd(p, S_G, 80, 1152)
    lanes(p, l, n, g)
    x_addr(p, vXg, vXr, l, n, g, t0, t1)
    tr_addr(p, vTr, n, g, t0, 64, 8)
    p.e(f"""
v_lshlrev_b32 v{vL16}, 4, v{l}
s_mul_i32 s{sB}, s{sW}, 20480
s_add_u32 s{sB}, s{sB}, {L_T}
v_add_u32 v{vTr}, s{sB}, v{vTr}
v_mov_b32 v{vZ}, 0
""")
    for pr, vg in ((0, vG0), (1, vG1)):
        p.e(f"""
; piece P = min(8w + {4*pr} + (l&3), 26): (P/9)*1152 + (P%9)*16 + (l>>2)*3456
s_lshl_b32 s{sA}, s{sW}, 3
s_add_u32 s{sA}, s{sA}, {4*pr}
v_and_b32 v{t0}, 3, v{l}
v_add_u32 v{t0}, s{sA}, v{t0}
v_min_u32 v{t0}, 26, v{t0}
v_mul_u32_u24 v{t1}, 57, v{t0}
v_lshrrev_b32 v{t1}, 9, v{t1}
v_mul_u32_u24 v{t1}, {1152 - 144}, v{t1}
v_lshl_add_u32 v{t1}, v{t0}, 4, v{t1}
v_lshrrev_b32 v{t0}, 2, v{l}
v_mul_u32_u24 v{t0}, 3456, v{t0}
v_add_u32 v{vg}, v{t0}, v{t1}
""")
    p.e(f"""
s_mul_i32 s{sC}, s{sHG}, 144
s_mul_i32 s{sD}, s{sRT}, 11
s_and_b32 s{sE}, s{sW}, 1
s_add_u32 s{sD}, s{sD}, s{sE}
s_sub_u32 s{sD}, s{sD}, 1
s_max_i32 s{sE}, s{sD}, 0
s_lshr_b32 s{sF}, s{sW}, 1
s_lshl_b32 s{sF}, s{sF}, 6
s_mul_i32 s{sXs}, s{sE}, 18432
s_add_u32 s{sXs}, s{sXs}, s{sF}
s_mul_i32 s{sD}, s{sD}, 18432
s_add_u32 s{sD}, s{sD}, s{sF}
s_lshl_b32 s{sXm}, s{sW}, 10
s_mov_b32 s{sBud}, {cfg.get('budget', 400000)}
v_mul_u32_u24 v{vTw}, {TS}, v{n}
v_lshl_add_u32 v{vTw}, v{g}, 3, v{vTw}
s_lshl_b32 s{sA}, s{sW}, 7
s_add_u32 s{sA}, s{sA}, {L_T}
v_add_u32 v{vTw}, s{sA}, v{vTw}
v_lshlrev_b32 v14, 2, v{n}
v_add_u32 v14, {L_G}, v14
s_waitcnt lgkmcnt(0)
""")
    def mid():
        for j in range(9): p.e(x_dma(j, vXg), tag="xd")
    load_weights(p, [(S_W0, vG0, sC), (S_W0, vG1, sC)], 3456, vTr, sB, 5, wreg, mid)
    p.e(f"s_cmp_lg_u32 s{sW}, 3\ns_cbranch_scc1 L_a_nogate\nv_lshlrev_b32 v{t0}, 4, v{g}")
    for ks in range(18): p.e(f"buffer_load_dwordx4 {vr(wreg(2, ks), 4)}, v{t0}, {R(S_G)}, 0 offen offset:{64*ks}", tag="gw")
    p.e(f"""
L_a_nogate:
{tl(cfg, 1, t0, t1, True)}
s_mov_b32 s{sXs}, s{sD}
s_mov_b32 s{sI}, 0
s_mov_b32 s{sTog}, {XBUF}
""")
    p.raw(".p2align 6")
    p.e("L_a_loop:")
    p.fence()
    p.e(f"""
s_waitcnt vmcnt(0)
s_barrier
s_add_u32 s{sXs}, s{sXs}, {XBUF}
s_add_u32 s{sXm}, s{sXm}, s{sTog}
""")
    gemm_block(p, 4, wreg, acc, XS, vXr, vXg, lambda ti: True)
    p.e(f"v_add_u32 v{vXr}, s{sTog}, v{vXr}\ns_sub_u32 s{sTog}, 0, s{sTog}")
    def put(ti):
        for tt in range(2):
            a = acc(ti, tt)
            p.e(f"v_cvt_pk_bf16_f32 v{a}, v{a}, v{a+1}\nv_cvt_pk_bf16_f32 v{a+1}, v{a+2}, v{a+3}")
            p.e(f"ds_write_b64 v{vTw}, {vr(a, 2)} offset:{16*TS*tt + 32*ti}", tag="tw")
    put(0); put(1)
    p.e(f"s_cmp_eq_u32 s{sW}, 3\ns_cbranch_scc1 L_a_gate")
    put(2); put(3)
    p.e(f"""
s_branch L_a_nog2
L_a_gate:
ds_write_b32 v14, v{acc(2, 0)}
ds_write_b32 v14, v{acc(2, 1)} offset:64
L_a_nog2:
v_add_u32 v{vTw}, {32*TS}, v{vTw}
v_add_u32 v14, 128, v14
s_add_u32 s{sI}, s{sI}, 1
s_cmp_lt_u32 s{sI}, 6
s_cbranch_scc1 L_a_loop
s_waitcnt vmcnt(0) lgkmcnt(0)
s_barrier
{tl(cfg, 2, t0, t1)}
""")
    p.fence()
    Qr, Kr, Vr, S_, Or, PL, PH, vRow, vA, vTok, vGl = 16, 26, 100, 176, 184, 204, 212, 14, 15, 2, 3
    CA = f2u(18 ** -0.5 * math.log2(math.e))
    p.e(f"""
s_mov_b32 s{sI}, 0
s_mul_i32 s{sC}, s{sW}, 36
s_add_u32 s{sC}, s{sC}, {L_T}
s_mul_i32 s{sD}, s{sRT}, 176
s_mov_b32 s{sE}, {CA:#x}
s_mov_b32 s{sF}, {f2u(-math.log2(math.e)):#x}
L_la_loop:
v_add_u32 v{t0}, s{sI}, v{l}
v_min_u32 v{t0}, 175, v{t0}
v_add_u32 v{vTok}, s{sD}, v{t0}
v_add_u32 v{t0}, 16, v{t0}
v_mul_u32_u24 v{vRow}, {TS}, v{t0}
v_add_u32 v{vRow}, s{sC}, v{vRow}
v_lshlrev_b32 v{t0}, 2, v{t0}
v_add_u32 v{t0}, {L_G}, v{t0}
""")
    p.e(f"ds_read_b32 v{vGl}, v{t0}", tag="gl")
    def rd9(d, a, off, tag):
        for i in range(4): p.e(f"ds_read2_b32 {vr(d + 2*i, 2)}, v{a} offset0:{off//4 + 2*i} offset1:{off//4 + 2*i + 1}", tag=tag)
        p.e(f"ds_read_b32 v{d+8}, v{a} offset:{off + 32}", tag=tag)
    rd9(Qr, vRow, 0, "q")
    koff = lambda j: Kr + 10*(j & 3)
    for j in range(8):
        p.e(f"v_subrev_u32 v{vA}, {2*j*TS}, v{vRow}")
        rd9(koff(j), vA, 144, f"k{j}")
        if j >= 1:
            p.wl(f"k{j-1}")
            for i in range(9): p.e(f"v_dot2_f32_bf16 v{S_+j-1}, v{Qr+i}, v{koff(j-1)+i}, {f'v{S_+j-1}' if i else 0}")
    p.wl("k7")
    for i in range(9): p.e(f"v_dot2_f32_bf16 v{S_+7}, v{Qr+i}, v{koff(7)+i}, {f'v{S_+7}' if i else 0}")
    voff = lambda j: Vr + 10*(j & 3)
    for j in range(2):
        p.e(f"v_subrev_u32 v{vA}, {2*j*TS}, v{vRow}")
        rd9(voff(j), vA, 288, f"v{j}")
    p.e(f"v_mov_b32 v{t1}, {NEG:#x}")
    for j in range(8):
        p.e(f"v_mul_f32 v{S_+j}, s{sE}, v{S_+j}")
    for j in range(1, 8):
        p.e(f"v_cmp_le_u32 vcc, {2*j}, v{vTok}\nv_cndmask_b32 v{S_+j}, v{t1}, v{S_+j}, vcc")
    p.e(f"""
v_max3_f32 v{t0}, v{S_}, v{S_+1}, v{S_+2}
v_max3_f32 v{t0}, v{t0}, v{S_+3}, v{S_+4}
v_max3_f32 v{t0}, v{t0}, v{S_+5}, v{S_+6}
v_max_f32 v{t0}, v{t0}, v{S_+7}
""")
    for j in range(8): p.e(f"v_sub_f32 v{S_+j}, v{S_+j}, v{t0}")
    for j in range(8): p.e(f"v_exp_f32 v{S_+j}, v{S_+j}")
    for j in range(8): p.e(f"v_cvt_pk_bf16_f32 v{PL+j}, v{S_+j}, v{vZ}")
    for j in range(8): p.e(f"v_lshlrev_b32 v{PH+j}, 16, v{PL+j}")
    p.e(f"""
v_add_f32 v{t0}, v{PH}, v{PH+1}
v_add_f32 v{t1}, v{PH+2}, v{PH+3}
v_add_f32 v{t0}, v{t0}, v{PH+4}
v_add_f32 v{t1}, v{t1}, v{PH+5}
v_add_f32 v{t0}, v{t0}, v{PH+6}
v_add_f32 v{t1}, v{t1}, v{PH+7}
v_add_f32 v{t0}, v{t0}, v{t1}
v_mul_f32 v{t1}, s{sF}, v{vGl}
v_exp_f32 v{vGl}, v{t1}
v_exp_f32 v{t1}, -v{t1}
v_add_f32 v{vGl}, 1.0, v{vGl}
v_add_f32 v{t1}, 1.0, v{t1}
v_mul_f32 v{t0}, v{t0}, v{vGl}
v_rcp_f32 v{t0}, v{t0}
v_rcp_f32 v{t1}, v{t1}
""")
    for j in range(8):
        if j + 2 < 8:
            p.e(f"v_subrev_u32 v{vA}, {2*(j+2)*TS}, v{vRow}")
            rd9(voff(j + 2), vA, 288, f"v{j+2}")
        p.wl(f"v{j}")
        for i in range(9):
            for hh, P_ in ((0, PL), (1, PH)):
                o = Or + 2*i + hh
                p.e(f"v_dot2_f32_bf16 v{o}, v{voff(j)+i}, v{P_+j}, {f'v{o}' if j else 0}")
    p.e(f"""
s_or_b32 s{sA}, s{sHG}, s{sW}
s_cmp_lg_u32 s{sA}, 0
s_cbranch_scc1 L_la_noomg
v_lshlrev_b32 v{vA}, 2, v{vTok}
v_min_u32 v{vA}, 8192, v{vA}
s_mov_b32 s{sA}, {WS_OMG}
buffer_store_dword v{t1}, v{vA}, {R(S_WS)}, s{sA} offen{SC}
L_la_noomg:
""")
    for i in range(18): p.e(f"v_mul_f32 v{Or+i}, v{Or+i}, v{t0}")
    for i in range(9): p.e(f"v_cvt_pk_bf16_f32 v{Or+i}, v{Or+2*i}, v{Or+2*i+1}")
    for i in range(4): p.e(f"ds_write2_b32 v{vRow}, v{Or+2*i}, v{Or+2*i+1} offset0:{2*i} offset1:{2*i+1}", tag="ow")
    p.e(f"ds_write_b32 v{vRow}, v{Or+8} offset:32", tag="ow")
    p.e(f"""
s_add_u32 s{sI}, s{sI}, 64
s_cmp_lt_u32 s{sI}, 192
s_cbranch_scc1 L_la_loop
s_waitcnt lgkmcnt(0)
s_barrier
v_mul_u32_u24 v{vRow}, {TS}, v{n}
v_lshl_add_u32 v{vRow}, v{g}, 4, v{vRow}
s_add_u32 s{sA}, s{sW}, 1
s_mul_i32 s{sA}, s{sA}, {16*TS}
s_add_u32 s{sA}, s{sA}, {L_T}
v_add_u32 v{vRow}, s{sA}, v{vRow}
s_mul_i32 s{sD}, s{sRT}, 11
s_add_u32 s{sD}, s{sD}, s{sW}
s_mov_b32 s{sI}, s{sW}
s_mul_i32 s{sE}, s{sHG}, 2304
s_add_u32 s{sE}, s{sE}, {WS_OA}
L_oa_loop:
s_cmp_ge_u32 s{sD}, 128
s_cbranch_scc1 L_oa_done
""")
    p.fence()
    for x in range(3): p.e(f"ds_read2_b64 {vr(16 + 4*x, 4)}, v{vRow} offset0:{8*x} offset1:{8*x+1}", tag=f"o{x}")
    p.e(f"s_mul_i32 s{sA}, s{sD}, 18432\ns_add_u32 s{sA}, s{sA}, s{sE}")
    for x in range(3):
        p.wl(f"o{x}")
        if x == 2: p.e("s_mov_b64 exec, 0xffff")
        p.e(f"buffer_store_dwordx4 {vr(16 + 4*x, 4)}, v{vL16}, {R(S_WS)}, s{sA} offen offset:{1024*x}{SC}", tag="st")
    p.e(f"""
s_mov_b64 exec, -1
v_add_u32 v{vRow}, {64*TS}, v{vRow}
s_add_u32 s{sD}, s{sD}, 4
s_add_u32 s{sI}, s{sI}, 4
s_cmp_lt_u32 s{sI}, 11
s_cbranch_scc1 L_oa_loop
L_oa_done:
s_waitcnt vmcnt(0)
s_barrier
s_cmp_lg_u32 s{sW}, 0
s_cbranch_scc1 L_a_sig
v_mov_b32 v{t0}, 1
s_mov_b64 exec, 1
buffer_atomic_add v{t0}, v{vZ}, {R(S_DBG)}, 0 offen offset:4 sc1
s_mov_b64 exec, -1
L_a_sig:
{tl(cfg, 3, t0, t1)}
""")
    p.fence(); p.vmq = []; p.ldsq = []
    vD0, vD1, vD2, vTrB, vTrA, vOl, vRw, vOut, vFl, vOm = 2, 3, 4, 5, 6, 7, 14, 15, 9, 10
    AB, AA, ST, WA, WBB = 16, 28, 40, 68, 128
    for d, vd in enumerate((vD0, vD1, vD2)):
        p.e(f"""
v_add_u32 v{t0}, {64*d}, v{l}
v_mul_u32_u24 v{t1}, 171, v{t0}
v_lshrrev_b32 v{t1}, 10, v{t1}
v_mul_u32_u24 v{t1}, {1152 - 96}, v{t1}
v_lshl_add_u32 v{vd}, v{t0}, 4, v{t1}
""")
    tr_addr(p, vTrB, n, g, t0, 96, 4)
    tr_addr(p, vTrA, n, g, t0, 96, 8)
    sRing, sWb, sWa, sOb, sOA, sOut, sOm, sFO, sRed = range(50, 59)
    p.e(f"""
s_lshl_b32 s{sRing}, s{sW}, 15
v_add_u32 v{vTrB}, s{sRing}, v{vTrB}
v_add_u32 v{vTrA}, s{sRing}, v{vTrA}
v_add_u32 v{vOl}, s{sRing}, v{vL16}
s_mul_i32 s{sA}, s{sCG}, 96
s_mul_i32 s{sWb}, s{sW}, {1024*1152}
s_add_u32 s{sWb}, s{sWb}, s{sA}
s_mul_i32 s{sWa}, s{sW}, {160*1152}
s_add_u32 s{sWa}, s{sWa}, s{sA}
v_mul_u32_u24 v{vOut}, 1152, v{n}
v_lshl_add_u32 v{vOut}, v{g}, 3, v{vOut}
s_lshl_b32 s{sB}, s{sW}, 5
s_add_u32 s{sA}, s{sA}, s{sB}
s_mul_i32 s{sOut}, s{sTM}, 18432
s_add_u32 s{sOA}, s{sOut}, {WS_OA}
s_add_u32 s{sOut}, s{sOut}, s{sA}
s_lshl_b32 s{sOb}, s{sTM}, 17
s_add_u32 s{sOb}, s{sOb}, s{sRing}
s_add_u32 s{sOb}, s{sOb}, {WS_O}
s_lshl_b32 s{sOm}, s{sTM}, 6
s_add_u32 s{sOm}, s{sOm}, {WS_OMG}
s_lshl_b32 s{sFO}, s{sTM}, 8
s_add_u32 s{sFO}, s{sFO}, {F_O}
v_lshlrev_b32 v{vFl}, 2, v{l}
v_lshlrev_b32 v{vOm}, 2, v{n}
v_add_u32 v{vRw}, 131072, v{vL16}
""")
    items = [('A', k) for k in range(5)] + [('B', k) for k in range(32)]
    nslot = 10; D = nslot - 1
    def issue(i):
        kind, k = items[i]
        p.e(f"s_add_u32 s{sA}, s{sWa if kind == 'A' else sWb}, {32*k*1152}")
        for d, vd in enumerate((vD0, vD1, vD2)):
            p.e(f"s_add_u32 m0, s{sRing}, {3072*(i % nslot) + 1024*d}")
            p.e(f"buffer_load_dwordx4 v{vd}, {R(S_W1 if kind == 'A' else S_W2)}, s{sA} offen lds", tag=f"d{i}")
    for i in range(D): issue(i)
    for i, (kind, k) in enumerate(items):
        p.wv(f"d{i}")
        for ct in range(3):
            for q in range(2):
                if kind == 'A': p.e(f"ds_read_b64_tr_b16 {vr(WA + 12*k + 4*ct + 2*q, 2)}, v{vTrA} offset:{3072*(i % nslot) + 96*4*q + 32*ct}", tag="tr")
                else: p.e(f"ds_read_b64_tr_b16 {vr(WBB + 12*k + 4*ct + 2*q, 2)}, v{vTrB} offset:{3072*(i % nslot) + 96*16*q + 32*ct}", tag="tr")
        p.e("s_waitcnt lgkmcnt(0)")
        if i + D < len(items): issue(i + D)
    p.e(tl(cfg, 4, t0, t1))
    poll(p, "L_w_init", S_DBG, vZ, 0, 0, t0, f"v_readfirstlane_b32 s{sA}, v{t0}\ns_and_b32 s{sA}, s{sA}, 0xff\ns_cmp_eq_u32 s{sA}, 32")
    poll(p, "L_w_adone", S_DBG, vZ, 0, 4, t0, f"v_readfirstlane_b32 s{sA}, v{t0}\ns_cmp_eq_u32 s{sA}, 96")
    p.e(f"s_mov_b32 s{sI}, 0\ns_mul_i32 s{sWa}, s{sW}, 5\ns_mul_i32 s{sRed}, s{sW}, 3072\nv_add_u32 v{vD0}, s{sRed}, v{vRw}\ns_lshl_b32 s{sA}, s{sW}, 10\nv_add_u32 v{vRw}, s{sA}, v{vRw}")
    p.e("L_w_loop:")
    p.fence()
    for k in range(5):
        p.e(f"s_add_u32 s{sA}, s{sWa}, {k}\ns_min_u32 s{sA}, s{sA}, 17\ns_lshl_b32 s{sA}, s{sA}, 10\ns_add_u32 s{sA}, s{sA}, s{sOA}")
        p.e(f"buffer_load_dwordx4 {vr(ST + 4*k, 4)}, v{vL16}, {R(S_WS)}, s{sA} offen sc1", tag=f"a{k}")
    p.e(f"buffer_load_dword v{t1}, v{vOm}, {R(S_WS)}, s{sOm} offen sc1", tag="om")
    for k in range(5):
        p.wv(f"a{k}")
        for ct in range(3): p.e(f"{MF} {vr(AA + 4*ct, 4)}, {vr(WA + 12*k + 4*ct, 4)}, {vr(ST + 4*k, 4)}, {vr(AA + 4*ct, 4) if k else 0}")
    poll(p, "L_w_poll", S_WS, vFl, f"s{sFO}", 0, t0, f"v_cmp_ge_u32 vcc, s{sI}, v{t0}\ns_nop 1\ns_cmp_eq_u64 vcc, 0", sleep=2)
    for k in range(32):
        if k % 4 == 0: p.e(f"s_add_u32 s{sA}, s{sOb}, {1024*k}\ns_add_u32 m0, s{sRing}, {1024*k}")
        p.e(f"buffer_load_dwordx4 v{vL16}, {R(S_WS)}, s{sA} offen offset:{1024*(k % 4)} sc1 lds", tag=f"o{k}")
    def rdo(k):
        p.wv(f"o{k}")
        p.e(f"ds_read_b128 {vr(ST + 4*(k % 4), 4)}, v{vOl} offset:{1024*k}", tag=f"r{k}")
    rdo(0); rdo(1)
    for k in range(32):
        if k + 2 < 32: rdo(k + 2)
        p.wl(f"r{k}")
        for ct in range(3): p.e(f"{MF} {vr(AB + 4*ct, 4)}, {vr(WBB + 12*k + 4*ct, 4)}, {vr(ST + 4*(k % 4), 4)}, {vr(AB + 4*ct, 4) if k else 0}")
    for ct in range(3):
        for r in range(4): p.e(f"v_fma_f32 v{AB + 4*ct + r}, v{AB + 4*ct + r}, v{t1}, v{AA + 4*ct + r}")
        p.e(f"ds_write_b128 v{vD0}, {vr(AB + 4*ct, 4)} offset:{1024*ct}", tag="rw")
    p.e(f"""
s_waitcnt lgkmcnt(0)
s_barrier
s_cmp_eq_u32 s{sW}, 3
s_cbranch_scc1 L_w_next
""")
    for x in range(4): p.e(f"ds_read_b128 {vr(ST + 4*x, 4)}, v{vRw} offset:{3072*x}", tag="rr")
    p.e(f"""
s_waitcnt lgkmcnt(0)
v_pk_add_f32 {vr(ST, 2)}, {vr(ST, 2)}, {vr(ST+4, 2)}
v_pk_add_f32 {vr(ST+2, 2)}, {vr(ST+2, 2)}, {vr(ST+6, 2)}
v_pk_add_f32 {vr(ST+8, 2)}, {vr(ST+8, 2)}, {vr(ST+12, 2)}
v_pk_add_f32 {vr(ST+10, 2)}, {vr(ST+10, 2)}, {vr(ST+14, 2)}
v_pk_add_f32 {vr(ST, 2)}, {vr(ST, 2)}, {vr(ST+8, 2)}
v_pk_add_f32 {vr(ST+2, 2)}, {vr(ST+2, 2)}, {vr(ST+10, 2)}
v_cvt_pk_bf16_f32 v{ST+20}, v{ST}, v{ST+1}
v_cvt_pk_bf16_f32 v{ST+21}, v{ST+2}, v{ST+3}
buffer_store_dwordx2 {vr(ST+20, 2)}, v{vOut}, {R(S_OUT)}, s{sOut} offen
L_w_next:
v_xor_b32 v{vD0}, 16384, v{vD0}
v_xor_b32 v{vRw}, 16384, v{vRw}
s_add_u32 s{sOut}, s{sOut}, {8*18432}
s_add_u32 s{sOA}, s{sOA}, {8*18432}
s_add_u32 s{sOb}, s{sOb}, {8*131072}
s_add_u32 s{sOm}, s{sOm}, 512
s_add_u32 s{sI}, s{sI}, 1
s_cmp_lt_u32 s{sI}, 16
s_cbranch_scc1 L_w_loop
s_waitcnt vmcnt(0)
{tl(cfg, 5, t0, t1)}
s_endpgm
""")
    return p.text()
```

```python
from asmgen import *
import math, struct

WS_X    = 0x0
WS_MEM  = 0x48000
WS_FLG  = 0x50000
WS_SYN  = WS_MEM + 9216
WS_STMP = 0x60000
WS_TL   = 0x70000
WS_MH   = 0x800000
MHS = 10240
WS_KVX  = 0x1000000
WS_BYTES = 0x10000000
L_DUM = 0; L_SEL = 256; L_MEM = 1024; L_Q = 10240; L_K = 12288; L_XS = 14336; L_W = [16384, 16384 + 40960, 16384 + 81920, 16384 + 81920 + 32768]
S_WS, S_WQ, S_WK, S_WV, S_WO, S_M0, S_DBG = 4, 8, 12, 16, 20, 24, 28
sH, sW, sS, sT, sTn, sKV, sKVn, sPF, sKM, sBud = 32, 33, 34, 35, 36, 37, 38, 39, 40, 41
sX = [42, 43, 44, 45, 46]
sMEMo, sMEM1, sMEM8 = 47, 48, 49
sSC = 50
sONE = 52
sA, sB, sC, sD = 54, 55, 56, 57
sRU = 3
sEv, sFL = 100, 101
sSYw, sSYr = 33, 58
sPar = 38
sHALF = 0
sST = 60
vIdx, vL16, vW, vL8, vTR, vXr, vTmp, vOr, vST, vRD, vMS, vMask = range(12)
KV = 12; VV = 52; AQ = 20; AK = 28; AV = 36; WST = 44; AS = [60, 64, 68, 72, 76]; SEL = 76
WBASE = 80
SCALE = struct.unpack('<I', struct.pack('<f', 128 ** -0.5 * math.log2(math.e)))[0]

def tile_order(w):
    return list(range(9))

class Alloc:
    def __init__(s, w):
        s.w = w
        s.ndt = 5 if w < 2 else 4
        s.lpairs = [('q', 0), ('q', 3), ('q', 4), ('k', 5), ('v', 8)]
        o = [(0, 0), (1, 0), (0, 1), (0, 2), (0, 3), (1, 1), (1, 2), (1, 3), (2, 0), (2, 1), (2, 2), (2, 3), (3, 0), (3, 1), (3, 2), (3, 3)]
        if s.ndt == 5: o += [(4, 0), (4, 1), (4, 2), (4, 3)]
        s.wo_order = o
        s.wo_l = [(k, j) for k, j in o if (k < 3 and (w + j) % 2 == 0) or k == 4]
        s.reg = {}; s.lds = {}
        r = WBASE; off = 0
        for m, sl in s.lpairs:
            s.lds[(m, sl, 0)] = off; s.lds[(m, sl, 1)] = off + 2048; off += 4096
        for k, j in s.wo_l:
            ks = (w + j) % 4
            s.lds[('o', k, j)] = off + 4096 * (k if k < 3 else 3 + (ks & 1)) + 2048 * (ks >> 1)
        for m in 'qkv':
            for sl in range(9):
                for T in range(2):
                    if (m, sl, T) not in s.lds: s.reg[(m, sl, T)] = r; r += 8
        for kj in o:
            if ('o',) + kj not in s.lds: s.reg[('o',) + kj] = r; r += 8
        assert r == 512, r

def setup_common(p):
    p.e(f"""
s_load_dwordx2 s[{S_M0}:{S_M0+1}], s[0:1], 32
s_load_dwordx2 s[{S_WQ}:{S_WQ+1}], s[0:1], 40
s_load_dwordx2 s[{S_WK}:{S_WK+1}], s[0:1], 48
s_load_dwordx2 s[{S_WV}:{S_WV+1}], s[0:1], 56
s_load_dwordx2 s[{S_WO}:{S_WO+1}], s[0:1], 64
s_load_dwordx2 s[{S_DBG}:{S_DBG+1}], s[0:1], 96
s_load_dwordx2 s[{S_WS}:{S_WS+1}], s[0:1], 104
""")
    for b, n in ((S_M0, 9216), (S_WQ, 4718592), (S_WK, 4718592), (S_WV, 4718592), (S_WO, 4718592), (S_DBG, 256), (S_WS, WS_BYTES)):
        p.e(f"s_mov_b32 s{b+2}, {n}\ns_mov_b32 s{b+3}, 0x20000")

def tl(cfg, idx, va, vb, start=False):
    if not cfg.get('tl'): return ""
    t = f"s_waitcnt lgkmcnt(0)\ns_memrealtime s[92:93]\ns_waitcnt lgkmcnt(0)\nv_mov_b32 v{va}, s92\nv_mov_b32 v{vb}, 0\nbuffer_store_dword v{va}, v{vb}, s[4:7], s95 offen offset:{4*idx}\n"
    t += f"s_memtime s[92:93]\ns_waitcnt lgkmcnt(0)\nv_mov_b32 v{va}, s92\nbuffer_store_dword v{va}, v{vb}, s[4:7], s95 offen offset:{32+4*idx}\n"
    if start: t += f"v_mov_b32 v{va}, s94\nbuffer_store_dword v{va}, v{vb}, s[4:7], s95 offen\n"
    return t + "s_waitcnt vmcnt(0)\n"

def kvwait(nm):
    t = f"""
L_kvw_{nm}:
s_load_dwordx16 s[64:79], s[{S_WS}:{S_WS+1}], s{sFL} glc
s_sub_u32 s{sBud}, s{sBud}, 1
s_cbranch_scc1 L_exit
s_waitcnt lgkmcnt(0)
"""
    for i in range(65, 80): t += f"s_min_u32 s64, s64, s{i}\n"
    return t + f"""s_lshl_b32 s{sEv}, s64, 2
s_sub_u32 s{sEv}, s{sEv}, 1
s_cmp_ge_i32 s{sS}, s{sEv}
s_cbranch_scc1 L_kvw_{nm}
"""

def coop_src(vA, vB, n, g, t0, rowexpr, shift_or_mul):
    return f"""
{rowexpr}
{shift_or_mul}
v_lshlrev_b32 v{vA}, 1, v{g}
v_xor_b32 v{vA}, v{vA}, v{n}
v_lshl_add_u32 v{vA}, v{vA}, 4, v{t0}
v_xor_b32 v{vB}, 128, v{vA}
"""
def coop_tr(v, ch0, lo, hi, n, g, t0, t1):
    return f"""
v_and_b32 v{t0}, 1, v{g}
v_lshrrev_b32 v{t1}, 2, v{n}
v_lshl_add_u32 v{t0}, v{t0}, 2, v{t1}
v_lshlrev_b32 v{t0}, 1, v{t0}
v_bfe_u32 v{v}, v{n}, 1, 1
v_add_u32 v{v}, {ch0}, v{v}
v_xor_b32 v{v}, v{v}, v{t0}
v_lshlrev_b32 v{v}, 4, v{v}
v_lshl_add_u32 v{v}, v{t1}, 8, v{v}
v_and_b32 v{t0}, 1, v{g}
v_lshl_add_u32 v{v}, v{t0}, 11, v{v}
v_and_b32 v{t0}, 1, v{n}
v_lshl_add_u32 v{v}, v{t0}, 3, v{v}
v_lshrrev_b32 v{t0}, 1, v{g}
v_mul_u32_u24 v{t0}, {hi - lo}, v{t0}
v_add_u32 v{t0}, {lo}, v{t0}
v_add_u32 v{v}, v{v}, v{t0}
"""

def prologue(p, w, red, cfg):
    al = Alloc(w)
    nm = f"w{w}{'r' if red else ''}"
    l, n, g, t0, t1, t2 = 20, 21, 22, 23, 24, 25
    vG1, vG1b, vG2, vG3, vR3, vDb = 26, 27, 28, 29, 31, 32
    vRq = [[44, 45], [46, 47]]; vRo = [48, 49]; TMP = AS[0]; M0R = 40
    p.e(f"""
v_and_b32 v{l}, 63, v0
v_and_b32 v{n}, 15, v0
v_bfe_u32 v{g}, v0, 4, 2
v_lshlrev_b32 v{vL16}, 4, v{l}
v_add_u32 v{vW}, {L_W[w]}, v{vL16}
""")
    p.e(coop_src(vG1, vG1b, n, g, t0, f"v_lshrrev_b32 v{t1}, 1, v{g}\nv_and_b32 v{t0}, 1, v{g}\nv_lshl_add_u32 v{t0}, v{t1}, 3, v{t0}", f"v_lshlrev_b32 v{t0}, 13, v{t0}"))
    p.e(f"""
v_and_b32 v{t0}, 1, v{g}
v_lshl_add_u32 v{t0}, v{t1}, 4, v{t0}
v_mul_u32_u24 v{t0}, 1152, v{t0}
v_lshlrev_b32 v{vG2}, 2, v{g}
v_xor_b32 v{vG2}, v{vG2}, v{n}
v_lshl_add_u32 v{vG2}, v{vG2}, 4, v{t0}
s_lshl_b32 s{sA}, s{sH}, 8
s_mul_i32 s{sB}, s{sH}, 147456
""")
    if w == 0:
        p.e(f"""
v_lshrrev_b32 v{t0}, 2, v{n}
v_and_b32 v{t1}, 1, v{n}
v_lshl_add_u32 v{t0}, v{t0}, 1, v{t1}
v_mul_u32_u24 v{t0}, 1152, v{t0}
v_lshl_add_u32 v{t0}, v{g}, 5, v{t0}
v_bfe_u32 v{t1}, v{n}, 1, 1
v_lshl_add_u32 v{t0}, v{t1}, 4, v{t0}
s_lshl_b32 s{sC}, s{sH}, 7
""")
    p.e("s_waitcnt lgkmcnt(0)")
    if w == 0: p.e(f"buffer_load_dwordx4 v[{KV}:{KV+3}], v{t0}, s[{S_M0}:{S_M0+3}], s{sC} offen", tag="m0")
    items = [('R', m, t) for m in 'qkv' for t in range(9) if (m, t, 0) in al.reg]
    items += [('R', 'o', (k, 1)) for k in range(4)] + [('R', 'o', (3, 0))]
    nreg = len(items)
    items += [('L', m, t) for m, t in al.lpairs] + [('L', 'o', (k, 0)) for k in range(3)]
    nslot = 8; DEPTH = 7
    assert len(items) - nreg == nslot
    def slot(i): return (i - nreg) % nslot
    def issue(i):
        kind, m, t = items[i]
        for d in range(4):
            if m != 'o':
                srd = {'q': S_WQ, 'k': S_WK, 'v': S_WV}[m]; va = (vG1, vG1b)[d >> 1]; sb = sA
                so = (64 * t + 16 * w + 2 * d) * 8192
            else:
                k, par = t; srd = S_WO; va = vG2; sb = sB
                so = (32 * (par + 2 * (w >> 1)) + 4 * (w & 1) + 8 * (d >> 1) + 2 * (d & 1)) * 1152 + 256 * k
            p.e(f"s_add_u32 s{sC}, s{sb}, {so}\ns_mov_b32 m0, {L_W[w] + 4096*slot(i) + 1024*d}")
            p.e(f"buffer_load_dwordx4 v{va}, s[{srd}:{srd+3}], s{sC} offen lds", tag=f"d{i}")
    def keys(i):
        kind, m, t = items[i]
        return [(m, t, 0), (m, t, 1)] if m != 'o' else [('o', t[0], (t[1] + 2*x - w) % 4) for x in range(2)]
    def writeback(off):
        for x in range(4): p.e(f"ds_write_b128 v{vW}, {vr(TMP + 4*x, 4)} offset:{off + 1024*x}", tag="lw")
    def consume(i, mid):
        kind, m, t = items[i]
        off = 4096 * slot(i)
        p.wv(f"d{i}")
        p.e("s_barrier")
        if i >= 1 and i + DEPTH < len(items): issue(i + DEPTH)
        if i > nreg: writeback(4096 * slot(i - 1))
        for x, key in enumerate(keys(i)):
            if kind == 'L': assert al.lds[key] == off + 2048 * x
            dst = al.reg[key] if kind == 'R' else TMP + 8 * x
            for q in range(4):
                a, o = (vRq[q >> 1][x], off + 1024 * (q & 1)) if m != 'o' else (vRo[x], off + 1024 * q)
                p.e(f"ds_read_b64_tr_b16 {vr(dst + 2*q, 2)}, v{a} offset:{o}", tag="tr")
        mid(i)
        p.e("s_waitcnt lgkmcnt(0)")
    NE = 2
    for i in range(NE): issue(i)
    def fifth():
        p.e(f"""
v_and_b32 v{t0}, 3, v{l}
v_lshrrev_b32 v{t1}, 2, v{l}
v_mul_u32_u24 v{vG3}, 1152, v{t1}
v_lshl_add_u32 v{vG3}, v{t0}, 4, v{vG3}
v_lshrrev_b32 v{t1}, 2, v{n}
v_and_b32 v{t2}, 1, v{g}
v_lshlrev_b32 v{vR3}, 10, v{t2}
v_lshrrev_b32 v{t2}, 1, v{g}
v_lshl_add_u32 v{vR3}, v{t2}, 8, v{vR3}
v_and_b32 v{t2}, 1, v{t1}
v_lshl_add_u32 v{vR3}, v{t2}, 6, v{vR3}
v_lshrrev_b32 v{t2}, 1, v{t1}
v_lshl_add_u32 v{vR3}, v{t2}, 3, v{vR3}
v_lshl_add_u32 v{vR3}, v{t0}, 4, v{vR3}
v_add_u32 v{vR3}, {L_W[w]}, v{vR3}
""")
        for ks in range(4):
            for d in range(2):
                p.e(f"s_add_u32 s{sC}, s{sB}, {(32*ks + 16*d) * 1152 + 64 * (16 + w)}\ns_mov_b32 m0, {L_W[w] + al.lds[('o', 4, (ks - w) % 4)] + 1024*d}")
                p.e(f"buffer_load_dwordx4 v{vG3}, s[{S_WO}:{S_WO+3}], s{sC} offen lds", tag="e5")
    for h2 in range(2):
        for T in range(2): p.e(coop_tr(vRq[h2][T], 4*w + 2*T, L_W[2*h2], L_W[2*h2 + 1], n, g, t0, t1))
    for x in range(2):
        p.e(f"""
v_and_b32 v{t0}, 1, v{g}
v_bfe_u32 v{t1}, v{n}, 2, 1
v_lshl_add_u32 v{t0}, v{t0}, 1, v{t1}
v_xor_b32 v{t1}, {w}, v{t0}
v_lshlrev_b32 v{t1}, 6, v{t1}
v_lshl_add_u32 v{vRo[x]}, v{t0}, 8, v{t1}
v_and_b32 v{t0}, 3, v{n}
v_lshl_add_u32 v{vRo[x]}, v{t0}, 4, v{vRo[x]}
v_and_b32 v{t0}, 8, v{n}
v_add_u32 v{vRo[x]}, v{vRo[x]}, v{t0}
v_lshrrev_b32 v{t0}, 1, v{g}
v_mul_u32_u24 v{t0}, {L_W[2*x+1] - L_W[2*x]}, v{t0}
v_add_u32 v{t0}, {L_W[2*x]}, v{t0}
v_add_u32 v{vRo[x]}, v{vRo[x]}, v{t0}
""")
    p.e(f"""
v_bfe_u32 v{t0}, v{n}, 1, 1
v_and_b32 v{t1}, 1, v{n}
v_lshl_add_u32 v{t0}, v{t1}, 16, v{t0}
v_mul_u32_u24 v{t0}, 0xaaaa, v{t0}
v_add_u32 v{vIdx}, 0x44444444, v{t0}
v_lshlrev_b32 v{vL8}, 3, v{l}
v_lshrrev_b32 v{t2}, 5, v{l}
v_lshlrev_b32 v{t2}, 6, v{t2}
v_xor_b32 v{vL8}, v{vL8}, v{t2}
; vTR = (128c + 8*(4g + r)) ^ (64*(c>>1))   (c = n&3, r = n>>2)
v_lshrrev_b32 v{t2}, 2, v{l}
v_and_b32 v{vTR}, 3, v{n}
v_lshl_add_u32 v{vTR}, v{vTR}, 4, v{t2}
v_lshlrev_b32 v{vTR}, 3, v{vTR}
v_bfe_u32 v{t2}, v{n}, 1, 1
v_lshlrev_b32 v{t0}, 6, v{t2}
v_xor_b32 v{vTR}, v{vTR}, v{t0}
v_and_b32 v{t0}, 2, v{g}
v_xor_b32 v{vXr}, v{n}, v{t0}
v_lshlrev_b32 v{vXr}, 4, v{vXr}
v_lshl_add_u32 v{vXr}, v{t2}, 10, v{vXr}
v_and_b32 v{t0}, 1, v{g}
v_lshl_add_u32 v{vXr}, v{t0}, 3, v{vXr}
; vRD = g*256 + n3*128 + n1*64 + n2*32 + n0*16
v_lshlrev_b32 v{vRD}, 8, v{g}
v_lshl_add_u32 v{vRD}, v{t2}, 6, v{vRD}
v_bfe_u32 v{t0}, v{n}, 3, 1
v_lshl_add_u32 v{vRD}, v{t0}, 7, v{vRD}
v_bfe_u32 v{t0}, v{n}, 2, 1
v_lshl_add_u32 v{vRD}, v{t0}, 5, v{vRD}
v_and_b32 v{t0}, 1, v{n}
v_lshl_add_u32 v{vRD}, v{t0}, 4, v{vRD}
v_lshrrev_b32 v{t0}, 1, v{g}
v_and_b32 v{t1}, 1, v{g}
v_and_b32 v{t2}, 7, v{n}
v_lshrrev_b32 v{vOr}, 3, v{n}
; vST = w*16384 + (2*n3+(g>>1))*4096 + (h>>1)*256 + (g&1)*128 + (h&1)*64 + n2*32 + n0*16 + n1*8
v_lshl_add_u32 v{vST}, v{vOr}, 1, v{t0}
v_lshlrev_b32 v{vST}, 12, v{vST}
v_lshl_add_u32 v{vST}, v{t1}, 7, v{vST}
v_and_b32 v{t2}, 4, v{n}
v_lshl_add_u32 v{vST}, v{t2}, 3, v{vST}
v_and_b32 v{t2}, 1, v{n}
v_lshl_add_u32 v{vST}, v{t2}, 4, v{vST}
v_bfe_u32 v{t2}, v{n}, 1, 1
v_lshl_add_u32 v{vST}, v{t2}, 3, v{vST}
s_lshr_b32 s{sC}, s{sH}, 1
s_lshl_b32 s{sC}, s{sC}, 8
s_and_b32 s{sD}, s{sH}, 1
s_lshl_b32 s{sD}, s{sD}, 6
s_add_u32 s{sC}, s{sC}, s{sD}
s_add_u32 s{sC}, s{sC}, {WS_X + 16384*w}
v_add_u32 v{vST}, s{sC}, v{vST}
; vOr = 256*g + 16*(4*(n>>2) + ((n>>1)&1))
v_and_b32 v{vOr}, 12, v{n}
v_bfe_u32 v{t2}, v{n}, 1, 1
v_add_u32 v{vOr}, v{vOr}, v{t2}
v_lshlrev_b32 v{vOr}, 4, v{vOr}
v_lshl_add_u32 v{vOr}, v{g}, 8, v{vOr}
""")
    for k in range(5): p.e(f"s_mov_b32 s{sX[k]}, {65536*k}")
    p.e(f"""
s_mov_b32 s{sMEMo}, {WS_MEM}
s_mov_b32 s{sMEM1}, {WS_MEM + 4096}
s_mov_b32 s{sMEM8}, {WS_MEM + 8192}
s_mov_b32 s{sSC}, {SCALE:#x}
s_mov_b32 s{sSC+1}, {SCALE:#x}
s_mov_b32 s{sONE}, 0x3f803f80
s_mov_b32 s{sONE+1}, 0x3f803f80
v_and_b32 v{vMask}, 3, v{n}
v_cmp_eq_u32 vcc, 0, v{vMask}
v_cndmask_b32 v{vMask}, 0, 1, vcc
s_mov_b32 s{sS}, 0
s_mov_b32 s{sT}, -1
s_mov_b32 s{sTn}, 0
s_mov_b32 s{sBud}, {cfg.get('budget', 300000)}
s_lshl_b32 s{sKV}, s{sH}, 14
s_add_u32 s{sPF}, s{sKV}, {WS_KVX + 4096*w + 524288*cfg.get('pfd', 1)}
s_add_u32 s{sKV}, s{sKV}, {WS_KVX + 4096*w}
s_mov_b32 s{sKM}, {WS_MH - WS_MEM + 64*MHS}
v_mov_b64 v[{AV}:{AV+1}], 0
v_mov_b64 v[{AV+2}:{AV+3}], 0
""")
    p.e(f"s_lshl_b32 s{sC}, s{sH}, 1\ns_add_u32 s{sC}, s{sC}, {w >> 1}\ns_cmp_eq_u32 s{sC}, 0\ns_cselect_b32 s{sC}, 64, s{sC}\ns_mul_i32 s{sC}, s{sC}, {MHS}\ns_add_u32 s{sC}, s{sC}, {WS_MH + 4096*(w & 1)}\ns_add_u32 s{sD}, s{sC}, 4096")
    for i in range(4): p.e(f"v_mov_b32 v{AV+4+i}, {w >> 1}")
    for i in range(4 + (w & 1)):
        p.e(f"buffer_store_dwordx4 v[{AV+4}:{AV+7}], v{vL16}, s[{S_WS}:{S_WS+3}], s{sC if i < 4 else sD} offen offset:{1024*(i & 3)} sc0 sc1", tag="init")
    if red:
        ub = {2: 0, 3: 32, 1: 64}[w]
        p.e(f"""
s_add_u32 s{sC}, s{sH}, {ub}
s_lshl_b32 s{sRU}, s{sC}, 12
v_and_b32 v{t0}, 1, v{n}
v_bfe_u32 v{t1}, v{n}, 2, 1
v_bfe_u32 v{t2}, v{n}, 1, 1
s_lshl_b32 s{sD}, s{sC}, 7
s_add_u32 s{sD}, s{sD}, {WS_MEM}
v_and_b32 v{vMS}, 7, v{n}
v_lshlrev_b32 v{vMS}, 2, v{vMS}
v_lshl_add_u32 v{vMS}, v{g}, 5, v{vMS}
v_add_u32 v{vMS}, s{sD}, v{vMS}
; the unit's timing word starts with the tag of mem0
s_lshl_b32 s{sSYw}, s{sC}, 2
s_add_u32 s{sSYw}, s{sSYw}, {WS_SYN}
v_mov_b32 v30, -1
s_mov_b64 exec, 1
buffer_store_dword v30, v{vL16}, s[{S_WS}:{S_WS+3}], s{sSYw} offen sc0 sc1
s_mov_b64 exec, -1
v_lshl_add_u32 v{t0}, v{t0}, 1, v{t1}
v_lshlrev_b32 v{t2}, 4, v{t2}
v_mov_b32 v{t1}, 0x3f80
v_lshlrev_b32 v{t1}, v{t2}, v{t1}
""")
        for j in range(4):
            p.e(f"v_cmp_eq_u32 vcc, {j}, v{t0}\nv_cndmask_b32 v{SEL+j}, 0, v{t1}, vcc")
        if w == 2:
            p.e(f"v_and_b32 v{t0}, 0x70, v{vL16}\nds_write_b128 v{t0}, v[{SEL}:{SEL+3}] offset:{L_SEL}", tag="z")
        for i in range(4):
            p.e(f"buffer_store_dwordx4 v[{AV}:{AV+3}], v{vRD}, s[{S_WS}:{S_WS+3}], s{sRU} offen offset:{1024*i} sc0 sc1", tag="init")
    if w == 0:
        p.e(f"v_lshlrev_b32 v{t0}, 2, v{l}\ns_lshl_b32 s{sC}, s{sH}, 8\ns_add_u32 s{sC}, s{sC}, {WS_FLG}\nbuffer_store_dword v{AV}, v{t0}, s[{S_WS}:{S_WS+3}], s{sC} offen sc0 sc1", tag="init")
        p.e(f"""
s_lshl_b32 s{sC}, s{sH}, 10
s_cmp_ge_u32 s{sH}, 9
s_cselect_b32 s{sC}, {WS_BYTES}, s{sC}
s_add_u32 s{sD}, s{sC}, {WS_MH}
s_add_u32 s{sC}, s{sC}, {WS_MEM}
""")
        p.wv("m0")
        p.e(f"v_or_b32 v{KV}, 1, v{KV}")
        p.e(f"""
buffer_store_dwordx4 v[{KV}:{KV+3}], v{vL16}, s[{S_WS}:{S_WS+3}], s{sC} offen sc0 sc1
buffer_store_dwordx4 v[{KV}:{KV+3}], v{vL16}, s[{S_WS}:{S_WS+3}], s{sD} offen sc0 sc1
""", tag="init")
    p.e(f"""
s_getreg_b32 s{sC}, hwreg(HW_REG_XCC_ID)
s_and_b32 s{sC}, s{sC}, 15
s_mul_i32 s{sD}, s{sC}, s{sC}
s_lshl_b32 s{sD}, s{sD}, 18
s_lshl_b32 s{sC}, s{sC}, 8
s_add_u32 s{sD}, s{sD}, s{sC}
s_add_u32 s58, s{sD}, 1
s_lshl_b32 s{sFL}, s{sH}, 7
s_add_u32 s{sFL}, s{sFL}, {WS_FLG}
v_mov_b32 v{t1}, 0
""")
    for i in range(NE, DEPTH + 1): issue(i)
    if w < 2: fifth()
    p.e(f"v_mov_b32 v{t1}, 0")
    WSR = f"s[{S_WS}:{S_WS+3}]"
    DBL = f"buffer_load_dword v{vDb}, v{t1}, s[{S_DBG}:{S_DBG+3}], 0 offen sc0 sc1"
    def mid(i):
        if i == NE:
            assert not any(t == "init" for t, _ in p.vmq)
            if w == 0: p.e(f"v_mov_b32 v{t0}, s58\ns_mov_b64 exec, 1\nbuffer_atomic_add v{t0}, v{t1}, s[{S_DBG}:{S_DBG+3}], 0 offen sc1\ns_mov_b64 exec, -1", tag="arr")
        if w < 2 and i in (DEPTH + 2, DEPTH + 3):
            off = 4096 * (8 + i - DEPTH - 2)
            for x in range(2):
                for q in range(4): p.e(f"ds_read_b64_tr_b16 {vr(TMP + 8*x + 2*q, 2)}, v{vR3} offset:{off + 2048*x + 64*(8*(q >> 1) + 2*(q & 1))}", tag="tr")
            p.e("s_waitcnt lgkmcnt(0)")
            writeback(off)
        if i == 19: p.e(DBL, tag="db")
        if i == 28:
            p.wv("db")
            p.e(f"""
L_rdv_{nm}:
v_readfirstlane_b32 s{sPar}, v{vDb}
s_and_b32 s{sD}, s{sPar}, 0xff
s_cmp_lg_u32 s{sD}, 32
s_cbranch_scc1 L_rdv2_{nm}
{kvwait(nm + 'p') if cfg.get('fused') and w == 0 else ''}
""")
            p.ool.append(f"L_rdv2_{nm}:\n{DBL}\ns_sub_u32 s{sBud}, s{sBud}, 1\ns_cbranch_scc1 L_exit\ns_waitcnt vmcnt(0)\ns_branch L_rdv_{nm}")
        if i == 29:
            for x, r in enumerate((KV, KV + 4, VV, VV + 4)):
                p.e(f"buffer_load_dwordx4 {vr(r, 4)}, v{vRD if x < 2 else vL16}, {WSR}, s{sKV} offen offset:{1024*x}", tag="K0")
            p.e(f"s_mov_b32 m0, {L_MEM}\ns_nop 0\nbuffer_load_dwordx4 v{vL16}, {WSR}, s{sMEMo} offen offset:{1024*w} sc0 sc1 lds", tag="K0")
    for i in range(len(items)): consume(i, mid)
    p.e("s_barrier")
    writeback(4096 * slot(len(items) - 1))
    p.e(f"""
{tl(cfg, 1, t0, t1, True)}
{tl(cfg, 2, t0, t1)}
s_lshl_b32 s{sD}, s58, 5
s_mov_b32 s{sHALF}, 0x3f003f00
s_mov_b32 s{sHALF+1}, 0x3f003f00
s_mov_b32 s{sSYr}, {WS_SYN}
s_cmp_eq_u32 s{sPar}, s{sD}
s_cbranch_scc{'0' if not cfg.get('force_slow') else '1'} L_slow_{nm}
""")

PARAMS = dict(N=2, pd=0, r1=0, r2=0, r3=0, df=0, da=0, ds=0, d2=0, d3=0, a0=4)
SCRIPTS = {
 'base': {'0': "z f t b e", '1': "z f t b", '1r': "y f b wst4 z R r t",
          '2': "y f p7 wst1 d{r1} R b r F z t M4{N}{pd}", '3': "y f b wst3 z R r t"},
 'c':    {'0': "z f t b e", '1': "z f t b", '1r': "z f b wst4 d{r3} R r t",
          '2': "z wst1 d{r1} R f b p7 r d{df} F t d{ds} M0{N}{pd} D0123", '3': "z f b wst3 d{r2} R r t"},
 'ka':   {'0': "z f t b e l", '1': "z f t b", '1r': "z f b wst4 d{r3} R r t",
          '2': "z wst1 d{r1} R f b p7 r d{df} F t d{ds} M4{N}{pd}", '3': "z f b wst3 d{r2} R r t L"},
}
def loop(p, w, red, fast, cfg, probe=None):
    if probe is None:
        topq = []
        loop(Prog(), w, red, fast, cfg, topq)
    else: topq = []
    al = Alloc(w)
    nm = f"w{w}{'r' if red else ''}{'f' if fast else 's'}"
    ST = "" if fast else " sc0 sc1"
    LD = " sc1" if fast else " sc0 sc1"
    WSR = f"s[{S_WS}:{S_WS+3}]"
    a0, a1, a2, a3, a4 = AS
    stamps = cfg.get('stamps')
    sel = cfg.get('sel')
    def stamp(i):
        if cfg.get('trace') is not None and i != 0: return
        if stamps and (sel is None or i in sel or (i == 0 and sel)): p.e(f"s_memtime s[{sST+2*i}:{sST+2*i+1}]")
    acc = {'q': AQ, 'k': AK, 'v': AV}
    SLOT = [WST, a0, a2]
    role = f"{w}{'r' if red and w == 1 else ''}"
    script = {**SCRIPTS[cfg.get('policy', 'base')], **cfg.get('script', {})}[role]
    script = script.format(**{**PARAMS, **cfg.get('par', {})}).split()
    hooks = cfg.get('hooks', {'K': (6, 8, 9, 11), 'G': 2})
    def wreg(key, slot): return al.reg[key] if key in al.reg else SLOT[slot]
    nS = [0]
    def S(m, t, T, a):
        key = (m, t, T)
        if key in al.lds: p.wl("W0")
        for h, pos in hooks.items():
            if nS[0] == (pos[w] if isinstance(pos, tuple) else pos): hook(h)
        nS[0] += 1
        p.e(f"v_smfmac_f32_16x16x64_bf16 {vr(acc[m] + 4*T, 4)}, {vr(a, 4)}, {vr(wreg(key, 0), 8)}, v{vIdx}")
    def fillh(key, slot, h):
        p.e(f"ds_read_b128 {vr(SLOT[slot] + 4*h, 4)}, v{vW} offset:{al.lds[key] + 1024*h}", tag=f"W{slot}")
    def fh(i, T, h): fillh(al.lpairs[i] + (T,), 0, h)
    rdt = lambda t, a: f"ds_read_b128 {vr(a, 4)}, v{vL16} offset:{L_MEM + 1024*t}"
    def rdA(t, a): p.e(rdt(t, a), tag=f"A{t}")
    def dma(ts):
        o = []; cur = None
        for t in ts:
            if t >> 2 != cur:
                cur = t >> 2; o.append((f"s_mov_b32 m0, {L_MEM + 4096*cur}\ns_nop 0", None))
            o.append((f"buffer_load_dwordx4 v{vL16}, {WSR}, s{(sMEMo, sMEM1, sMEM8)[cur]} offen offset:{1024*(t & 3)}{LD} lds", f"D{t}"))
        return o
    def edma(ts):
        for x, tg in dma(ts): p.e(x, tag=tg)
    tdma = lambda ts: "\n".join(x for x, _ in dma(ts)) + "\n"
    PUB = f"buffer_store_dword v{vMask}, v{vMS}, {WSR}, s{sKM} offen sc0 sc1"
    def zero(r, n): return "\n".join(f"v_mov_b64 {vr(r + i, 2)}, 0" for i in range(0, n, 2))
    BUD = f"s_sub_u32 s{sBud}, s{sBud}, 1\ns_cbranch_scc1 L_exit\n"
    def cnt(i): return f"s_add_u32 s{(96, 97, 98, 95)[i]}, s{(96, 97, 98, 95)[i]}, 1\n" if stamps else ""
    def loadK(which=(0, 1, 2, 3)):
        for x, r in enumerate((KV, KV + 4, VV, VV + 4)):
            if x in which: p.e(f"buffer_load_dwordx4 {vr(r, 4)}, v{vRD if x < 2 else vL16}, {WSR}, s{sKV} offen offset:{1024*x}", tag="K" if x < 2 else "V")
    def hook(h):
        if h[0] == 'K': loadK([int(c) for c in h[1:]] if h[1:] else (0, 1, 2, 3))
        elif h == 'E': edma([4 + w] + ([8] if w == 1 and 'G' not in hooks else []))
        elif h == 'F': p.e(f"s_mov_b32 m0, {L_DUM}\ns_nop 0\nbuffer_load_dword v{a4+2}, {WSR}, s{sPF} offen lds", tag="PF")
        elif h == 'G':
            if w == 1: edma([8])
        elif h == 'P':
            if red: p.e(PUB, tag="pub")
        else: raise Exception(h)
    ADD = lambda d, x, y: p.e(f"v_add_f32 v{d}, v{x}, v{y}")
    CVT = lambda d, x: p.e(f"v_cvt_pk_bf16_f32 v{d}, v{x}, v{x+1}")
    QP = lambda a: f"quad_perm:[{a}] row_mask:0xf bank_mask:0xf"
    MF = "v_mfma_f32_16x16x32_bf16"; M16 = "v_mfma_f32_16x16x16_bf16"
    ck2 = lambda x, y: f"v_bitop3_b32 v{vTmp}, v{x}, v{y}, s{sT} bitop3:0x7e"
    ck1 = lambda x: f"v_bitop3_b32 v{vTmp}, v{vTmp}, v{x}, s{sT} bitop3:0xf6"
    ckA = f"v_and_b32 v{vTmp}, 1, v{vTmp}"; ckC = f"v_cmp_ne_u32 vcc, 0, v{vTmp}"

    TGA = f"v_bfe_u32 v{a4+1}, v{vL16}, 6, 1\nv_lshl_add_u32 v{a4+1}, v{a4+1}, 3, v{vL16}\nv_lshlrev_b32 v{a4+1}, 1, v{a4+1}\nv_lshlrev_b32 v{a4+2}, 2, v{vL16}"
    p.fence()
    if stamps:
        for i in range(60, 100): p.e(f"s_mov_b32 s{i}, 0")
        p.e("s_memtime s[60:61]\ns_memrealtime s[62:63]\ns_waitcnt lgkmcnt(0)\ns_mov_b32 s84, s60\ns_sub_u32 s99, s62, s59")
    p.e(zero(AQ, 24))
    fh(0, 0, 0); fh(0, 0, 1)
    p.e(TGA)
    p.e("s_waitcnt vmcnt(0) lgkmcnt(0)")
    p.vmq = [(t, set()) for t in topq]
    p.ldsq = [("W0", set())] * 2
    i_top = len(p.lines)
    p.e(f"L_top_{nm}:")
    p.fence()
    stamp(0)
    b0 = cfg.get('b0', 1)
    p.wv(f"D{b0}"); p.e("s_barrier")
    for t in range(b0 + 1): rdA(t, AS[t])
    for h in cfg.get('top', ('E',)): hook(h)
    if b0 < 3:
        p.wv("D3"); p.e("s_barrier")
        for t in range(b0 + 1, 4): rdA(t, AS[t])
    p.e(f"L_s0_{nm}:")
    refill0 = "\n".join(f"ds_read_b128 {vr(WST + 4*h, 4)}, v{vW} offset:{al.lds[al.lpairs[0] + (0,)] + 1024*h}" for h in range(2))
    p.ool.append(f"L_ra0_{nm}:\n{cnt(0)}" + tdma(range(4)) + BUD + refill0 + "\n" + zero(AQ, 24) + "\ns_waitcnt vmcnt(0)\n" +
                 "".join(rdt(t, AS[t]) + "\n" for t in range(4)) + f"s_branch L_s0_{nm}")
    p.wl("A0")
    stamp(1)
    S('k', 0, 0, a0)
    S('k', 0, 1, a0)
    S('v', 0, 0, a0)
    S('v', 0, 1, a0)
    p.wl("A1")
    S('q', 1, 0, a1)
    S('q', 0, 0, a0); fh(0, 1, 0)
    S('q', 1, 1, a1); fh(0, 1, 1)
    S('k', 1, 0, a1); p.wl("A3"); p.e(ck2(a0, a1))
    S('k', 1, 1, a1); p.e(f"v_bitop3_b32 v{a4}, v{a2}, v{a3}, s{sT} bitop3:0x7e")
    S('v', 1, 0, a1); p.e(f"v_bitop3_b32 v{vTmp}, v{vTmp}, v{a4}, 1 bitop3:0xa8")
    S('q', 0, 1, a0); fh(1, 0, 0); p.e(ckC)
    S('v', 1, 1, a1); fh(1, 0, 1)
    S('q', 2, 0, a2)
    p.e(f"s_cbranch_vccnz L_ra0_{nm}")
    S('q', 2, 1, a2)
    p.wv([f"D{t}" for t in range(4, 9)]); p.e("s_barrier")
    stamp(2)
    b4, b5, b6, b7, b8 = a4, a0, a1, a2, a3
    p.e(f"ds_read_b32 v{vTmp}, v{a4+1} offset:{L_MEM + 7168}", tag="TG")
    S('k', 2, 0, a2); rdA(5, b5)
    S('q', 3, 0, a3); rdA(6, b6)
    S('k', 2, 1, a2); rdA(4, b4)
    S('v', 2, 0, a2); fh(1, 1, 0)
    S('v', 2, 1, a2); fh(1, 1, 1); p.wl("A5"); p.e(ck2(vTmp, b5))
    S('k', 3, 0, a3); rdA(7, b7); p.wl("A6"); p.e(ck1(b6))
    S('k', 3, 1, a3); p.wl("A4"); p.e(ck1(b4)); p.e(ckA)
    S('v', 3, 0, a3); p.e(ckC)
    S('q', 3, 1, a3); fh(2, 0, 0); p.e(f"v_lshlrev_b32 v{vTmp}, 2, v{vL16}")
    S('v', 3, 1, a3); rdA(8, b8)
    p.e(f"s_cbranch_vccnz L_ra1_{nm}")
    p.e(f"L_a1_{nm}:")
    p.ool.append(f"L_ra1_{nm}:\n{cnt(1)}s_waitcnt lgkmcnt(0)\ns_barrier\n" + tdma([4 + w] + ([8] if w == 0 else [])) + BUD + f"s_waitcnt vmcnt(0)\ns_barrier\n" +
                 "".join(rdt(t, a) + "\n" for t, a in ((4, b4), (5, b5), (6, b6), (7, b7), (8, b8))) + "s_waitcnt lgkmcnt(0)\n" +
                 "\n".join([ck2(b4, b5), ck1(b6), ck1(b7), ck1(b8), ckA, ckC]) + f"\nv_lshlrev_b32 v{vTmp}, 2, v{vL16}\ns_cbranch_vccnz L_ra1_{nm}\ns_branch L_a1_{nm}")
    pfpos = cfg.get('pf', 'a')
    def PF(pos):
        if pos == cfg.get('pub', 'a') and red: p.e(PUB, tag="pub")
        if pos == pfpos: p.e(f"s_mov_b32 m0, {L_DUM}\ns_nop 0\nbuffer_load_dword v{vTmp}, {WSR}, s{sPF} offen lds", tag="PF")
    PF('a')
    S('q', 5, 0, b5); fh(2, 0, 1)
    S('q', 6, 0, b6)
    p.wl("A7"); S('q', 7, 0, b7)
    p.wl("A8"); S('q', 8, 0, b8)
    S('q', 4, 0, b4); fh(2, 1, 0)
    S('q', 5, 1, b5); fh(2, 1, 1)
    S('q', 6, 1, b6); ADD(AQ, AQ, AQ + 2)
    S('q', 7, 1, b7); ADD(AQ + 1, AQ + 1, AQ + 3)
    S('q', 8, 1, b8); CVT(AQ + 2, AQ)
    S('q', 4, 1, b4); fh(3, 0, 0)
    S('k', 4, 0, b4); fh(3, 0, 1)
    S('k', 6, 0, b6)
    ADD(AQ + 4, AQ + 4, AQ + 6); ADD(AQ + 5, AQ + 5, AQ + 7); CVT(AQ + 3, AQ + 4)
    S('k', 7, 0, b7)
    p.e(f"ds_write_b64 v{vL8}, {vr(AQ+2, 2)} offset:{L_Q + 512*w}", tag="wq")
    S('k', 8, 0, b8)
    PF('q')
    S('k', 5, 0, b5); fh(3, 1, 0)
    S('k', 4, 1, b4); fh(3, 1, 1)
    trq = [f"ds_read_b64_tr_b16 {vr(AQ + 2*x, 2)}, v{vTR} offset:{L_Q + 512*x}" for x in range(4)]
    if cfg.get('bq', 0) == 0:
        p.wl("wq"); p.e("s_barrier")
        S('k', 6, 1, b6); p.e(trq[0], tag="Q0"); p.e(trq[1], tag="Q0"); ADD(AK, AK, AK + 2)
        S('k', 7, 1, b7); p.e(trq[2], tag="Q1"); ADD(AK + 1, AK + 1, AK + 3)
        S('k', 8, 1, b8); p.e(trq[3], tag="Q1"); CVT(AK + 2, AK)
        S('k', 5, 1, b5); fh(4, 1, 0)
    else:
        S('k', 6, 1, b6); ADD(AK, AK, AK + 2)
        p.wl("wq"); p.e("s_barrier")
        S('k', 7, 1, b7); p.e(trq[0], tag="Q0"); p.e(trq[1], tag="Q0"); ADD(AK + 1, AK + 1, AK + 3)
        S('k', 8, 1, b8); p.e(trq[2], tag="Q1"); p.e(trq[3], tag="Q1"); CVT(AK + 2, AK)
        S('k', 5, 1, b5); fh(4, 1, 0)
    stamp(3)
    DX = KV
    p.wv("K"); p.wl("Q0")
    p.e(f"{MF} {vr(DX, 4)}, {vr(KV, 4)}, {vr(AQ, 4)}, 0")
    fh(4, 1, 1)
    p.wl("Q1")
    p.e(f"{MF} {vr(DX, 4)}, {vr(KV+4, 4)}, {vr(AQ+4, 4)}, {vr(DX, 4)}")
    ADD(AK + 4, AK + 4, AK + 6); ADD(AK + 5, AK + 5, AK + 7); CVT(AK + 3, AK + 4)
    p.e(f"ds_write_b64 v{vL8}, {vr(AK+2, 2)} offset:{L_K + 512*w}", tag="wk")
    S('v', 4, 0, b4)
    p.e(f"v_add_f32_dpp v{DX}, v{DX+2}, v{DX} {QP('2,3,0,1')}")
    p.e(f"v_add_f32_dpp v{DX+1}, v{DX+3}, v{DX+1} {QP('2,3,0,1')}")
    p.e(f"ds_write_b64 v{vXr}, {vr(DX, 2)} offset:{L_XS + 256*w}", tag="wx")
    S('v', 4, 1, b4)
    PF('k')
    trk = [f"ds_read_b64_tr_b16 {vr(AK + 2*x, 2)}, v{vTR} offset:{L_K + 512*x}" for x in range(4)]
    X, P_, DM, DL, ONE, DO = KV, KV + 4, AK, AK + 4, a4, AQ
    wkey = lambda i: ('o',) + al.wo_l[i]
    p.wl("wk"); p.e("s_barrier")
    p.e(trk[0], tag="K0")
    S('v', 5, 0, b5); p.e(trk[1], tag="K0"); p.e(trk[2], tag="K1")
    S('v', 5, 1, b5); p.e(trk[3], tag="K1"); p.e(f"v_mov_b64 {vr(ONE, 2)}, s[{sONE}:{sONE+1}]")
    p.wl("wx"); p.e("s_barrier")
    p.e(f"ds_read_b128 {vr(X, 4)}, v{vL16} offset:{L_XS}", tag="X")
    S('v', 8, 1, b8); fh(4, 0, 0); p.e(f"v_mov_b64 {vr(ONE+2, 2)}, s[{sONE}:{sONE+1}]")
    p.wl("K0")
    p.e(f"{MF} {vr(DM, 4)}, {vr(AK, 4)}, {vr(AQ, 4)}, 0")
    fh(4, 0, 1)
    p.wl("K1")
    p.e(f"{MF} {vr(DM, 4)}, {vr(AK+4, 4)}, {vr(AQ+4, 4)}, {vr(DM, 4)}")
    stamp(4)
    PF('m')
    MS_, MX, T1, T2 = P_, P_ + 1, P_ + 2, P_ + 3
    M = AQ
    S('v', 6, 1, b6); p.wl("X"); p.e(f"v_max3_f32 v{MX}, v{X}, v{X+1}, v{X+2}")
    S('v', 6, 0, b6); fillh(wkey(1), 1, 0)
    p.e(f"""
v_add_f32_dpp v{DM}, v{DM+2}, v{DM} {QP('2,3,0,1')}
v_add_f32_dpp v{DM+1}, v{DM+3}, v{DM+1} {QP('2,3,0,1')}
v_max_f32 v{MX}, v{MX}, v{X+3}
v_max_f32 v{MS_}, v{DM}, v{DM+1}
v_mul_f32 v{MS_}, s{sSC}, v{MS_}
v_max_f32_dpp v{MX}, v{MX}, v{MX} {QP('2,3,0,1')}
""")
    S('v', 7, 1, b7); fillh(wkey(1), 1, 1)
    p.e(f"""
v_max_f32_dpp v{T1}, v{MS_}, v{MX} {QP('0,1,0,1')}
v_max_f32_dpp v{T2}, v{MS_}, v{MX} {QP('0,1,0,1')}
""")
    S('v', 7, 0, b7); fillh(wkey(2), 2, 0)
    p.e(f"""
v_permlane16_swap_b32 v{T1}, v{T2}
v_max_f32 v{M}, v{T1}, v{T2}
v_max_f32 v{M+1}, v{T1}, v{T2}
""")
    S('v', 8, 0, b8); fillh(wkey(2), 2, 1)
    p.e(f"""
v_permlane32_swap_b32 v{M}, v{M+1}
v_max_f32 v{M}, v{M}, v{M+1}
v_sub_f32 v{X}, v{X}, v{M}
v_sub_f32 v{X+1}, v{X+1}, v{M}
v_pk_add_f32 {vr(X+2, 2)}, {vr(X+2, 2)}, {vr(M, 2)} op_sel_hi:[1,0] neg_lo:[0,1] neg_hi:[0,1]
v_exp_f32 v{X}, v{X}
v_exp_f32 v{X+1}, v{X+1}
v_exp_f32 v{X+2}, v{X+2}
v_exp_f32 v{X+3}, v{X+3}
v_cvt_pk_bf16_f32 v{P_}, v{X}, v{X+1}
v_cvt_pk_bf16_f32 v{P_+1}, v{X+2}, v{X+3}
v_pk_fma_f32 {vr(DM, 2)}, {vr(DM, 2)}, s[{sSC}:{sSC+1}], {vr(M, 2)} op_sel_hi:[1,1,0] neg_lo:[0,0,1] neg_hi:[0,0,1]
v_mov_b32_dpp v{P_+2}, v{P_} {QP('2,3,0,1')}
v_mov_b32_dpp v{P_+3}, v{P_+1} {QP('2,3,0,1')}
v_exp_f32 v{DM}, v{DM}
""")
    p.wv("V")
    stamp(5)
    PM, HALF = X, X + 2
    p.e(f"""
{MF} {vr(DL, 4)}, {vr(ONE, 4)}, {vr(P_, 4)}, 0
v_exp_f32 v{DM+1}, v{DM+1}
{MF} {vr(DO, 4)}, {vr(VV, 4)}, {vr(P_, 4)}, 0
v_cvt_pk_bf16_f32 v{PM}, v{DM}, v{DM+1}
v_cvt_pk_bf16_f32 v{PM+1}, v{DM}, v{DM+1}
v_mov_b64 {vr(HALF, 2)}, s[{sHALF}:{sHALF+1}]
{MF} {vr(DO+4, 4)}, {vr(VV+4, 4)}, {vr(P_, 4)}, 0
v_cvt_pk_bf16_f32 v{AV}, v{AV}, v{AV+1}
v_cvt_pk_bf16_f32 v{AV+1}, v{AV+2}, v{AV+3}
{M16} {vr(DL, 4)}, {vr(HALF, 2)}, {vr(PM, 2)}, {vr(DL, 4)}
v_cvt_pk_bf16_f32 v{AV+2}, v{AV+4}, v{AV+5}
v_cvt_pk_bf16_f32 v{AV+3}, v{AV+6}, v{AV+7}
{M16} {vr(DO, 4)}, {vr(AV, 2)}, {vr(PM, 2)}, {vr(DO, 4)}
""")
    fillh(wkey(0), 0, 0)
    p.e(f"{M16} {vr(DO+4, 4)}, {vr(AV+2, 2)}, {vr(PM, 2)}, {vr(DO+4, 4)}")
    fillh(wkey(0), 0, 1)
    DACC = [DM, a4, AV + 4, AV, DL]
    p.e(f"v_rcp_f32 v{DL}, v{DL}")
    p.e(zero(DACC[0], 4))
    OA = [KV, KV + 4, VV, VV + 4]
    rdO = lambda j: p.e(f"ds_read_b128 {vr(OA[j], 4)}, v{vOr} offset:{L_MEM + 1024*(4 + (w+j) % 4)}", tag=f"O{j}")
    for T in range(2):
        for j in range(2): p.e(f"v_pk_mul_f32 {vr(DO+4*T+2*j, 2)}, {vr(DO+4*T+2*j, 2)}, {vr(DL, 2)} op_sel_hi:[1,0]")
        CVT(DO + 4*T, DO + 4*T); CVT(DO + 4*T + 1, DO + 4*T + 2)
        p.e(f"ds_write_b64 v{vL16}, {vr(DO + 4*T, 2)} offset:{L_MEM + 1024*(4+w) + 8*T}", tag="wo")
    zs = (zero(DACC[1], 4) + "\n" + zero(DACC[2], 4) + "\n" + zero(DACC[3], 4) + "\n" + zero(DACC[4], 4)).split("\n")
    p.e(zs.pop(0))
    rdO(0)
    for _ in range(cfg.get('oz', 7)): p.e(zs.pop(0))
    p.wl("wo"); p.e("s_barrier")
    rdO(1)
    if cfg.get('ord', 0) == 0: rdO(2); rdO(3)
    pend = []
    fq = []; nxt = [3]
    extra = zs
    for i, (k, j) in enumerate(al.wo_order):
        key = ('o', k, j)
        p.wl(f"O{j}")
        if key in al.lds:
            sl = al.wo_l.index((k, j)) % 3
            assert not any(x[0] == key for x in fq)
            p.wl(f"W{sl}")
        else: sl = None
        p.e(f"v_smfmac_f32_16x16x64_bf16 {vr(DACC[k], 4)}, {vr(OA[j], 4)}, {vr(wreg(key, sl), 8)}, v{vIdx} abid:1")
        if sl is not None and nxt[0] < len(al.wo_l):
            fq += [(wkey(nxt[0]), sl, 0), (wkey(nxt[0]), sl, 1)]; nxt[0] += 1
        if cfg.get('ord', 0) == 1 and i == 0: rdO(2); rdO(3)
        if fq and i >= cfg.get('wofd', 1): fillh(*fq.pop(0))
        if pend and pend[0][0] <= i:
            _, ops = pend.pop(0)
            for o, tg in ops: p.e(o, tag=tg)
        elif extra: p.e(extra.pop(0))
        if j == 3:
            d = DACC[k]
            c0 = (f"v_cvt_pk_bf16_f32 v{d}, v{d}, v{d+1}", None)
            c1 = (f"v_cvt_pk_bf16_f32 v{d+1}, v{d+2}, v{d+3}", None)
            c2 = (f"v_bfi_b32 v{d}, 1, s{sT}, v{d}", None)
            c3 = (f"buffer_store_dwordx2 {vr(d, 2)}, v{vST}, {WSR}, s{sX[k]} offen{ST}", f"st{k}")
            if k <= cfg.get('wo_burst', 4): pend.append((i + 2, [c0, c1, c2, c3]))
            else: pend += [(i + 2, [c0]), (i + 3, [c1]), (i + 4, [c2, c3])]
        if i == 6: stamp(7)
    assert not extra
    for _, ops in pend:
        for o, tg in ops: p.e(o, tag=tg)
    stamp(8)
    if stamps:
        stamp(11)
        if cfg.get('abs'): p.e(f"s_memrealtime s[{sST+4}:{sST+5}]")
        if sel is None or sel: p.e("s_waitcnt lgkmcnt(0)")
        if cfg.get('abs'):
            p.e(f"s_lshl_b64 exec, 1, s{sS}")
            for i in range(12):
                if i in (0, 2) or i in sel: p.e(f"v_mov_b32 v{80+i}, s{sST+2*i}")
            for i in range(4): p.e(f"v_mov_b32 v{92+i}, s{95+i}")
            p.e("s_mov_b64 exec, -1")
        else:
            for i in range(1, 12):
                if sel is None or i in sel: p.e(f"s_sub_u32 s{sA}, s{sST+2*i}, s{sST}\ns_add_u32 s{84+i}, s{84+i}, s{sA}")
        p.e(f"s_cmp_eq_u32 s{sS}, 3\ns_cbranch_scc1 L_rst_{nm}")
        p.ool.append(f"L_rst_{nm}:\ns_memtime s[60:61]\ns_waitcnt lgkmcnt(0)\ns_sub_u32 s59, s60, s84\ns_mov_b32 s84, s60\n" + "".join(f"s_mov_b32 s{i}, 0\n" for i in range(85, 99)) + f"s_branch L_ex_{nm}")
    p.e(f"s_branch L_ex_{nm}")
    i_ex = len(p.lines)
    p.e(f"L_ex_{nm}:")
    RD = VV; t1, t2 = VV + 4, VV + 5
    RL = "\n".join(f"buffer_load_dwordx4 {vr(a0+4*i, 4)}, v{vRD}, {WSR}, s{sRU} offen offset:{1024*i}{LD}" for i in range(4))
    def delay(c):
        while c > 0:
            k = min(c, 16); p.e(f"s_nop {k-1}"); c -= k
    def book():
        if red:
            p.e(f"v_and_b32 v{vTmp}, 0x70, v{vL16}")
            p.e(f"ds_read_b128 {vr(SEL, 4)}, v{vTmp} offset:{L_SEL}", tag="SEL")
            p.e(f"v_bfe_u32 v{vMask}, v{vL16}, 4, 2\nv_lshrrev_b32_e64 v{vMask}, v{vMask}, 1")
        p.e(f"s_add_u32 s{sS}, s{sS}, 1\ns_add_u32 s{sKV}, s{sKV}, {0 if cfg.get('nokv') else 524288}\ns_add_u32 s{sPF}, s{sPF}, 524288")
        p.e(f"s_mul_i32 s{sKM}, s{sS}, {MHS}\ns_add_u32 s{sKM}, s{sKM}, {WS_MH - WS_MEM}\ns_not_b32 s{sT}, s{sT}\ns_not_b32 s{sTn}, s{sTn}")
    for act in script:
        op, arg = act[0], act[1:]
        if op == 'y': book()
        elif op == 'z':
            if 'y' not in script: book()
            p.e(zero(AQ, 24))
            if not red:
                p.e(f"s_cmp_eq_u32 s{sS}, 63\ns_cbranch_scc1 L_done_{nm}")
        elif op == 'e':
            if cfg.get('fused'):
                p.e(f"s_cmp_ge_u32 s{sS}, s{sEv}\ns_cbranch_scc1 L_ev_{nm}\nL_evb_{nm}:")
                p.ool.append(f"L_ev_{nm}:\n" + kvwait(nm) + f"s_branch L_evb_{nm}")
        elif op == 'f': fh(0, 0, 0); fh(0, 0, 1)
        elif op == 't': p.e(TGA)
        elif op == 'L':
            p.e(f"v_mov_b32 v{vTmp}, s{sS}"); p.e(f"ds_write_b32 v{vL16}, v{vTmp} offset:{L_K}", tag="lf")
        elif op == 'l':
            p.e(f"v_mov_b32 v{a1+3}, 0\nL_lw_{nm}:")
            p.e(f"ds_read_b32 v{a1+3}, v{vL16} offset:{L_K}", tag="!lw")
            p.e(f"v_cmp_ne_u32 vcc, s{sS}, v{a1+3}\ns_sub_u32 s{sBud}, s{sBud}, 1\n{zero(AQ, 4)}\ns_cbranch_scc1 L_exit\n{zero(AK, 6)}\ns_cbranch_vccnz L_lw_{nm}")
        elif op == 'w': p.wv(arg)
        elif op == 'd': delay(int(arg))
        elif op == 'R':
            for i, x in enumerate(RL.split("\n")): p.e(x, tag=f"R{i}")
            stamp(9)
        elif op == 'r':
            p.wl("SEL")
            p.wv("R0")
            p.e(f"L_r_{nm}:")
            for i in range(4):
                p.wv(f"R{i}")
                p.e(f"{MF} {vr(RD, 4)}, {vr(a0 + 4*i, 4)}, {vr(SEL, 4)}, {vr(RD, 4) if i else 0}")
                if i == 1: p.e(f"v_bitop3_b32 v{t1}, v{a0}, v{a1}, s{sTn} bitop3:0x7e")
            p.e(f"""
v_bitop3_b32 v{t2}, v{a2}, v{a3}, s{sTn} bitop3:0x7e
v_bitop3_b32 v{t1}, v{t1}, v{t2}, 1 bitop3:0xa8
v_cmp_ne_u32 vcc, 0, v{t1}
s_cmp_eq_u32 s{sS}, 63
v_pk_add_f32 {vr(RD, 2)}, {vr(RD, 2)}, {vr(RD+2, 2)}
v_cvt_pk_bf16_f32 v{t1}, v{RD}, v{RD+1}
v_bfi_b32 v{t1}, v{vMask}, s{sT}, v{t1}
s_cbranch_vccnz L_rr_{nm}
""")
            p.ool.append(f"L_rr_{nm}:\n{RL}\n{cnt(2)}{BUD}s_waitcnt vmcnt(0)\ns_branch L_r_{nm}")
            p.e(f"buffer_store_dword v{t1}, v{vMS}, {WSR}, 0 offen{ST}", tag="ms")
            stamp(10)
            p.e(f"v_mov_b32 v{vMask}, v{t1}\ns_cbranch_scc1 L_done_{nm}")
        elif op in 'KP':
            if act not in hooks and act not in cfg.get('top', ('E',)) and not (op == 'K' and cfg.get('nok')): hook(act)
        elif op == 'b': p.e("s_barrier")
        elif op == 'D':
            edma([int(c) for c in arg])
            if arg[0] == '0': stamp(6)
        elif op == 'p':
            p.e(f"v_bfe_u32 v{vTmp}, v{vL16}, 2, {arg}\nv_mov_b32 v{KV}, s{sTn}\nv_mov_b32 v{KV+1}, s{sT}\ns_mov_b32 m0, {L_MEM}")
        elif op == 'F':
            p.e("s_mov_b64 exec, 1"); p.e(f"buffer_store_dword v{KV+1}, v{vL16}, {WSR}, s{sSYw} offen{ST}", tag="fl"); p.e("s_mov_b64 exec, -1")
        elif op == 'M':
            n, N = int(arg[0]), int(arg[1])
            if not fast: N = 1
            p.e(f"L_sp_{nm}:")
            p.e(f"buffer_load_dword v{KV}, v{vTmp}, {WSR}, s{sSYr} offen{LD}", tag="!sp")
            p.e(f"{cnt(3)}s_sub_u32 s{sBud}, s{sBud}, 1\ns_cbranch_scc1 L_exit")
            delay(cfg.get('lag', 0))
            for x, tg in dma(range(n))[1:]: p.e(x, tag="x")
            delay(int(arg[2:] or 0))
            p.e(f"s_waitcnt vmcnt({(N-1)*(n+1) + n})\nv_cmp_ne_u32 vcc, s{sT}, v{KV}\ns_cbranch_vccnz L_sp_{nm}")
            p.vmq = [(f"D{t}", set()) for t in range(n)] + [("!x", set())] * ((N-1)*(n+1))
            stamp(6)
        else: raise Exception(act)
    if probe is not None: probe.extend(t for t, _ in p.vmq)
    ls = p.lines
    p.lines = ls[:i_top] + [f"s_branch L_top_{nm}", ".p2align 6"] + ls[i_ex:] + ls[i_top:i_ex]
    p.e(f"L_done_{nm}:")
    p.fence(); p.ldsq = []; p.vmq = []
    if red: p.e(PUB)
    p.e(tl(cfg, 4, AK, AK + 1))
    if cfg.get('abs'):
        p.e(f"s_lshl_b32 s{sA}, s{sH}, 14\ns_add_u32 s{sA}, s{sA}, {0x100000 + 4096*w}")
        for i in range(4): p.e(f"buffer_store_dwordx4 v[{80+4*i}:{83+4*i}], v{vL16}, {WSR}, s{sA} offen offset:{1024*i}")
    if stamps:
        p.e("s_memtime s[60:61]\ns_waitcnt lgkmcnt(0)\ns_sub_u32 s84, s60, s84")
        p.e(f"s_lshl_b32 s{sA}, s{sH}, 8\ns_add_u32 s{sA}, s{sA}, {WS_STMP + 64*w}\ns_waitcnt vmcnt(0) lgkmcnt(0)\nv_mov_b32 v{vL16}, 0")
        p.e("s_lshr_b32 s59, s59, 4\ns_lshl_b32 s59, s59, 16\ns_or_b32 s99, s99, s59")
        for i in range(16): p.e(f"v_mov_b32 v{20+i}, s{84+i}")
        for i in range(4): p.e(f"buffer_store_dwordx4 v[{20+4*i}:{23+4*i}], v{vL16}, {WSR}, s{sA} offen offset:{16*i}")
    p.e("s_waitcnt vmcnt(0) lgkmcnt(0)\ns_endpgm")

def chain_body(cfg):
    out = []
    p = Prog()
    if cfg.get('stamps'): p.e("s_memrealtime s[98:99]\ns_waitcnt lgkmcnt(0)\ns_mov_b32 s59, s98")
    setup_common(p)
    p.e(f"""
v_lshrrev_b32 v1, 6, v0
v_readfirstlane_b32 s{sW}, v1
s_cmp_eq_u32 s{sW}, 0
s_cbranch_scc1 L_pro_w0
s_cmp_eq_u32 s{sW}, 2
s_cbranch_scc1 L_pro_w2r
s_cmp_eq_u32 s{sW}, 3
s_cbranch_scc1 L_pro_w3r
s_cmp_lt_u32 s{sH}, 8
s_cbranch_scc1 L_pro_w1r
s_branch L_pro_w1
L_exit:
s_endpgm
""")
    out.append(p.text())
    for w, red in ((0, False), (1, False), (1, True), (2, True), (3, True)):
        nm = f"w{w}{'r' if red else ''}"
        p = Prog()
        p.ldsq.append(('smem', set()))
        p.e(f"L_pro_{nm}:")
        prologue(p, w, red, cfg)
        n0 = p.nops_added
        loop(p, w, red, True, cfg)
        if cfg.get('verbose'): print(nm, "nops in loop", p.nops_added - n0)
        if cfg.get('trace') is not None:
            nv = len(cfg['trace'])
            txt = p.text(); i0 = txt.index(f"s_cbranch_scc0 L_slow_{nm}\n") + len(f"s_cbranch_scc0 L_slow_{nm}\n")
            pro, body = txt[:i0], txt[i0:]
            o = pro.replace("L_exit", f"L_exit_{nm}") + f"L_slow_{nm}:\ns_and_b32 s{sA}, s{sH}, {nv-1}\n"
            for v in range(nv): o += f"s_cmp_eq_u32 s{sA}, {v}\ns_cbranch_scc1 L_var{v}_{nm}\n"
            o += "s_endpgm\n"
            for v in range(nv):
                ls = body.split("\n")
                top = ls.index(f"L_ex_{nm}f:"); tp2 = ls.index(f"L_top_{nm}f:")
                if cfg.get('solo'):
                    dn = ls.index(f"L_done_{nm}f:")
                    ls = ls[:top] + [x for x in ls[top:dn] if not (x.startswith('buffer_') and cfg['solo'] in x) ] + ls[dn:]
                cfg.setdefault('listing', {})[nm] = ls[top:]
                if cfg.get('refbar'):
                    bars = [x for x in range(tp2, len(ls)) if ls[x] == 's_barrier']
                    ls.insert(bars[cfg['refbar'] - 1] + 1, ls[tp2 + 1]); del ls[tp2 + 1]
                    cfg['listing'][nm] = ls[top:]
                for k, pos in sorted(enumerate(cfg['trace'][v]), key=lambda x: -x[1]):
                    ls.insert(top + pos, f"s_memtime s[{sST+2*k+2}:{sST+2*k+3}]")
                o += f"L_var{v}_{nm}:\n" + re.sub(rf"(L_\w+_{nm}f)", rf"\1_{v}", "\n".join(ls)).replace("L_exit", f"L_exit_{nm}")
            out.append(o + f"L_exit_{nm}:\ns_endpgm\n")
            continue
        out.append(p.text())
        p = Prog()
        p.e(f"L_slow_{nm}:")
        loop(p, w, red, False, cfg)
        out.append(p.text())
    t = "".join(out)
    if cfg.get('nocheck'): t = re.sub(r"s_cbranch_vccnz L_r\w+", "s_nop 0", t)
    if cfg.get('nosm'): t = re.sub(r"v_smfmac[^\n]*", "s_nop 0", t)
    if cfg.get('nobar'): t = re.sub(r"s_barrier", "s_nop 0", t)
    return t

if __name__ == "__main__":
    t = chain_body({'verbose': True})
    open('chain_body.s', 'w').write('.amdgcn_target "amdgcn-amd-amdhsa--gfx950"\n.text\n' + t)
```

```python
from asmgen import *
from chain import WS_MH, MHS, WS_KVX, WS_BYTES, WS_FLG, SCALE, tl, coop_src, coop_tr
import math, struct
WS_QX  = 0x3000000
WS_O   = 0x4000000
WS_OA  = 0x5000000
WS_OMG = 0x5300000
F_KV = WS_FLG
F_O = WS_FLG + 4096
f2u = lambda x: struct.unpack('<I', struct.pack('<f', x))[0]
NEG = f2u(-1e30)
SC = " sc0 sc1"
S_WS, S_X, S_W0, S_W1, S_W2, S_DBG, S_OUT, S_G = 4, 8, 12, 16, 20, 24, 28, 64
sP0, sP1, sW, sI, sBud = 32, 33, 34, 35, 36
sA, sB, sC, sD, sE, sF = 37, 38, 39, 40, 41, 42
sXs, sXm = 43, 44
sSCp = 46
sP2, sP3 = 48, 49
def R(b): return f"s[{b}:{b+3}]"
def srd(p, b, slot, n):
    p.e(f"s_load_dwordx2 s[{b}:{b+1}], s[0:1], {slot}\ns_mov_b32 s{b+2}, {n}\ns_mov_b32 s{b+3}, 0x20000")
MF = "v_mfma_f32_16x16x32_bf16"
XBUF = 36864

def poll(p, name, srdb, vaddr, soff, off, vt, test, sleep=4):
    p.e(f"""
s_branch {name}_in
{name}:
s_sleep {sleep}
{name}_in:
buffer_load_dword v{vt}, v{vaddr}, {R(srdb)}, {soff} offen offset:{off}{SC}
s_sub_u32 s{sBud}, s{sBud}, 1
s_cbranch_scc1 L_exit_w
s_waitcnt vmcnt(0)
{test}
s_cbranch_scc0 {name}
""")

def lanes(p, l, n, g):
    p.e(f"v_and_b32 v{l}, 63, v0\nv_and_b32 v{n}, 15, v0\nv_bfe_u32 v{g}, v0, 4, 2\nv_lshrrev_b32 v1, 6, v0\nv_readfirstlane_b32 s{sW}, v1")

def x_addr(p, vXg, vXr, l, n, g, t0, t1):
    p.e(f"""
v_lshrrev_b32 v{t0}, 2, v{l}
v_mul_u32_u24 v{vXg}, 1152, v{t0}
v_lshrrev_b32 v{t0}, 5, v{l}
v_lshlrev_b32 v{t0}, 1, v{t0}
v_and_b32 v{t1}, 3, v{l}
v_xor_b32 v{t0}, v{t0}, v{t1}
v_lshl_add_u32 v{vXg}, v{t0}, 4, v{vXg}
v_lshrrev_b32 v{t0}, 3, v{n}
v_lshlrev_b32 v{t0}, 1, v{t0}
v_xor_b32 v{t0}, v{t0}, v{g}
v_lshlrev_b32 v{t0}, 4, v{t0}
v_lshl_add_u32 v{vXr}, v{n}, 6, v{t0}
""")

def x_dma(j, vXg):
    return f"s_add_u32 s{sA}, s{sXs}, {128*j}\ns_add_u32 m0, s{sXm}, {4096*j}\ns_nop 0\nbuffer_load_dwordx4 v{vXg}, {R(S_X)}, s{sA} offen lds"

def load_weights(p, pairs, rowstride, vTr, sRing, nslot, wreg, mid=None):
    items = [(pi, kk) for pi in range(len(pairs)) for kk in range(9)]
    D = nslot - 1
    def issue(i):
        pi, kk = items[i]; b, va, so = pairs[pi]
        for d in range(4):
            p.e(f"s_add_u32 s{sA}, s{so}, {(64*kk + 16*d) * rowstride}\ns_add_u32 m0, s{sRing}, {4096*(i % nslot) + 1024*d}")
            p.e(f"buffer_load_dwordx4 v{va}, {R(b)}, s{sA} offen lds", tag=f"d{i}")
    for i in range(D): issue(i)
    if mid: mid()
    for i, (pi, kk) in enumerate(items):
        p.wv(f"d{i}")
        for T in range(2):
            for k2 in range(2):
                for q in range(2):
                    p.e(f"ds_read_b64_tr_b16 {vr(wreg(2*pi + T, 2*kk + k2) + 2*q, 2)}, v{vTr} offset:{4096*(i % nslot) + 2048*k2 + 256*q + 32*T}", tag="tr")
        p.e("s_waitcnt lgkmcnt(0)")
        if i + D < len(items): issue(i + D)

def load_weights_coop(p, mats, vG, sCol, sRing, nslot, wreg, mid):
    items = [(pi, kk) for pi in range(len(mats)) for kk in range(9)]
    def issue(i):
        pi, kk = items[i]
        for d in range(4):
            p.e(f"s_add_u32 s{sA}, s{sCol}, {(64*kk + 4*d) * 8192}\ns_add_u32 m0, s{sRing}, {4096*(i % nslot) + 1024*d}")
            p.e(f"buffer_load_dwordx4 v{vG[d >> 1]}, {R(mats[pi][1])}, s{sA} offen lds", tag=f"d{i}")
    for i in range(nslot): issue(i)
    mid()
    for i, (pi, kk) in enumerate(items):
        p.wv(f"d{i}")
        p.e("s_barrier")
        if i >= 1 and i + nslot - 1 < len(items): issue(i + nslot - 1)
        for T in range(2):
            for k2 in range(2):
                for q in range(2):
                    p.e(f"ds_read_b64_tr_b16 {vr(wreg(2*mats[pi][0] + T, 2*kk + k2) + 2*q, 2)}, v{mats[pi][2][k2][T]} offset:{4096*(i % nslot) + 1024*q}", tag="tr")
        p.e("s_waitcnt lgkmcnt(0)")

def gemm_block(p, NT, wreg, accreg, XS, vXr, vXg, w_is_a, mid=None):
    def rd(ks):
        for tt in range(2): p.e(f"ds_read_b128 {vr(XS + 8*(ks & 1) + 4*tt, 4)}, v{vXr} offset:{(2*ks + tt) * 1024}", tag=f"x{ks}")
    rd(0)
    for ks in range(18):
        if ks + 1 < 18: rd(ks + 1)
        p.wl(f"x{ks}")
        for ti in range(NT):
            for tt in range(2):
                a = accreg(ti, tt); x = vr(XS + 8*(ks & 1) + 4*tt, 4); wv = vr(wreg(ti, ks), 4)
                A, B = (wv, x) if w_is_a(ti) else (x, wv)
                p.e(f"{MF} {vr(a, 4)}, {A}, {B}, {vr(a, 4) if ks else 0}")
            if ti == 1 and ks < 9: p.e(x_dma(ks, vXg), tag="xd")
            if ti == 1 and ks == 10 and mid: mid()

def tr_addr(p, v, n, g, t0, rowbytes, gmul):
    p.e(f"""
v_lshrrev_b32 v{t0}, 2, v{n}
v_lshl_add_u32 v{t0}, v{g}, {gmul.bit_length()-1}, v{t0}
v_mul_u32_u24 v{v}, {rowbytes}, v{t0}
v_and_b32 v{t0}, 3, v{n}
v_lshl_add_u32 v{v}, v{t0}, 3, v{v}
""")

def role_q(cfg):
    p = Prog()
    sH, sR = sP0, sP1
    vL16, vXg, vXr, vKst, vGq, vGv, vTr, vZ, l, n, g, t0, t1 = range(1, 14)
    ACC, XS, WB = 16, 64, 80
    wreg = lambda ti, ks: WB + 72*ti + 4*ks
    acc = lambda ti, tt: ACC + 8*ti + 4*tt
    p.e("L_role_q:")
    srd(p, S_WS, 104, WS_BYTES); srd(p, S_X, 0, 2359296); srd(p, S_W0, 40, 4718592); srd(p, S_W1, 48, 4718592); srd(p, S_W2, 56, 4718592); srd(p, S_DBG, 96, 256)
    lanes(p, l, n, g)
    x_addr(p, vXg, vXr, l, n, g, t0, t1)
    p.e(coop_src(vGq, vGv, n, g, t0, "", f"v_lshlrev_b32 v{t0}, 13, v{g}"))
    p.e(f"""
v_lshlrev_b32 v{vL16}, 4, v{l}
s_mul_i32 s{sB}, s{sW}, 20480
s_add_u32 s{sB}, s{sB}, {2*XBUF}
s_lshl_b32 s{sC}, s{sH}, 8
s_lshl_b32 s{sD}, s{sW}, 17
s_add_u32 s{sC}, s{sC}, s{sD}
s_lshl_b32 s{sXs}, s{sR}, 1
s_and_b32 s{sE}, s{sW}, 1
s_add_u32 s{sXs}, s{sXs}, s{sE}
s_mul_i32 s{sXs}, s{sXs}, 18432
s_lshr_b32 s{sE}, s{sW}, 1
s_lshl_b32 s{sE}, s{sE}, 6
s_add_u32 s{sXs}, s{sXs}, s{sE}
s_lshl_b32 s{sXm}, s{sW}, 10
s_mov_b32 s{sBud}, {cfg.get('budget', 400000)}
s_mov_b32 s{sSCp}, {SCALE:#x}
s_mov_b32 s{sSCp+1}, {SCALE:#x}
v_mov_b32 v{vZ}, 0
; vKst = (n>>2)*4096 + g*256 + (n&3)*16
v_lshrrev_b32 v{t0}, 2, v{n}
v_lshlrev_b32 v{vKst}, 12, v{t0}
v_lshl_add_u32 v{vKst}, v{g}, 8, v{vKst}
v_and_b32 v{t0}, 3, v{n}
v_lshl_add_u32 v{vKst}, v{t0}, 4, v{vKst}
s_waitcnt lgkmcnt(0)
""")
    TQ = [[16, 17], [18, 19]]; TV = [[20, 21], [22, 23]]
    def mid():
        for j in range(9): p.e(x_dma(j, vXg), tag="xd")
        reg = [2*XBUF + 20480*x for x in range(4)]
        for T in range(2):
            p.e(f"s_lshr_b32 s{sD}, s{sW}, 1\ns_lshl_b32 s{sD}, s{sD}, 3\ns_and_b32 s{sE}, s{sW}, 1\ns_lshl_b32 s{sE}, s{sE}, 1\ns_add_u32 s{sD}, s{sD}, s{sE}\ns_add_u32 s{sD}, s{sD}, {4*T}")
            p.e(f"s_lshl_b32 s{sE}, s{sW}, 2\ns_add_u32 s{sE}, s{sE}, {2*T}")
            for k2 in range(2):
                p.e(coop_tr(TQ[k2][T], f"s{sD}", reg[2*k2], reg[2*k2 + 1], n, g, t0, t1))
                p.e(coop_tr(TV[k2][T], f"s{sE}", reg[2*k2], reg[2*k2 + 1], n, g, t0, t1))
    load_weights_coop(p, [(0, S_W0, TQ), (1, S_W1, TQ), (2, S_W2, TV)], (vGq, vGv), sC, sB, 5, wreg, mid)
    sQ, sK, sV = sC, sD, sE
    p.e(tl(cfg, 1, t0, t1, True))
    p.e(f"""
s_lshl_b32 s{sF}, s{sR}, 5
s_add_u32 s{sF}, s{sF}, s{sH}
s_lshl_b32 s{sQ}, s{sF}, 13
s_lshl_b32 s{sA}, s{sW}, 11
s_add_u32 s{sQ}, s{sQ}, s{sA}
s_add_u32 s{sQ}, s{sQ}, {WS_QX}
s_lshl_b32 s{sK}, s{sF}, 14
s_add_u32 s{sK}, s{sK}, {WS_KVX}
s_lshl_b32 s{sA}, s{sW}, 12
s_add_u32 s{sV}, s{sK}, s{sA}
s_lshr_b32 s{sA}, s{sW}, 1
s_lshl_b32 s{sA}, s{sA}, 10
s_add_u32 s{sK}, s{sK}, s{sA}
s_and_b32 s{sA}, s{sW}, 1
s_lshl_b32 s{sA}, s{sA}, 6
s_add_u32 s{sK}, s{sK}, s{sA}
s_mov_b32 s{sI}, 0
s_mov_b32 s{sP2}, {XBUF}
s_lshl_b32 s{sP3}, s{sH}, 5
s_lshl_b32 s{sA}, s{sR}, 2
s_add_u32 s{sP3}, s{sP3}, s{sA}
s_add_u32 s{sP3}, s{sP3}, s{sW}
s_lshl_b32 s{sP3}, s{sP3}, 2
s_add_u32 s{sP3}, s{sP3}, {F_KV}
""")
    poll(p, "L_q_init", S_DBG, vZ, 0, 0, t0, f"v_readfirstlane_b32 s{sA}, v{t0}\ns_and_b32 s{sA}, s{sA}, 0xff\ns_cmp_eq_u32 s{sA}, 32")
    PROG = f"v_mov_b32 v{t0}, s{sI}\ns_mov_b64 exec, 1\nbuffer_store_dword v{t0}, v{vZ}, {R(S_WS)}, s{sP3} offen{SC}\ns_mov_b64 exec, -1"
    def prog():
        p.wv("st"); p.e(PROG, tag="pg")
    p.raw(".p2align 6")
    p.e("L_q_loop:")
    p.fence(); p.vmq = [("xd", set()), ("pg", set())] + [("st", set())] * 6
    p.wv("xd")
    p.e(f"""
s_barrier
s_add_u32 s{sXs}, s{sXs}, {4*XBUF}
s_add_u32 s{sXm}, s{sXm}, s{sP2}
""")
    gemm_block(p, 6, wreg, acc, XS, vXr, vXg, lambda ti: ti < 4, prog)
    p.e(f"v_add_u32 v{vXr}, s{sP2}, v{vXr}\ns_sub_u32 s{sP2}, 0, s{sP2}")
    def pack(d, a, b):
        for i, x in enumerate((a, a + 2, b, b + 2)): p.e(f"v_cvt_pk_bf16_f32 v{d+i}, v{x}, v{x+1}")
    for tt in range(2):
        pack(XS + 4*tt, acc(0, tt), acc(1, tt))
        p.e(f"buffer_store_dwordx4 {vr(XS + 4*tt, 4)}, v{vL16}, {R(S_WS)}, s{sQ} offen offset:{1024*tt}", tag="st")
    for x in range(acc(2, 0), acc(4, 0), 2): p.e(f"v_pk_mul_f32 {vr(x, 2)}, {vr(x, 2)}, s[{sSCp}:{sSCp+1}]")
    for tt in range(2):
        pack(XS + 8 + 4*tt, acc(2, tt), acc(3, tt))
        p.e(f"buffer_store_dwordx4 {vr(XS + 8 + 4*tt, 4)}, v{vKst}, {R(S_WS)}, s{sK} offen offset:{128*tt}{SC}", tag="st")
    for T in range(2):
        pack(acc(0, T), acc(4 + T, 0), acc(4 + T, 1))
        p.e(f"buffer_store_dwordx4 {vr(acc(0, T), 4)}, v{vL16}, {R(S_WS)}, s{sV} offen offset:{2048 + 1024*T}{SC}", tag="st")
    p.e(f"""
s_add_u32 s{sQ}, s{sQ}, {4*32*8192}
s_add_u32 s{sK}, s{sK}, {4*32*16384}
s_add_u32 s{sV}, s{sV}, {4*32*16384}
s_add_u32 s{sI}, s{sI}, 1
s_cmp_lg_u32 s{sI}, 1
s_cbranch_scc1 L_q_n1
s_waitcnt vmcnt(0)
{PROG}
{tl(cfg, 2, t0, t1)}
s_waitcnt vmcnt(0)
L_q_n1:
s_cmp_lt_u32 s{sI}, 16
s_cbranch_scc1 L_q_loop
s_waitcnt vmcnt(0)
{PROG}
s_barrier
""")
    p.fence(); p.vmq = []
    p.e(tl(cfg, 3, t0, t1))
    Q, K, V, BI, ONE, DX, DM, KM, VM, P, PM, O, DL, M, MA, MS, AC, KG = 16, 32, 64, 80, 92, 96, 104, 108, 124, 132, 136, 140, 156, 160, 164, 176, 192, 208
    vMr, vL4, vMk, vEw, vVr = 14, 15, vGq, vGv, vXr
    sQ0, sQ1, sKx, sV0, sV1, sMH, sO, sMH8, sFO, sTg, sMH1 = range(50, 61)
    L_KX, L_VX = 9216, 13312
    p.e(f"""
s_lshr_b32 s{sA}, s{sW}, 1
s_and_b32 s{sB}, s{sW}, 1
s_lshl_b32 s{sQ0}, s{sF}, 13
s_lshl_b32 s{sC}, s{sA}, 10
s_add_u32 s{sQ0}, s{sQ0}, s{sC}
s_add_u32 s{sQ0}, s{sQ0}, {WS_QX}
s_lshl_b32 s{sKx}, s{sF}, 14
s_add_u32 s{sKx}, s{sKx}, {WS_KVX}
s_lshl_b32 s{sC}, s{sB}, 13
s_add_u32 s{sV0}, s{sKx}, s{sC}
s_mul_i32 s{sMH}, s{sR}, {MHS}
s_add_u32 s{sMH}, s{sMH}, {WS_MH}
s_and_b32 s{sTg}, s{sR}, 1
s_sub_u32 s{sTg}, s{sTg}, 1
s_lshl_b32 s{sC}, s{sR}, 1
s_add_u32 s{sC}, s{sC}, s{sA}
s_lshl_b32 s{sO}, s{sC}, 6
s_lshl_b32 s{sD}, s{sH}, 1
s_add_u32 s{sD}, s{sD}, s{sB}
s_add_u32 s{sO}, s{sO}, s{sD}
s_lshl_b32 s{sFO}, s{sO}, 2
s_add_u32 s{sFO}, s{sFO}, {F_O}
s_lshl_b32 s{sO}, s{sO}, 11
s_add_u32 s{sO}, s{sO}, {WS_O}
s_mov_b32 s{sI}, 0
s_lshl_b32 s{sA}, s{sA}, 4
v_add_u32 v{t0}, s{sA}, v{n}
v_lshlrev_b32 v{t1}, 2, v{g}
v_sub_u32 v{t0}, v{t0}, v{t1}
v_mov_b32 v{t1}, {NEG:#x}
""")
    for kt in range(2):
        for r in range(4): p.e(f"v_cmp_le_i32 vcc, {16*kt + r}, v{t0}\nv_cndmask_b32 v{BI + 4*kt + r}, v{t1}, v{vZ}, vcc")
    p.e(f"v_cmp_gt_u32 vcc, 2, v{g}")
    for r in range(4): p.e(f"v_cndmask_b32 v{BI + 8 + r}, v{t1}, v{vZ}, vcc")
    for i in range(4): p.e(f"v_mov_b32 v{ONE+i}, 0x3f803f80")
    p.e(f"""
v_lshrrev_b32 v{t0}, 1, v{g}
v_lshlrev_b32 v{vMr}, 8, v{t0}
v_and_b32 v{t0}, 1, v{g}
v_lshl_add_u32 v{vMr}, v{t0}, 5, v{vMr}
v_bfe_u32 v{t0}, v{n}, 1, 2
v_lshl_add_u32 v{vMr}, v{t0}, 6, v{vMr}
v_and_b32 v{t0}, 1, v{n}
v_lshl_add_u32 v{vMr}, v{t0}, 4, v{vMr}
s_lshl_b32 s{sA}, s{sW}, 8
v_lshl_add_u32 v{vL4}, v{l}, 2, s{sA}
s_lshl_b32 s{sA}, s{sW}, 10
v_add_u32 v{vEw}, s{sA}, v{vL16}
s_lshl_b32 s{sB}, s{sB}, 11
v_add_u32 v{vVr}, s{sB}, v{vL16}
v_and_b32 v{t0}, 3, v{n}
v_cmp_eq_u32 vcc, 0, v{t0}
v_cndmask_b32 v{vMk}, 0, 1, vcc
""")
    p.e("L_at_loop:")
    p.fence()
    p.e(f"s_add_u32 s{sQ1}, s{sQ0}, 4096\ns_add_u32 s{sV1}, s{sV0}, 4096\ns_add_u32 s{sMH1}, s{sMH}, 4096\ns_add_u32 s{sMH8}, s{sMH}, 8192")
    for uT in range(4):
        p.e(f"buffer_load_dwordx4 {vr(Q + 4*uT, 4)}, v{vL16}, {R(S_WS)}, s{sQ0 if uT < 2 else sQ1} offen offset:{2048*(uT & 1)}", tag=f"Q{uT}")
        for kt in range(2):
            p.e(f"buffer_load_dwordx4 {vr(K + 16*kt + 4*uT, 4)}, v{vKst}, {R(S_WS)}, s{sKx} offen offset:{1024*(uT >> 1) + 64*(uT & 1) + 128*kt} sc1", tag=f"Q{uT}")
    for E in range(4):
        p.e(f"buffer_load_dwordx4 {vr(V + 4*E, 4)}, v{vL16}, {R(S_WS)}, s{sV0 if E < 2 else sV1} offen offset:{2048 + 1024*(E & 1)} sc1", tag="V")
    for uT in range(4):
        p.wv(f"Q{uT}")
        for kt in range(2):
            p.e(f"{MF} {vr(DX + 4*kt, 4)}, {vr(K + 16*kt + 4*uT, 4)}, {vr(Q + 4*uT, 4)}, {vr((DX if uT else BI) + 4*kt, 4)}")
    p.e(f"""
v_max3_f32 v{M}, v{DX}, v{DX+1}, v{DX+2}
v_max3_f32 v{M}, v{M}, v{DX+3}, v{DX+4}
v_max3_f32 v{M}, v{M}, v{DX+5}, v{DX+6}
v_max_f32 v{M}, v{M}, v{DX+7}
s_branch L_at_in
L_at_poll:
s_sleep {cfg.get('slq', 2)}
L_at_in:
buffer_load_dwordx4 {vr(MA, 4)}, v{vEw}, {R(S_WS)}, s{sMH} offen{SC}
buffer_load_dwordx4 {vr(MA+4, 4)}, v{vEw}, {R(S_WS)}, s{sMH1} offen{SC}
buffer_load_dword v{MA+8}, v{vL4}, {R(S_WS)}, s{sMH8} offen{SC}
s_sub_u32 s{sBud}, s{sBud}, 1
s_cbranch_scc1 L_exit_w
s_waitcnt vmcnt(0)
v_bitop3_b32 v{t0}, v{MA}, v{MA+4}, s{sTg} bitop3:0x7e
v_bitop3_b32 v{t1}, v{MA+8}, s{sTg}, v{vMk} bitop3:0x28
v_and_or_b32 v{t0}, v{t0}, 1, v{t1}
v_cmp_ne_u32 vcc, 0, v{t0}
s_cbranch_vccnz L_at_poll
ds_write_b128 v{vEw}, {vr(MA, 4)}
ds_write_b128 v{vEw}, {vr(MA+4, 4)} offset:4096
ds_write_b32 v{vL4}, v{MA+8} offset:8192
s_waitcnt lgkmcnt(0)
s_barrier
""")
    def rdm(ks): p.e(f"ds_read_b128 {vr(MS + 4*(ks & 3), 4)}, v{vMr} offset:{512*ks}", tag=f"m{ks}")
    for ks in range(3): rdm(ks)
    for ks in range(18):
        if ks + 3 < 18: rdm(ks + 3)
        p.wl(f"m{ks}")
        x = vr(MS + 4*(ks & 3), 4)
        for j in range(4):
            wv = vr(wreg(2 + j, ks), 4); a = vr(AC + 4*j, 4)
            A_, B_ = (wv, x) if j < 2 else (x, wv)
            p.e(f"{MF} {a}, {A_}, {B_}, {a if ks else 0}")
    for x in range(AC, AC + 8): p.e(f"v_mul_f32 v{x}, s{sSCp}, v{x}")
    for i in range(4): p.e(f"v_cvt_pk_bf16_f32 v{KG+i}, v{AC+2*i}, v{AC+2*i+1}")
    p.e(f"ds_write_b128 v{vEw}, {vr(KG, 4)} offset:{L_KX}", tag="e")
    for i in range(4, 8): p.e(f"v_cvt_pk_bf16_f32 v{KG+i}, v{AC+2*i}, v{AC+2*i+1}")
    p.e(f"ds_write_b128 v{vEw}, {vr(KG+4, 4)} offset:{L_VX}", tag="e")
    p.e("s_waitcnt lgkmcnt(0)\ns_barrier")
    for uT in range(4): p.e(f"ds_read_b128 {vr(KM + 4*uT, 4)}, v{vL16} offset:{L_KX + 1024*uT}", tag=f"k{uT}")
    for b in range(2): p.e(f"ds_read_b128 {vr(VM + 4*b, 4)}, v{vVr} offset:{L_VX + 1024*b}", tag="vm")
    for uT in range(4):
        p.wl(f"k{uT}")
        p.e(f"{MF} {vr(DM, 4)}, {vr(KM + 4*uT, 4)}, {vr(Q + 4*uT, 4)}, {vr(DM if uT else BI + 8, 4)}")
    p.e(f"""
v_max3_f32 v{M}, v{M}, v{DM}, v{DM+1}
v_max3_f32 v{M+1}, v{M}, v{DM+2}, v{DM+3}
v_max3_f32 v{M}, v{M}, v{DM+2}, v{DM+3}
v_permlane16_swap_b32 v{M}, v{M+1}
v_max_f32 v{M+2}, v{M}, v{M+1}
v_max_f32 v{M+3}, v{M}, v{M+1}
v_permlane32_swap_b32 v{M+2}, v{M+3}
v_max_f32 v{M}, v{M+2}, v{M+3}
""")
    for x in range(DX, DX + 12, 2):
        p.e(f"v_pk_add_f32 {vr(x, 2)}, {vr(x, 2)}, {vr(M, 2)} op_sel_hi:[1,0] neg_lo:[0,1] neg_hi:[0,1]")
    for x in range(DX, DX + 12): p.e(f"v_exp_f32 v{x}, v{x}")
    for i in range(6): p.e(f"v_cvt_pk_bf16_f32 v{P+i}, v{DX+2*i}, v{DX+2*i+1}")
    p.e(f"{MF} {vr(DL, 4)}, {vr(ONE, 4)}, {vr(P, 4)}, 0")
    for E in range(4): p.e(f"{MF} {vr(O + 4*E, 4)}, {vr(V + 4*E, 4)}, {vr(P, 4)}, 0")
    p.wl("vm")
    M16 = "v_mfma_f32_16x16x16_bf16"
    p.e(f"{M16} {vr(DL, 4)}, {vr(ONE, 2)}, {vr(PM, 2)}, {vr(DL, 4)}")
    for E in range(4): p.e(f"{M16} {vr(O + 4*E, 4)}, {vr(VM + 2*E, 2)}, {vr(PM, 2)}, {vr(O + 4*E, 4)}")
    p.e(f"v_rcp_f32 v{DL}, v{DL}")
    for b in range(2):
        for x in range(O + 8*b, O + 8*b + 8): p.e(f"v_mul_f32 v{x}, v{x}, v{DL}")
        for i in range(4): p.e(f"v_cvt_pk_bf16_f32 v{O + 8*b + i}, v{O + 8*b + 2*i}, v{O + 8*b + 2*i + 1}")
        p.e(f"buffer_store_dwordx4 {vr(O + 8*b, 4)}, v{vL16}, {R(S_WS)}, s{sO} offen offset:{1024*b}{SC}", tag="st")
    p.e(f"""
s_add_u32 s{sI}, s{sI}, 1
v_mov_b32 v{t1}, s{sI}
s_add_u32 s{sQ0}, s{sQ0}, {4*32*8192}
s_add_u32 s{sKx}, s{sKx}, {4*32*16384}
s_add_u32 s{sV0}, s{sV0}, {4*32*16384}
s_add_u32 s{sMH}, s{sMH}, {4*MHS}
s_add_u32 s{sO}, s{sO}, {8*131072}
s_waitcnt vmcnt(0)
s_mov_b64 exec, 1
buffer_store_dword v{t1}, v{vZ}, {R(S_WS)}, s{sFO} offen{SC}
s_mov_b64 exec, -1
s_cmp_lt_u32 s{sI}, 16
s_cbranch_scc1 L_at_loop
s_waitcnt vmcnt(0)
{tl(cfg, 5, t0, t1)}
s_endpgm
""")
    return p.text()

TS = 456; L_T = 2*XBUF; L_G = L_T + 192*TS
def role_aw(cfg):
    p = Prog()
    sHG, sRT, sTM, sCG = sP0, sP1, sP2, sP3
    vL16, vXg, vXr, vTw, vG0, vG1, vTr, vZ, l, n, g, t0, t1 = range(1, 14)
    ACC, XS, WB = 16, 64, 80
    wreg = lambda ti, ks: WB + 72*ti + 4*ks
    acc = lambda ti, tt: ACC + 8*ti + 4*tt
    sTog, sGw = 50, 51
    p.e("L_role_aw:")
    srd(p, S_WS, 104, WS_BYTES); srd(p, S_X, 0, 2359296); srd(p, S_W0, 8, 1990656); srd(p, S_W1, 16, 663552); srd(p, S_W2, 64, 4718592)
    srd(p, S_DBG, 96, 256); srd(p, S_OUT, 88, 2359296); srd(p, S_G, 80, 1152)
    if cfg.get('mall', True):
        for b, slot in ((68, 40), (72, 48), (76, 56)): srd(p, b, slot, 4718592)
        p.e(f"s_mul_i32 s{sA}, s{sTM}, 12\ns_add_u32 s{sA}, s{sA}, s{sCG}\ns_lshl_b32 s{sA}, s{sA}, 15\ns_add_u32 s{sB}, s{sA}, {96*32768}\nv_lshlrev_b32 v2, 7, v0\ns_waitcnt lgkmcnt(0)")
        for x, b in enumerate((68, 72, 76, S_W2)):
            p.e(f"buffer_load_dword v{64+2*x}, v2, {R(b)}, s{sA} offen\nbuffer_load_dword v{65+2*x}, v2, {R(b)}, s{sB} offen", tag="!pf")
    lanes(p, l, n, g)
    x_addr(p, vXg, vXr, l, n, g, t0, t1)
    tr_addr(p, vTr, n, g, t0, 64, 8)
    p.e(f"""
v_lshlrev_b32 v{vL16}, 4, v{l}
s_mul_i32 s{sB}, s{sW}, 20480
s_add_u32 s{sB}, s{sB}, {L_T}
v_add_u32 v{vTr}, s{sB}, v{vTr}
v_mov_b32 v{vZ}, 0
""")
    for pr, vg in ((0, vG0), (1, vG1)):
        p.e(f"""
; piece P = min(8w + {4*pr} + (l&3), 26): (P/9)*1152 + (P%9)*16 + (l>>2)*3456
s_lshl_b32 s{sA}, s{sW}, 3
s_add_u32 s{sA}, s{sA}, {4*pr}
v_and_b32 v{t0}, 3, v{l}
v_add_u32 v{t0}, s{sA}, v{t0}
v_min_u32 v{t0}, 26, v{t0}
v_mul_u32_u24 v{t1}, 57, v{t0}
v_lshrrev_b32 v{t1}, 9, v{t1}
v_mul_u32_u24 v{t1}, {1152 - 144}, v{t1}
v_lshl_add_u32 v{t1}, v{t0}, 4, v{t1}
v_lshrrev_b32 v{t0}, 2, v{l}
v_mul_u32_u24 v{t0}, 3456, v{t0}
v_add_u32 v{vg}, v{t0}, v{t1}
""")
    p.e(f"""
s_mul_i32 s{sC}, s{sHG}, 144
s_mul_i32 s{sD}, s{sRT}, 11
s_and_b32 s{sE}, s{sW}, 1
s_add_u32 s{sD}, s{sD}, s{sE}
s_sub_u32 s{sD}, s{sD}, 1
s_max_i32 s{sE}, s{sD}, 0
s_lshr_b32 s{sF}, s{sW}, 1
s_lshl_b32 s{sF}, s{sF}, 6
s_mul_i32 s{sXs}, s{sE}, 18432
s_add_u32 s{sXs}, s{sXs}, s{sF}
s_mul_i32 s{sD}, s{sD}, 18432
s_add_u32 s{sD}, s{sD}, s{sF}
s_lshl_b32 s{sXm}, s{sW}, 10
s_mov_b32 s{sBud}, {cfg.get('budget', 400000)}
v_mul_u32_u24 v{vTw}, {TS}, v{n}
v_lshl_add_u32 v{vTw}, v{g}, 3, v{vTw}
s_lshl_b32 s{sA}, s{sW}, 7
s_add_u32 s{sA}, s{sA}, {L_T}
v_add_u32 v{vTw}, s{sA}, v{vTw}
v_lshlrev_b32 v14, 2, v{n}
v_add_u32 v14, {L_G}, v14
s_waitcnt lgkmcnt(0)
""")
    def mid():
        for j in range(9): p.e(x_dma(j, vXg), tag="xd")
    load_weights(p, [(S_W0, vG0, sC), (S_W0, vG1, sC)], 3456, vTr, sB, 5, wreg, mid)
    p.e(f"s_cmp_lg_u32 s{sW}, 3\ns_cbranch_scc1 L_a_nogate\nv_lshlrev_b32 v{t0}, 4, v{g}")
    for ks in range(18): p.e(f"buffer_load_dwordx4 {vr(wreg(2, ks), 4)}, v{t0}, {R(S_G)}, 0 offen offset:{64*ks}", tag="gw")
    p.e(f"""
L_a_nogate:
{tl(cfg, 1, t0, t1, True)}
s_mov_b32 s{sXs}, s{sD}
s_mov_b32 s{sI}, 0
s_mov_b32 s{sTog}, {XBUF}
""")
    p.raw(".p2align 6")
    p.e("L_a_loop:")
    p.fence()
    p.e(f"""
s_waitcnt vmcnt(0)
s_barrier
s_add_u32 s{sXs}, s{sXs}, {XBUF}
s_add_u32 s{sXm}, s{sXm}, s{sTog}
""")
    gemm_block(p, 4, wreg, acc, XS, vXr, vXg, lambda ti: True)
    p.e(f"v_add_u32 v{vXr}, s{sTog}, v{vXr}\ns_sub_u32 s{sTog}, 0, s{sTog}")
    def put(ti):
        for tt in range(2):
            a = acc(ti, tt)
            p.e(f"v_cvt_pk_bf16_f32 v{a}, v{a}, v{a+1}\nv_cvt_pk_bf16_f32 v{a+1}, v{a+2}, v{a+3}")
            p.e(f"ds_write_b64 v{vTw}, {vr(a, 2)} offset:{16*TS*tt + 32*ti}", tag="tw")
    put(0); put(1)
    p.e(f"s_cmp_eq_u32 s{sW}, 3\ns_cbranch_scc1 L_a_gate")
    put(2); put(3)
    p.e(f"""
s_branch L_a_nog2
L_a_gate:
ds_write_b32 v14, v{acc(2, 0)}
ds_write_b32 v14, v{acc(2, 1)} offset:64
L_a_nog2:
v_add_u32 v{vTw}, {32*TS}, v{vTw}
v_add_u32 v14, 128, v14
s_add_u32 s{sI}, s{sI}, 1
s_cmp_lt_u32 s{sI}, 6
s_cbranch_scc1 L_a_loop
s_waitcnt vmcnt(0) lgkmcnt(0)
s_barrier
{tl(cfg, 2, t0, t1)}
""")
    p.fence()
    Qr, Kr, Vr, S_, Or, PL, PH, vRow, vA, vTok, vGl = 16, 26, 100, 176, 184, 204, 212, 14, 15, 2, 3
    CA = f2u(18 ** -0.5 * math.log2(math.e))
    p.e(f"""
s_mov_b32 s{sI}, 0
s_mul_i32 s{sC}, s{sW}, 36
s_add_u32 s{sC}, s{sC}, {L_T}
s_mul_i32 s{sD}, s{sRT}, 176
s_mov_b32 s{sE}, {CA:#x}
s_mov_b32 s{sF}, {f2u(-math.log2(math.e)):#x}
L_la_loop:
v_add_u32 v{t0}, s{sI}, v{l}
v_min_u32 v{t0}, 175, v{t0}
v_add_u32 v{vTok}, s{sD}, v{t0}
v_add_u32 v{t0}, 16, v{t0}
v_mul_u32_u24 v{vRow}, {TS}, v{t0}
v_add_u32 v{vRow}, s{sC}, v{vRow}
v_lshlrev_b32 v{t0}, 2, v{t0}
v_add_u32 v{t0}, {L_G}, v{t0}
""")
    p.e(f"ds_read_b32 v{vGl}, v{t0}", tag="gl")
    def rd9(d, a, off, tag):
        for i in range(4): p.e(f"ds_read2_b32 {vr(d + 2*i, 2)}, v{a} offset0:{off//4 + 2*i} offset1:{off//4 + 2*i + 1}", tag=tag)
        p.e(f"ds_read_b32 v{d+8}, v{a} offset:{off + 32}", tag=tag)
    rd9(Qr, vRow, 0, "q")
    koff = lambda j: Kr + 10*(j & 3)
    for j in range(8):
        p.e(f"v_subrev_u32 v{vA}, {2*j*TS}, v{vRow}")
        rd9(koff(j), vA, 144, f"k{j}")
        if j >= 1:
            p.wl(f"k{j-1}")
            for i in range(9): p.e(f"v_dot2_f32_bf16 v{S_+j-1}, v{Qr+i}, v{koff(j-1)+i}, {f'v{S_+j-1}' if i else 0}")
    p.wl("k7")
    for i in range(9): p.e(f"v_dot2_f32_bf16 v{S_+7}, v{Qr+i}, v{koff(7)+i}, {f'v{S_+7}' if i else 0}")
    voff = lambda j: Vr + 10*(j & 3)
    for j in range(2):
        p.e(f"v_subrev_u32 v{vA}, {2*j*TS}, v{vRow}")
        rd9(voff(j), vA, 288, f"v{j}")
    p.e(f"v_mov_b32 v{t1}, {NEG:#x}")
    for j in range(8):
        p.e(f"v_mul_f32 v{S_+j}, s{sE}, v{S_+j}")
    for j in range(1, 8):
        p.e(f"v_cmp_le_u32 vcc, {2*j}, v{vTok}\nv_cndmask_b32 v{S_+j}, v{t1}, v{S_+j}, vcc")
    p.e(f"""
v_max3_f32 v{t0}, v{S_}, v{S_+1}, v{S_+2}
v_max3_f32 v{t0}, v{t0}, v{S_+3}, v{S_+4}
v_max3_f32 v{t0}, v{t0}, v{S_+5}, v{S_+6}
v_max_f32 v{t0}, v{t0}, v{S_+7}
""")
    for j in range(8): p.e(f"v_sub_f32 v{S_+j}, v{S_+j}, v{t0}")
    for j in range(8): p.e(f"v_exp_f32 v{S_+j}, v{S_+j}")
    for j in range(8): p.e(f"v_cvt_pk_bf16_f32 v{PL+j}, v{S_+j}, v{vZ}")
    for j in range(8): p.e(f"v_lshlrev_b32 v{PH+j}, 16, v{PL+j}")
    p.e(f"""
v_add_f32 v{t0}, v{PH}, v{PH+1}
v_add_f32 v{t1}, v{PH+2}, v{PH+3}
v_add_f32 v{t0}, v{t0}, v{PH+4}
v_add_f32 v{t1}, v{t1}, v{PH+5}
v_add_f32 v{t0}, v{t0}, v{PH+6}
v_add_f32 v{t1}, v{t1}, v{PH+7}
v_add_f32 v{t0}, v{t0}, v{t1}
v_mul_f32 v{t1}, s{sF}, v{vGl}
v_exp_f32 v{vGl}, v{t1}
v_exp_f32 v{t1}, -v{t1}
v_add_f32 v{vGl}, 1.0, v{vGl}
v_add_f32 v{t1}, 1.0, v{t1}
v_mul_f32 v{t0}, v{t0}, v{vGl}
v_rcp_f32 v{t0}, v{t0}
v_rcp_f32 v{t1}, v{t1}
""")
    for j in range(8):
        if j + 2 < 8:
            p.e(f"v_subrev_u32 v{vA}, {2*(j+2)*TS}, v{vRow}")
            rd9(voff(j + 2), vA, 288, f"v{j+2}")
        p.wl(f"v{j}")
        for i in range(9):
            for hh, P_ in ((0, PL), (1, PH)):
                o = Or + 2*i + hh
                p.e(f"v_dot2_f32_bf16 v{o}, v{voff(j)+i}, v{P_+j}, {f'v{o}' if j else 0}")
    p.e(f"""
s_or_b32 s{sA}, s{sHG}, s{sW}
s_cmp_lg_u32 s{sA}, 0
s_cbranch_scc1 L_la_noomg
v_lshlrev_b32 v{vA}, 2, v{vTok}
v_min_u32 v{vA}, 8192, v{vA}
s_mov_b32 s{sA}, {WS_OMG}
buffer_store_dword v{t1}, v{vA}, {R(S_WS)}, s{sA} offen{SC}
L_la_noomg:
""")
    for i in range(18): p.e(f"v_mul_f32 v{Or+i}, v{Or+i}, v{t0}")
    for i in range(9): p.e(f"v_cvt_pk_bf16_f32 v{Or+i}, v{Or+2*i}, v{Or+2*i+1}")
    for i in range(4): p.e(f"ds_write2_b32 v{vRow}, v{Or+2*i}, v{Or+2*i+1} offset0:{2*i} offset1:{2*i+1}", tag="ow")
    p.e(f"ds_write_b32 v{vRow}, v{Or+8} offset:32", tag="ow")
    p.e(f"""
s_add_u32 s{sI}, s{sI}, 64
s_cmp_lt_u32 s{sI}, 192
s_cbranch_scc1 L_la_loop
s_waitcnt lgkmcnt(0)
s_barrier
v_mul_u32_u24 v{vRow}, {TS}, v{n}
v_lshl_add_u32 v{vRow}, v{g}, 4, v{vRow}
s_add_u32 s{sA}, s{sW}, 1
s_mul_i32 s{sA}, s{sA}, {16*TS}
s_add_u32 s{sA}, s{sA}, {L_T}
v_add_u32 v{vRow}, s{sA}, v{vRow}
s_mul_i32 s{sD}, s{sRT}, 11
s_add_u32 s{sD}, s{sD}, s{sW}
s_mov_b32 s{sI}, s{sW}
s_mul_i32 s{sE}, s{sHG}, 2304
s_add_u32 s{sE}, s{sE}, {WS_OA}
L_oa_loop:
s_cmp_ge_u32 s{sD}, 128
s_cbranch_scc1 L_oa_done
""")
    p.fence()
    for x in range(3): p.e(f"ds_read2_b64 {vr(16 + 4*x, 4)}, v{vRow} offset0:{8*x} offset1:{8*x+1}", tag=f"o{x}")
    p.e(f"s_mul_i32 s{sA}, s{sD}, 18432\ns_add_u32 s{sA}, s{sA}, s{sE}")
    for x in range(3):
        p.wl(f"o{x}")
        if x == 2: p.e("s_mov_b64 exec, 0xffff")
        p.e(f"buffer_store_dwordx4 {vr(16 + 4*x, 4)}, v{vL16}, {R(S_WS)}, s{sA} offen offset:{1024*x}{SC}", tag="st")
    p.e(f"""
s_mov_b64 exec, -1
v_add_u32 v{vRow}, {64*TS}, v{vRow}
s_add_u32 s{sD}, s{sD}, 4
s_add_u32 s{sI}, s{sI}, 4
s_cmp_lt_u32 s{sI}, 11
s_cbranch_scc1 L_oa_loop
L_oa_done:
s_waitcnt vmcnt(0)
s_barrier
s_cmp_lg_u32 s{sW}, 0
s_cbranch_scc1 L_a_sig
v_mov_b32 v{t0}, 1
s_mov_b64 exec, 1
buffer_atomic_add v{t0}, v{vZ}, {R(S_DBG)}, 0 offen offset:4 sc1
s_mov_b64 exec, -1
L_a_sig:
{tl(cfg, 3, t0, t1)}
""")
    p.fence(); p.vmq = []; p.ldsq = []
    vD0, vD1, vD2, vTrB, vTrA, vOl, vRw, vOut, vFl, vOm = 2, 3, 4, 5, 6, 7, 14, 15, 9, 10
    AB, AA, ST, WA, WBB = 16, 28, 40, 68, 128
    for d, vd in enumerate((vD0, vD1, vD2)):
        p.e(f"""
v_add_u32 v{t0}, {64*d}, v{l}
v_mul_u32_u24 v{t1}, 171, v{t0}
v_lshrrev_b32 v{t1}, 10, v{t1}
v_mul_u32_u24 v{t1}, {1152 - 96}, v{t1}
v_lshl_add_u32 v{vd}, v{t0}, 4, v{t1}
""")
    tr_addr(p, vTrB, n, g, t0, 96, 4)
    tr_addr(p, vTrA, n, g, t0, 96, 8)
    sRing, sWb, sWa, sOb, sOA, sOut, sOm, sFO, sRed = range(50, 59)
    p.e(f"""
s_lshl_b32 s{sRing}, s{sW}, 15
v_add_u32 v{vTrB}, s{sRing}, v{vTrB}
v_add_u32 v{vTrA}, s{sRing}, v{vTrA}
v_add_u32 v{vOl}, s{sRing}, v{vL16}
s_mul_i32 s{sA}, s{sCG}, 96
s_mul_i32 s{sWb}, s{sW}, {1024*1152}
s_add_u32 s{sWb}, s{sWb}, s{sA}
s_mul_i32 s{sWa}, s{sW}, {160*1152}
s_add_u32 s{sWa}, s{sWa}, s{sA}
v_mul_u32_u24 v{vOut}, 1152, v{n}
v_lshl_add_u32 v{vOut}, v{g}, 3, v{vOut}
s_lshl_b32 s{sB}, s{sW}, 5
s_add_u32 s{sA}, s{sA}, s{sB}
s_mul_i32 s{sOut}, s{sTM}, 18432
s_add_u32 s{sOA}, s{sOut}, {WS_OA}
s_add_u32 s{sOut}, s{sOut}, s{sA}
s_lshl_b32 s{sOb}, s{sTM}, 17
s_add_u32 s{sOb}, s{sOb}, s{sRing}
s_add_u32 s{sOb}, s{sOb}, {WS_O}
s_lshl_b32 s{sOm}, s{sTM}, 6
s_add_u32 s{sOm}, s{sOm}, {WS_OMG}
s_lshl_b32 s{sFO}, s{sTM}, 8
s_add_u32 s{sFO}, s{sFO}, {F_O}
v_lshlrev_b32 v{vFl}, 2, v{l}
v_lshlrev_b32 v{vOm}, 2, v{n}
v_add_u32 v{vRw}, 131072, v{vL16}
""")
    items = [('A', k) for k in range(5)] + [('B', k) for k in range(32)]
    nslot = 10; D = nslot - 1
    def issue(i):
        kind, k = items[i]
        p.e(f"s_add_u32 s{sA}, s{sWa if kind == 'A' else sWb}, {32*k*1152}")
        for d, vd in enumerate((vD0, vD1, vD2)):
            p.e(f"s_add_u32 m0, s{sRing}, {3072*(i % nslot) + 1024*d}")
            p.e(f"buffer_load_dwordx4 v{vd}, {R(S_W1 if kind == 'A' else S_W2)}, s{sA} offen lds", tag=f"d{i}")
    for i in range(D): issue(i)
    for i, (kind, k) in enumerate(items):
        p.wv(f"d{i}")
        for ct in range(3):
            for q in range(2):
                if kind == 'A': p.e(f"ds_read_b64_tr_b16 {vr(WA + 12*k + 4*ct + 2*q, 2)}, v{vTrA} offset:{3072*(i % nslot) + 96*4*q + 32*ct}", tag="tr")
                else: p.e(f"ds_read_b64_tr_b16 {vr(WBB + 12*k + 4*ct + 2*q, 2)}, v{vTrB} offset:{3072*(i % nslot) + 96*16*q + 32*ct}", tag="tr")
        p.e("s_waitcnt lgkmcnt(0)")
        if i + D < len(items): issue(i + D)
    p.e(tl(cfg, 4, t0, t1))
    poll(p, "L_w_init", S_DBG, vZ, 0, 0, t0, f"v_readfirstlane_b32 s{sA}, v{t0}\ns_and_b32 s{sA}, s{sA}, 0xff\ns_cmp_eq_u32 s{sA}, 32")
    poll(p, "L_w_adone", S_DBG, vZ, 0, 4, t0, f"v_readfirstlane_b32 s{sA}, v{t0}\ns_cmp_eq_u32 s{sA}, 96")
    p.e(f"s_mov_b32 s{sI}, 0\ns_mul_i32 s{sWa}, s{sW}, 5\ns_mul_i32 s{sRed}, s{sW}, 3072\nv_add_u32 v{vD0}, s{sRed}, v{vRw}\ns_lshl_b32 s{sA}, s{sW}, 10\nv_add_u32 v{vRw}, s{sA}, v{vRw}")
    p.e("L_w_loop:")
    p.fence()
    for k in range(5):
        p.e(f"s_add_u32 s{sA}, s{sWa}, {k}\ns_min_u32 s{sA}, s{sA}, 17\ns_lshl_b32 s{sA}, s{sA}, 10\ns_add_u32 s{sA}, s{sA}, s{sOA}")
        p.e(f"buffer_load_dwordx4 {vr(ST + 4*k, 4)}, v{vL16}, {R(S_WS)}, s{sA} offen sc1", tag=f"a{k}")
    p.e(f"buffer_load_dword v{t1}, v{vOm}, {R(S_WS)}, s{sOm} offen sc1", tag="om")
    for k in range(5):
        p.wv(f"a{k}")
        for ct in range(3): p.e(f"{MF} {vr(AA + 4*ct, 4)}, {vr(WA + 12*k + 4*ct, 4)}, {vr(ST + 4*k, 4)}, {vr(AA + 4*ct, 4) if k else 0}")
    poll(p, "L_w_poll", S_WS, vFl, f"s{sFO}", 0, t0, f"v_cmp_ge_u32 vcc, s{sI}, v{t0}\ns_nop 1\ns_cmp_eq_u64 vcc, 0", sleep=cfg.get('slw', 2))
    for k in range(32):
        if k % 4 == 0: p.e(f"s_add_u32 s{sA}, s{sOb}, {1024*k}\ns_add_u32 m0, s{sRing}, {1024*k}")
        p.e(f"buffer_load_dwordx4 v{vL16}, {R(S_WS)}, s{sA} offen offset:{1024*(k % 4)} sc1 lds", tag=f"o{k}")
    def rdo(k):
        p.wv(f"o{k}")
        p.e(f"ds_read_b128 {vr(ST + 4*(k % 4), 4)}, v{vOl} offset:{1024*k}", tag=f"r{k}")
    rdo(0); rdo(1)
    for k in range(32):
        if k + 2 < 32: rdo(k + 2)
        p.wl(f"r{k}")
        for ct in range(3): p.e(f"{MF} {vr(AB + 4*ct, 4)}, {vr(WBB + 12*k + 4*ct, 4)}, {vr(ST + 4*(k % 4), 4)}, {vr(AB + 4*ct, 4) if k else 0}")
    for ct in range(3):
        for r in range(4): p.e(f"v_fma_f32 v{AB + 4*ct + r}, v{AB + 4*ct + r}, v{t1}, v{AA + 4*ct + r}")
        p.e(f"ds_write_b128 v{vD0}, {vr(AB + 4*ct, 4)} offset:{1024*ct}", tag="rw")
    p.e(f"""
s_waitcnt lgkmcnt(0)
s_barrier
s_cmp_eq_u32 s{sW}, 3
s_cbranch_scc1 L_w_next
""")
    for x in range(4): p.e(f"ds_read_b128 {vr(ST + 4*x, 4)}, v{vRw} offset:{3072*x}", tag="rr")
    p.e(f"""
s_waitcnt lgkmcnt(0)
v_pk_add_f32 {vr(ST, 2)}, {vr(ST, 2)}, {vr(ST+4, 2)}
v_pk_add_f32 {vr(ST+2, 2)}, {vr(ST+2, 2)}, {vr(ST+6, 2)}
v_pk_add_f32 {vr(ST+8, 2)}, {vr(ST+8, 2)}, {vr(ST+12, 2)}
v_pk_add_f32 {vr(ST+10, 2)}, {vr(ST+10, 2)}, {vr(ST+14, 2)}
v_pk_add_f32 {vr(ST, 2)}, {vr(ST, 2)}, {vr(ST+8, 2)}
v_pk_add_f32 {vr(ST+2, 2)}, {vr(ST+2, 2)}, {vr(ST+10, 2)}
v_cvt_pk_bf16_f32 v{ST+20}, v{ST}, v{ST+1}
v_cvt_pk_bf16_f32 v{ST+21}, v{ST+2}, v{ST+3}
buffer_store_dwordx2 {vr(ST+20, 2)}, v{vOut}, {R(S_OUT)}, s{sOut} offen
L_w_next:
v_xor_b32 v{vD0}, 16384, v{vD0}
v_xor_b32 v{vRw}, 16384, v{vRw}
s_add_u32 s{sOut}, s{sOut}, {8*18432}
s_add_u32 s{sOA}, s{sOA}, {8*18432}
s_add_u32 s{sOb}, s{sOb}, {8*131072}
s_add_u32 s{sOm}, s{sOm}, 512
s_add_u32 s{sI}, s{sI}, 1
s_cmp_lt_u32 s{sI}, 16
s_cbranch_scc1 L_w_loop
s_waitcnt vmcnt(0)
{tl(cfg, 5, t0, t1)}
s_endpgm
""")
    return p.text()
```

```python
from asmgen import *
import math, struct

WS_X    = 0x0
WS_MEM  = 0x48000
WS_FLG  = 0x50000
WS_SYN  = WS_MEM + 9216
WS_STMP = 0x60000
WS_TL   = 0x70000
WS_MH   = 0x800000
MHS = 10240
WS_KVX  = 0x1000000
WS_BYTES = 0x10000000
L_DUM = 0; L_SEL = 256; L_MEM = 1024; L_Q = 10240; L_K = 12288; L_XS = 14336; L_W = [16384, 16384 + 40960, 16384 + 81920, 16384 + 81920 + 32768]
S_WS, S_WQ, S_WK, S_WV, S_WO, S_M0, S_DBG = 4, 8, 12, 16, 20, 24, 28
sH, sW, sS, sT, sTn, sKV, sKVn, sPF, sKM, sBud = 32, 33, 34, 35, 36, 37, 38, 39, 40, 41
sX = [42, 43, 44, 45, 46]
sMEMo, sMEM1, sMEM8 = 47, 48, 49
sSC = 50
sONE = 52
sA, sB, sC, sD = 54, 55, 56, 57
sRU = 3
sEv, sFL = 100, 101
sSYw, sSYr = 33, 58
sPar = 38
sSP0 = 56; sLIM = 2; sM24 = 55
sHALF = 0
sST = 60
vIdx, vL16, vW, vL8, vTR, vXr, vTmp, vOr, vST, vRD, vMS, vMask = range(12)
KV = 12; VV = 52; AQ = 20; AK = 28; AV = 36; WST = 44; AS = [60, 64, 68, 72, 76]; SEL = 76
WBASE = 80
SCALE = struct.unpack('<I', struct.pack('<f', 128 ** -0.5 * math.log2(math.e)))[0]

def tile_order(w):
    return list(range(9))

class Alloc:
    ORD = 1
    def __init__(s, w):
        s.w = w
        s.ndt = 5 if w < 2 else 4
        s.lpairs = [('q', 0), ('q', 3), ('q', 4), ('k', 5), ('v', 8)]
        o = [(0, 0), (1, 0), (0, 1), (0, 2), (0, 3), (1, 1), (1, 2), (1, 3), (2, 0), (2, 1), (2, 2), (2, 3), (3, 0), (3, 1), (3, 2), (3, 3)]
        if Alloc.ORD == 1: o[2:8] = [(0, 1), (1, 1), (0, 2), (1, 2), (0, 3), (1, 3)]
        if s.ndt == 5: o += [(4, 0), (4, 1), (4, 2), (4, 3)]
        s.wo_order = o
        s.wo_l = [(k, j) for k, j in o if (k < 3 and (w + j) % 2 == 0) or k == 4]
        s.reg = {}; s.lds = {}
        r = WBASE; off = 0
        for m, sl in s.lpairs:
            s.lds[(m, sl, 0)] = off; s.lds[(m, sl, 1)] = off + 2048; off += 4096
        for k, j in s.wo_l:
            ks = (w + j) % 4
            s.lds[('o', k, j)] = off + 4096 * (k if k < 3 else 3 + (ks & 1)) + 2048 * (ks >> 1)
        for m in 'qkv':
            for sl in range(9):
                for T in range(2):
                    if (m, sl, T) not in s.lds: s.reg[(m, sl, T)] = r; r += 8
        for kj in o:
            if ('o',) + kj not in s.lds: s.reg[('o',) + kj] = r; r += 8
        assert r == 512, r

def setup_common(p):
    p.e(f"""
s_load_dwordx2 s[{S_M0}:{S_M0+1}], s[0:1], 32
s_load_dwordx2 s[{S_WQ}:{S_WQ+1}], s[0:1], 40
s_load_dwordx2 s[{S_WK}:{S_WK+1}], s[0:1], 48
s_load_dwordx2 s[{S_WV}:{S_WV+1}], s[0:1], 56
s_load_dwordx2 s[{S_WO}:{S_WO+1}], s[0:1], 64
s_load_dwordx2 s[{S_DBG}:{S_DBG+1}], s[0:1], 96
s_load_dwordx2 s[{S_WS}:{S_WS+1}], s[0:1], 104
""")
    for b, n in ((S_M0, 9216), (S_WQ, 4718592), (S_WK, 4718592), (S_WV, 4718592), (S_WO, 4718592), (S_DBG, 256), (S_WS, WS_BYTES)):
        p.e(f"s_mov_b32 s{b+2}, {n}\ns_mov_b32 s{b+3}, 0x20000")

def tl(cfg, idx, va, vb, start=False):
    if not cfg.get('tl'): return ""
    t = f"s_waitcnt lgkmcnt(0)\ns_memrealtime s[92:93]\ns_waitcnt lgkmcnt(0)\nv_mov_b32 v{va}, s92\nv_mov_b32 v{vb}, 0\nbuffer_store_dword v{va}, v{vb}, s[4:7], s95 offen offset:{4*idx}\n"
    t += f"s_memtime s[92:93]\ns_waitcnt lgkmcnt(0)\nv_mov_b32 v{va}, s92\nbuffer_store_dword v{va}, v{vb}, s[4:7], s95 offen offset:{32+4*idx}\n"
    if start: t += f"v_mov_b32 v{va}, s94\nbuffer_store_dword v{va}, v{vb}, s[4:7], s95 offen\n"
    return t + "s_waitcnt vmcnt(0)\n"

def gate(cfg, key, nm):
    if not cfg.get(key): return ""
    return f"L_gate_{nm}:\ns_memrealtime s[92:93]\ns_waitcnt lgkmcnt(0)\ns_sub_u32 s92, s92, s94\ns_cmp_lt_u32 s92, {cfg[key]}\ns_cbranch_scc1 L_gate_{nm}\n"

def kvwait(nm):
    t = f"""
L_kvw_{nm}:
s_load_dwordx16 s[64:79], s[{S_WS}:{S_WS+1}], s{sFL} glc
s_sub_u32 s{sBud}, s{sBud}, 1
s_cbranch_scc1 L_exit
s_waitcnt lgkmcnt(0)
"""
    for i in range(65, 80): t += f"s_min_u32 s64, s64, s{i}\n"
    return t + f"""s_lshl_b32 s{sEv}, s64, 2
s_sub_u32 s{sEv}, s{sEv}, 1
s_cmp_ge_i32 s{sS}, s{sEv}
s_cbranch_scc1 L_kvw_{nm}
"""

def coop_src(vA, vB, n, g, t0, rowexpr, shift_or_mul):
    return f"""
{rowexpr}
{shift_or_mul}
v_lshlrev_b32 v{vA}, 1, v{g}
v_xor_b32 v{vA}, v{vA}, v{n}
v_lshl_add_u32 v{vA}, v{vA}, 4, v{t0}
v_xor_b32 v{vB}, 128, v{vA}
"""
def coop_tr(v, ch0, lo, hi, n, g, t0, t1):
    return f"""
v_and_b32 v{t0}, 1, v{g}
v_lshrrev_b32 v{t1}, 2, v{n}
v_lshl_add_u32 v{t0}, v{t0}, 2, v{t1}
v_lshlrev_b32 v{t0}, 1, v{t0}
v_bfe_u32 v{v}, v{n}, 1, 1
v_add_u32 v{v}, {ch0}, v{v}
v_xor_b32 v{v}, v{v}, v{t0}
v_lshlrev_b32 v{v}, 4, v{v}
v_lshl_add_u32 v{v}, v{t1}, 8, v{v}
v_and_b32 v{t0}, 1, v{g}
v_lshl_add_u32 v{v}, v{t0}, 11, v{v}
v_and_b32 v{t0}, 1, v{n}
v_lshl_add_u32 v{v}, v{t0}, 3, v{v}
v_lshrrev_b32 v{t0}, 1, v{g}
v_mul_u32_u24 v{t0}, {hi - lo}, v{t0}
v_add_u32 v{t0}, {lo}, v{t0}
v_add_u32 v{v}, v{v}, v{t0}
"""

def prologue(p, w, red, cfg):
    al = Alloc(w)
    nm = f"w{w}{'r' if red else ''}"
    l, n, g, t0, t1, t2 = 20, 21, 22, 23, 24, 25
    vG1, vG1b, vG2, vG3, vR3, vDb = 26, 27, 28, 29, 31, 32
    vRq = [[44, 45], [46, 47]]; vRo = [48, 49]; TMP = AS[0]; M0R = 40
    p.e(f"""
v_and_b32 v{l}, 63, v0
v_and_b32 v{n}, 15, v0
v_bfe_u32 v{g}, v0, 4, 2
v_lshlrev_b32 v{vL16}, 4, v{l}
v_add_u32 v{vW}, {L_W[w]}, v{vL16}
""")
    p.e(coop_src(vG1, vG1b, n, g, t0, f"v_lshrrev_b32 v{t1}, 1, v{g}\nv_and_b32 v{t0}, 1, v{g}\nv_lshl_add_u32 v{t0}, v{t1}, 3, v{t0}", f"v_lshlrev_b32 v{t0}, 13, v{t0}"))
    p.e(f"""
v_and_b32 v{t0}, 1, v{g}
v_lshl_add_u32 v{t0}, v{t1}, 4, v{t0}
v_mul_u32_u24 v{t0}, 1152, v{t0}
v_lshlrev_b32 v{vG2}, 2, v{g}
v_xor_b32 v{vG2}, v{vG2}, v{n}
v_lshl_add_u32 v{vG2}, v{vG2}, 4, v{t0}
s_lshl_b32 s{sA}, s{sH}, 8
s_mul_i32 s{sB}, s{sH}, 147456
""")
    if w == 0:
        p.e(f"""
v_lshrrev_b32 v{t0}, 2, v{n}
v_and_b32 v{t1}, 1, v{n}
v_lshl_add_u32 v{t0}, v{t0}, 1, v{t1}
v_mul_u32_u24 v{t0}, 1152, v{t0}
v_lshl_add_u32 v{t0}, v{g}, 5, v{t0}
v_bfe_u32 v{t1}, v{n}, 1, 1
v_lshl_add_u32 v{t0}, v{t1}, 4, v{t0}
s_lshl_b32 s{sC}, s{sH}, 7
""")
    p.e("s_waitcnt lgkmcnt(0)")
    if w == 0: p.e(f"buffer_load_dwordx4 v[{KV}:{KV+3}], v{t0}, s[{S_M0}:{S_M0+3}], s{sC} offen", tag="m0")
    items = [('R', m, t) for m in 'qkv' for t in range(9) if (m, t, 0) in al.reg]
    items += [('R', 'o', (k, 1)) for k in range(4)] + [('R', 'o', (3, 0))]
    nreg = len(items)
    items += [('L', m, t) for m, t in al.lpairs] + [('L', 'o', (k, 0)) for k in range(3)]
    nslot = 8; DEPTH = 7
    assert len(items) - nreg == nslot
    def slot(i): return (i - nreg) % nslot
    def issue(i):
        kind, m, t = items[i]
        for d in range(4):
            if m != 'o':
                srd = {'q': S_WQ, 'k': S_WK, 'v': S_WV}[m]; va = (vG1, vG1b)[d >> 1]; sb = sA
                so = (64 * t + 16 * w + 2 * d) * 8192
            else:
                k, par = t; srd = S_WO; va = vG2; sb = sB
                so = (32 * (par + 2 * (w >> 1)) + 4 * (w & 1) + 8 * (d >> 1) + 2 * (d & 1)) * 1152 + 256 * k
            p.e(f"s_add_u32 s{sC}, s{sb}, {so}\ns_mov_b32 m0, {L_W[w] + 4096*slot(i) + 1024*d}")
            p.e(f"buffer_load_dwordx4 v{va}, s[{srd}:{srd+3}], s{sC} offen lds", tag=f"d{i}")
    def keys(i):
        kind, m, t = items[i]
        return [(m, t, 0), (m, t, 1)] if m != 'o' else [('o', t[0], (t[1] + 2*x - w) % 4) for x in range(2)]
    def writeback(off):
        for x in range(4): p.e(f"ds_write_b128 v{vW}, {vr(TMP + 4*x, 4)} offset:{off + 1024*x}", tag="lw")
    def consume(i, mid):
        kind, m, t = items[i]
        off = 4096 * slot(i)
        p.wv(f"d{i}")
        p.e("s_barrier")
        if i >= 1 and i + DEPTH < len(items): issue(i + DEPTH)
        if i > nreg: writeback(4096 * slot(i - 1))
        for x, key in enumerate(keys(i)):
            if kind == 'L': assert al.lds[key] == off + 2048 * x
            dst = al.reg[key] if kind == 'R' else TMP + 8 * x
            for q in range(4):
                a, o = (vRq[q >> 1][x], off + 1024 * (q & 1)) if m != 'o' else (vRo[x], off + 1024 * q)
                p.e(f"ds_read_b64_tr_b16 {vr(dst + 2*q, 2)}, v{a} offset:{o}", tag="tr")
        mid(i)
        p.e("s_waitcnt lgkmcnt(0)")
    NE = 2
    for i in range(NE): issue(i)
    def fifth():
        p.e(f"""
v_and_b32 v{t0}, 3, v{l}
v_lshrrev_b32 v{t1}, 2, v{l}
v_mul_u32_u24 v{vG3}, 1152, v{t1}
v_lshl_add_u32 v{vG3}, v{t0}, 4, v{vG3}
v_lshrrev_b32 v{t1}, 2, v{n}
v_and_b32 v{t2}, 1, v{g}
v_lshlrev_b32 v{vR3}, 10, v{t2}
v_lshrrev_b32 v{t2}, 1, v{g}
v_lshl_add_u32 v{vR3}, v{t2}, 8, v{vR3}
v_and_b32 v{t2}, 1, v{t1}
v_lshl_add_u32 v{vR3}, v{t2}, 6, v{vR3}
v_lshrrev_b32 v{t2}, 1, v{t1}
v_lshl_add_u32 v{vR3}, v{t2}, 3, v{vR3}
v_lshl_add_u32 v{vR3}, v{t0}, 4, v{vR3}
v_add_u32 v{vR3}, {L_W[w]}, v{vR3}
""")
        for ks in range(4):
            for d in range(2):
                p.e(f"s_add_u32 s{sC}, s{sB}, {(32*ks + 16*d) * 1152 + 64 * (16 + w)}\ns_mov_b32 m0, {L_W[w] + al.lds[('o', 4, (ks - w) % 4)] + 1024*d}")
                p.e(f"buffer_load_dwordx4 v{vG3}, s[{S_WO}:{S_WO+3}], s{sC} offen lds", tag="e5")
    for h2 in range(2):
        for T in range(2): p.e(coop_tr(vRq[h2][T], 4*w + 2*T, L_W[2*h2], L_W[2*h2 + 1], n, g, t0, t1))
    for x in range(2):
        p.e(f"""
v_and_b32 v{t0}, 1, v{g}
v_bfe_u32 v{t1}, v{n}, 2, 1
v_lshl_add_u32 v{t0}, v{t0}, 1, v{t1}
v_xor_b32 v{t1}, {w}, v{t0}
v_lshlrev_b32 v{t1}, 6, v{t1}
v_lshl_add_u32 v{vRo[x]}, v{t0}, 8, v{t1}
v_and_b32 v{t0}, 3, v{n}
v_lshl_add_u32 v{vRo[x]}, v{t0}, 4, v{vRo[x]}
v_and_b32 v{t0}, 8, v{n}
v_add_u32 v{vRo[x]}, v{vRo[x]}, v{t0}
v_lshrrev_b32 v{t0}, 1, v{g}
v_mul_u32_u24 v{t0}, {L_W[2*x+1] - L_W[2*x]}, v{t0}
v_add_u32 v{t0}, {L_W[2*x]}, v{t0}
v_add_u32 v{vRo[x]}, v{vRo[x]}, v{t0}
""")
    p.e(f"""
v_bfe_u32 v{t0}, v{n}, 1, 1
v_and_b32 v{t1}, 1, v{n}
v_lshl_add_u32 v{t0}, v{t1}, 16, v{t0}
v_mul_u32_u24 v{t0}, 0xaaaa, v{t0}
v_add_u32 v{vIdx}, 0x44444444, v{t0}
v_lshlrev_b32 v{vL8}, 3, v{l}
v_lshrrev_b32 v{t2}, 5, v{l}
v_lshlrev_b32 v{t2}, 6, v{t2}
v_xor_b32 v{vL8}, v{vL8}, v{t2}
; vTR = (128c + 8*(4g + r)) ^ (64*(c>>1))   (c = n&3, r = n>>2)
v_lshrrev_b32 v{t2}, 2, v{l}
v_and_b32 v{vTR}, 3, v{n}
v_lshl_add_u32 v{vTR}, v{vTR}, 4, v{t2}
v_lshlrev_b32 v{vTR}, 3, v{vTR}
v_bfe_u32 v{t2}, v{n}, 1, 1
v_lshlrev_b32 v{t0}, 6, v{t2}
v_xor_b32 v{vTR}, v{vTR}, v{t0}
v_lshlrev_b32 v{vXr}, 4, v{n}
v_lshl_add_u32 v{vXr}, v{g}, 2, v{vXr}
v_mul_u32_u24 v{t0}, {1024 - 256*w}, v{t2}
v_add_u32 v{vXr}, v{vXr}, v{t0}
; vRD = g*256 + n3*128 + n1*64 + n2*32 + n0*16
v_lshlrev_b32 v{vRD}, 8, v{g}
v_lshl_add_u32 v{vRD}, v{t2}, 6, v{vRD}
v_bfe_u32 v{t0}, v{n}, 3, 1
v_lshl_add_u32 v{vRD}, v{t0}, 7, v{vRD}
v_bfe_u32 v{t0}, v{n}, 2, 1
v_lshl_add_u32 v{vRD}, v{t0}, 5, v{vRD}
v_and_b32 v{t0}, 1, v{n}
v_lshl_add_u32 v{vRD}, v{t0}, 4, v{vRD}
v_lshrrev_b32 v{t0}, 1, v{g}
v_and_b32 v{t1}, 1, v{g}
v_and_b32 v{t2}, 7, v{n}
v_lshrrev_b32 v{vOr}, 3, v{n}
; vST = w*16384 + (2*n3+(g>>1))*4096 + (h>>1)*256 + (g&1)*128 + (h&1)*64 + n2*32 + n0*16 + n1*8
v_lshl_add_u32 v{vST}, v{vOr}, 1, v{t0}
v_lshlrev_b32 v{vST}, 12, v{vST}
v_lshl_add_u32 v{vST}, v{t1}, 7, v{vST}
v_and_b32 v{t2}, 4, v{n}
v_lshl_add_u32 v{vST}, v{t2}, 3, v{vST}
v_and_b32 v{t2}, 1, v{n}
v_lshl_add_u32 v{vST}, v{t2}, 4, v{vST}
v_bfe_u32 v{t2}, v{n}, 1, 1
v_lshl_add_u32 v{vST}, v{t2}, 3, v{vST}
s_lshr_b32 s{sC}, s{sH}, 1
s_lshl_b32 s{sC}, s{sC}, 8
s_and_b32 s{sD}, s{sH}, 1
s_lshl_b32 s{sD}, s{sD}, 6
s_add_u32 s{sC}, s{sC}, s{sD}
s_add_u32 s{sC}, s{sC}, {WS_X + 16384*w}
v_add_u32 v{vST}, s{sC}, v{vST}
; vOr = 256*g + 16*(4*(n>>2) + ((n>>1)&1))
v_and_b32 v{vOr}, 12, v{n}
v_bfe_u32 v{t2}, v{n}, 1, 1
v_add_u32 v{vOr}, v{vOr}, v{t2}
v_lshlrev_b32 v{vOr}, 4, v{vOr}
v_lshl_add_u32 v{vOr}, v{g}, 8, v{vOr}
""")
    for k in range(5): p.e(f"s_mov_b32 s{sX[k]}, {65536*k}")
    p.e(f"""
s_mov_b32 s{sMEMo}, {WS_MEM}
s_mov_b32 s{sMEM1}, {WS_MEM + 4096}
s_mov_b32 s{sMEM8}, {WS_MEM + 8192}
s_mov_b32 s{sSC}, {SCALE:#x}
s_mov_b32 s{sSC+1}, {SCALE:#x}
s_mov_b32 s{sONE}, 0x3f803f80
s_mov_b32 s{sONE+1}, 0x3f803f80
v_and_b32 v{vMask}, 3, v{n}
v_cmp_eq_u32 vcc, 0, v{vMask}
v_cndmask_b32 v{vMask}, 0, 1, vcc
s_mov_b32 s{sS}, 0
s_mov_b32 s{sT}, -1
s_mov_b32 s{sTn}, 0
s_mov_b32 s{sBud}, {cfg.get('budget', 300000)}
s_lshl_b32 s{sKV}, s{sH}, 14
s_add_u32 s{sPF}, s{sKV}, {WS_KVX + (8192*(w & 1) if cfg.get('pf2', True) else 4096*w) + 524288}
s_add_u32 s{sKV}, s{sKV}, {WS_KVX + 4096*w}
s_mov_b32 s{sKM}, {WS_MH - WS_MEM + 64*MHS}
v_mov_b64 v[{AV}:{AV+1}], 0
v_mov_b64 v[{AV+2}:{AV+3}], 0
""")
    if w < 2: p.e(f"ds_write_b128 v{vL16}, v[{AV}:{AV+3}] offset:{L_XS + 1024*w}", tag="z")
    p.e(f"s_lshl_b32 s{sC}, s{sH}, 1\ns_add_u32 s{sC}, s{sC}, {w >> 1}\ns_cmp_eq_u32 s{sC}, 0\ns_cselect_b32 s{sC}, 64, s{sC}\ns_mul_i32 s{sC}, s{sC}, {MHS}\ns_add_u32 s{sC}, s{sC}, {WS_MH + 4096*(w & 1)}\ns_add_u32 s{sD}, s{sC}, 4096")
    for i in range(4): p.e(f"v_mov_b32 v{AV+4+i}, {w >> 1}")
    for i in range(4 + (w & 1)):
        p.e(f"buffer_store_dwordx4 v[{AV+4}:{AV+7}], v{vL16}, s[{S_WS}:{S_WS+3}], s{sC if i < 4 else sD} offen offset:{1024*(i & 3)} sc0 sc1", tag="init")
    if red:
        ub = {2: 0, 3: 32, 1: 64}[w]
        p.e(f"""
s_add_u32 s{sC}, s{sH}, {ub}
s_lshl_b32 s{sRU}, s{sC}, 12
v_and_b32 v{t0}, 1, v{n}
v_bfe_u32 v{t1}, v{n}, 2, 1
v_bfe_u32 v{t2}, v{n}, 1, 1
s_lshl_b32 s{sD}, s{sC}, 7
s_add_u32 s{sD}, s{sD}, {WS_MEM}
v_and_b32 v{vMS}, 7, v{n}
v_lshlrev_b32 v{vMS}, 2, v{vMS}
v_lshl_add_u32 v{vMS}, v{g}, 5, v{vMS}
v_add_u32 v{vMS}, s{sD}, v{vMS}
; the unit's timing word starts with the tag of mem0
s_lshl_b32 s{sSYw}, s{sC}, 2
s_add_u32 s{sSYw}, s{sSYw}, {WS_SYN}
v_mov_b32 v30, -1
s_mov_b64 exec, 1
buffer_store_dword v30, v{vL16}, s[{S_WS}:{S_WS+3}], s{sSYw} offen sc0 sc1
s_mov_b64 exec, -1
v_lshl_add_u32 v{t0}, v{t0}, 1, v{t1}
v_lshlrev_b32 v{t2}, 4, v{t2}
v_mov_b32 v{t1}, 0x3f80
v_lshlrev_b32 v{t1}, v{t2}, v{t1}
""")
        for j in range(4):
            p.e(f"v_cmp_eq_u32 vcc, {j}, v{t0}\nv_cndmask_b32 v{SEL+j}, 0, v{t1}, vcc")
        if w == 2:
            p.e(f"v_and_b32 v{t0}, 0x70, v{vL16}\nds_write_b128 v{t0}, v[{SEL}:{SEL+3}] offset:{L_SEL}", tag="z")
        for i in range(4):
            p.e(f"buffer_store_dwordx4 v[{AV}:{AV+3}], v{vRD}, s[{S_WS}:{S_WS+3}], s{sRU} offen offset:{1024*i} sc0 sc1", tag="init")
    if w == 0:
        p.e(f"v_lshlrev_b32 v{t0}, 2, v{l}\ns_lshl_b32 s{sC}, s{sH}, 8\ns_add_u32 s{sC}, s{sC}, {WS_FLG}\nbuffer_store_dword v{AV}, v{t0}, s[{S_WS}:{S_WS+3}], s{sC} offen sc0 sc1", tag="init")
        p.e(f"""
s_lshl_b32 s{sC}, s{sH}, 10
s_cmp_ge_u32 s{sH}, 9
s_cselect_b32 s{sC}, {WS_BYTES}, s{sC}
s_add_u32 s{sD}, s{sC}, {WS_MH}
s_add_u32 s{sC}, s{sC}, {WS_MEM}
""")
        p.wv("m0")
        p.e(f"v_or_b32 v{KV}, 1, v{KV}")
        p.e(f"""
buffer_store_dwordx4 v[{KV}:{KV+3}], v{vL16}, s[{S_WS}:{S_WS+3}], s{sC} offen sc0 sc1
buffer_store_dwordx4 v[{KV}:{KV+3}], v{vL16}, s[{S_WS}:{S_WS+3}], s{sD} offen sc0 sc1
""", tag="init")
    p.e(f"""
s_getreg_b32 s{sC}, hwreg(HW_REG_XCC_ID)
s_and_b32 s{sC}, s{sC}, 15
s_mul_i32 s{sD}, s{sC}, s{sC}
s_lshl_b32 s{sD}, s{sD}, 18
s_lshl_b32 s{sC}, s{sC}, 8
s_add_u32 s{sD}, s{sD}, s{sC}
s_add_u32 s58, s{sD}, 1
s_lshl_b32 s{sFL}, s{sH}, 7
s_add_u32 s{sFL}, s{sFL}, {WS_FLG}
v_mov_b32 v{t1}, 0
""")
    for i in range(NE, DEPTH + 1): issue(i)
    if w < 2: fifth()
    p.e(f"v_mov_b32 v{t1}, 0")
    WSR = f"s[{S_WS}:{S_WS+3}]"
    DBL = f"buffer_load_dword v{vDb}, v{t1}, s[{S_DBG}:{S_DBG+3}], 0 offen sc0 sc1"
    def mid(i):
        if i == NE:
            assert not any(t == "init" for t, _ in p.vmq)
            if w == 0: p.e(f"v_mov_b32 v{t0}, s58\ns_mov_b64 exec, 1\nbuffer_atomic_add v{t0}, v{t1}, s[{S_DBG}:{S_DBG+3}], 0 offen sc1\ns_mov_b64 exec, -1", tag="arr")
        if w < 2 and i in (DEPTH + 2, DEPTH + 3):
            off = 4096 * (8 + i - DEPTH - 2)
            for x in range(2):
                for q in range(4): p.e(f"ds_read_b64_tr_b16 {vr(TMP + 8*x + 2*q, 2)}, v{vR3} offset:{off + 2048*x + 64*(8*(q >> 1) + 2*(q & 1))}", tag="tr")
            p.e("s_waitcnt lgkmcnt(0)")
            writeback(off)
        if i == 19: p.e(DBL, tag="db")
        if i == 28:
            p.wv("db")
            p.e(f"""
L_rdv_{nm}:
v_readfirstlane_b32 s{sPar}, v{vDb}
s_and_b32 s{sD}, s{sPar}, 0xff
s_cmp_lg_u32 s{sD}, 32
s_cbranch_scc1 L_rdv2_{nm}
{kvwait(nm + 'p') if cfg.get('fused') and w == 0 else ''}
""")
            p.ool.append(f"L_rdv2_{nm}:\n{DBL}\ns_sub_u32 s{sBud}, s{sBud}, 1\ns_cbranch_scc1 L_exit\ns_waitcnt vmcnt(0)\ns_branch L_rdv_{nm}")
        if i == 29:
            for x, r in enumerate((KV, KV + 4, VV, VV + 4)):
                p.e(f"buffer_load_dwordx4 {vr(r, 4)}, v{vRD if x < 2 else vL16}, {WSR}, s{sKV} offen offset:{1024*x}", tag="K0")
            p.e(f"s_mov_b32 m0, {L_MEM}\ns_nop 0\nbuffer_load_dwordx4 v{vL16}, {WSR}, s{sMEMo} offen offset:{1024*w} sc0 sc1 lds", tag="K0")
    for i in range(len(items)): consume(i, mid)
    p.e("s_barrier")
    writeback(4096 * slot(len(items) - 1))
    p.e(f"""
{tl(cfg, 1, t0, t1, True)}
{tl(cfg, 2, t0, t1)}
{gate(cfg, 'gate_go', nm)}
s_lshl_b32 s{sD}, s58, 5
s_mov_b32 s{sHALF}, 0x3f003f00
s_mov_b32 s{sHALF+1}, 0x3f003f00
s_mov_b32 s{sSYr}, {WS_SYN}
s_cmp_eq_u32 s{sPar}, s{sD}
s_mov_b32 s{sSP0}, 0x33333333
s_mov_b32 s{sSP0+1}, 0x33333333
s_mov_b32 s{sLIM}, {cfg.get('lim', 0x21800000):#x}
s_mov_b32 s{sM24}, -24
s_cbranch_scc{'0' if not cfg.get('force_slow') else '1'} L_slow_{nm}
""")

PARAMS = dict(N=2, pd=0, r1=0, r2=0, r3=0, df=0, da=0, ds=0, d2=0, d3=0, a0=4)
SCRIPTS = {
 'base': {'0': "z f t b e", '1': "z f t b", '1r': "y f b wst4 z R r x t",
          '2': "y f p7 wst1 d{r1} R b r F z t M4{N}{pd}", '3': "y f b wst3 z R r x t"},
}
def loop(p, w, red, fast, cfg, probe=None):
    if probe is None:
        topq = []
        loop(Prog(), w, red, fast, cfg, topq)
    else: topq = []
    al = Alloc(w)
    nm = f"w{w}{'r' if red else ''}{'f' if fast else 's'}"
    ST = "" if fast else " sc0 sc1"
    LD = " sc1" if fast else " sc0 sc1"
    WSR = f"s[{S_WS}:{S_WS+3}]"
    a0, a1, a2, a3, a4 = AS
    stamps = cfg.get('stamps')
    sel = cfg.get('sel')
    def stamp(i):
        if cfg.get('trace') is not None and i != 0: return
        if stamps and (sel is None or i in sel or (i == 0 and sel)): p.e(f"s_memtime s[{sST+2*i}:{sST+2*i+1}]")
    acc = {'q': AQ, 'k': AK, 'v': AV}
    SLOT = [WST, a0, a2]
    role = f"{w}{'r' if red and w == 1 else ''}"
    script = {**SCRIPTS[cfg.get('policy', 'base')], **cfg.get('script', {})}[role]
    script = script.format(**{**PARAMS, **cfg.get('par', {})}).split()
    hooks = cfg.get('hooks', {'G': 2, 'K0': (5, 6, 7, 8), 'K1': (9, 10, 11, 12), 'K2': (13, 14, 15, 16), 'K3': (17, 18, 19, 20)})
    def wreg(key, slot): return al.reg[key] if key in al.reg else SLOT[slot]
    nS = [0]
    def S(m, t, T, a):
        key = (m, t, T)
        if key in al.lds: p.wl("W0")
        for h, pos in hooks.items():
            if nS[0] == (pos[w] if isinstance(pos, tuple) else pos): hook(h)
        nS[0] += 1
        p.e(f"v_smfmac_f32_16x16x64_bf16 {vr(acc[m] + 4*T, 4)}, {vr(a, 4)}, {vr(wreg(key, 0), 8)}, v{vIdx}")
    def fillh(key, slot, h):
        p.e(f"ds_read_b128 {vr(SLOT[slot] + 4*h, 4)}, v{vW} offset:{al.lds[key] + 1024*h}", tag=f"W{slot}")
    def fh(i, T, h): fillh(al.lpairs[i] + (T,), 0, h)
    rdt = lambda t, a: f"ds_read_b128 {vr(a, 4)}, v{vL16} offset:{L_MEM + 1024*t}"
    def rdA(t, a): p.e(rdt(t, a), tag=f"A{t}")
    def dma(ts):
        o = []; cur = None
        for t in ts:
            if t >> 2 != cur:
                cur = t >> 2; o.append((f"s_mov_b32 m0, {L_MEM + 4096*cur}\ns_nop 0", None))
            o.append((f"buffer_load_dwordx4 v{vL16}, {WSR}, s{(sMEMo, sMEM1, sMEM8)[cur]} offen offset:{1024*(t & 3)}{LD} lds", f"D{t}"))
        return o
    def edma(ts):
        for x, tg in dma(ts): p.e(x, tag=tg)
    tdma = lambda ts: "\n".join(x for x, _ in dma(ts)) + "\n"
    PUB = f"buffer_store_dword v{vMask}, v{vMS}, {WSR}, s{sKM} offen sc0 sc1"
    def zero(r, n): return "\n".join(f"v_mov_b64 {vr(r + i, 2)}, 0" for i in range(0, n, 2))
    BUD = f"s_sub_u32 s{sBud}, s{sBud}, 1\ns_cbranch_scc1 L_exit\n"
    def cnt(i): return f"s_add_u32 s{(96, 97, 98, 95)[i]}, s{(96, 97, 98, 95)[i]}, 1\n" if stamps else ""
    def loadK(which=(0, 1, 2, 3)):
        for x, r in enumerate((KV, KV + 4, VV, VV + 4)):
            if x in which: p.e(f"buffer_load_dwordx4 {vr(r, 4)}, v{vRD if x < 2 else vL16}, {WSR}, s{sKV} offen offset:{1024*x}", tag="K" if x < 2 else "V")
    def hook(h):
        if h[0] == 'K': loadK([int(c) for c in h[1:]] if h[1:] else (0, 1, 2, 3))
        elif h == 'E': edma([4 + w] + ([8] if w == 1 and 'G' not in hooks else []))
        elif h == 'F':
            if w < 2 or not pf2: p.e(f"s_mov_b32 m0, {L_DUM}\ns_nop 0\nbuffer_load_dword v{a4+2}, {WSR}, s{sPF} offen lds", tag="PF")
        elif h == 'G':
            if w == 1: edma([8])
        elif h == 'P':
            if red: p.e(PUB, tag="pub")
        else: raise Exception(h)
    ADD = lambda d, x, y: p.e(f"v_add_f32 v{d}, v{x}, v{y}")
    CVT = lambda d, x: p.e(f"v_cvt_pk_bf16_f32 v{d}, v{x}, v{x+1}")
    QP = lambda a: f"quad_perm:[{a}] row_mask:0xf bank_mask:0xf"
    MF = "v_mfma_f32_16x16x32_bf16"; M16 = "v_mfma_f32_16x16x16_bf16"
    ck2 = lambda x, y: f"v_bitop3_b32 v{vTmp}, v{x}, v{y}, s{sT} bitop3:0x7e"
    ck1 = lambda x: f"v_bitop3_b32 v{vTmp}, v{vTmp}, v{x}, s{sT} bitop3:0xf6"
    ckA = f"v_and_b32 v{vTmp}, 1, v{vTmp}"; ckC = f"v_cmp_ne_u32 vcc, 0, v{vTmp}"

    pf2 = cfg.get('pf2', True)
    PFA = f"s_mov_b32 m0, {L_DUM}\nv_lshlrev_b32 v{vTmp}, {3 if pf2 else 2}, v{vL16}"
    TGA = f"v_bfe_u32 v{a4+1}, v{vL16}, 6, 1\nv_lshl_add_u32 v{a4+1}, v{a4+1}, 3, v{vL16}\nv_lshlrev_b32 v{a4+1}, 1, v{a4+1}" + (f"\nv_lshlrev_b32 v{a4+2}, {3 if pf2 else 2}, v{vL16}" if 'F' in hooks else "")
    p.fence()
    if stamps:
        for i in range(60, 100): p.e(f"s_mov_b32 s{i}, 0")
        p.e("s_memtime s[60:61]\ns_memrealtime s[62:63]\ns_waitcnt lgkmcnt(0)\ns_mov_b32 s84, s60\ns_sub_u32 s99, s62, s59")
    p.e(zero(AQ, 24))
    fh(0, 0, 0); fh(0, 0, 1)
    p.e(TGA)
    p.e("s_waitcnt vmcnt(0) lgkmcnt(0)")
    p.vmq = [(t, set()) for t in topq]
    p.ldsq = [("W0", set())] * 2
    i_top = len(p.lines)
    p.e(f"L_top_{nm}:")
    p.fence()
    stamp(0)
    b0 = cfg.get('b0', 1)
    p.wv(f"D{b0}"); p.e("s_barrier")
    for t in range(b0 + 1): rdA(t, AS[t])
    for h in cfg.get('top', ('E',)): hook(h)
    if b0 < 3:
        p.wv("D3"); p.e("s_barrier")
        for t in range(b0 + 1, 4): rdA(t, AS[t])
    p.e(f"L_s0_{nm}:")
    refill0 = "\n".join(f"ds_read_b128 {vr(WST + 4*h, 4)}, v{vW} offset:{al.lds[al.lpairs[0] + (0,)] + 1024*h}" for h in range(2))
    p.ool.append(f"L_ra0_{nm}:\n{cnt(0)}" + tdma(range(4)) + BUD + refill0 + "\n" + zero(AQ, 24) + "\ns_waitcnt vmcnt(0)\n" +
                 "".join(rdt(t, AS[t]) + "\n" for t in range(4)) + f"s_branch L_s0_{nm}")
    p.wl("A0")
    stamp(1)
    S('k', 0, 0, a0)
    S('k', 0, 1, a0)
    S('v', 0, 0, a0)
    S('v', 0, 1, a0)
    p.wl("A1")
    S('q', 1, 0, a1)
    S('q', 0, 0, a0); fh(0, 1, 0)
    S('q', 1, 1, a1); fh(0, 1, 1)
    S('k', 1, 0, a1); p.wl("A3"); p.e(ck2(a0, a1))
    S('k', 1, 1, a1); p.e(f"v_bitop3_b32 v{a4}, v{a2}, v{a3}, s{sT} bitop3:0x7e")
    S('v', 1, 0, a1); p.e(f"v_bitop3_b32 v{vTmp}, v{vTmp}, v{a4}, 1 bitop3:0xa8")
    S('q', 0, 1, a0); fh(1, 0, 0); p.e(ckC)
    S('v', 1, 1, a1); fh(1, 0, 1)
    S('q', 2, 0, a2)
    p.e(f"s_cbranch_vccnz L_ra0_{nm}")
    S('q', 2, 1, a2)
    p.wv([f"D{t}" for t in range(4, 9)]); p.e("s_barrier")
    stamp(2)
    b4, b5, b6, b7, b8 = a4, a0, a1, a2, a3
    p.e(f"ds_read_b32 v{vTmp}, v{a4+1} offset:{L_MEM + 7168}", tag="TG")
    S('k', 2, 0, a2); rdA(5, b5)
    S('q', 3, 0, a3); rdA(6, b6)
    S('k', 2, 1, a2); fh(1, 1, 0); rdA(4, b4)
    S('v', 2, 0, a2); fh(1, 1, 1)
    S('v', 2, 1, a2); rdA(7, b7); p.wl("A5"); p.e(ck2(vTmp, b5))
    S('k', 3, 0, a3); p.wl("A6"); p.e(ck1(b6))
    S('k', 3, 1, a3); p.e(PFA.split("\n")[0]); p.wl("A4"); p.e(ck1(b4)); p.e(ckA)
    S('q', 3, 1, a3); fh(2, 0, 0); p.e(ckC)
    S('v', 3, 0, a3); fh(2, 0, 1); p.e(PFA.split("\n")[1])
    S('v', 3, 1, a3); rdA(8, b8)
    p.e(f"s_cbranch_vccnz L_ra1_{nm}")
    p.e(f"L_a1_{nm}:")
    p.ool.append(f"L_ra1_{nm}:\n{cnt(1)}s_waitcnt lgkmcnt(0)\ns_barrier\n" + tdma([4 + w] + ([8] if w == 0 else [])) + BUD + f"s_waitcnt vmcnt(0)\ns_barrier\n" +
                 "".join(rdt(t, a) + "\n" for t, a in ((4, b4), (5, b5), (6, b6), (7, b7), (8, b8))) + "s_waitcnt lgkmcnt(0)\n" +
                 "\n".join([ck2(b4, b5), ck1(b6), ck1(b7), ck1(b8), ckA, ckC]) + f"\n{PFA}\ns_cbranch_vccnz L_ra1_{nm}\ns_branch L_a1_{nm}")
    pfpos = cfg.get('pf', 'a')
    def PF(pos):
        if pos == cfg.get('pub', 'a') and red: p.e(PUB, tag="pub")
        if pos == pfpos and cfg.get('pfreg'):
            if w == 0: p.e(f"s_add_u32 s{sA}, s{sPF}, 8192\nbuffer_load_dword v{vMS}, v{vTmp}, {WSR}, s{sPF} offen\nbuffer_load_dword v{vMask}, v{vTmp}, {WSR}, s{sA} offen", tag="!PF")
        elif pos == pfpos and (w < 2 or not pf2): p.e(f"buffer_load_dword v{vTmp}, {WSR}, s{sPF} offen{cfg.get('pffl', '')} lds", tag="PF")
        if pos == pfpos and cfg.get('pfw'):
            stamp(3); p.e("s_waitcnt vmcnt(0)"); stamp(5)
    PF('a')
    S('q', 5, 0, b5)
    S('q', 6, 0, b6); p.e(f"v_bfe_u32 v{vTmp}, v{vL16}, 5, 1")
    p.wl("A7"); S('q', 7, 0, b7); p.e(f"v_mad_i32_i24 v{vTmp}, v{vTmp}, s{sM24}, v{vL16}")
    p.wl("A8"); S('q', 8, 0, b8)
    S('q', 4, 0, b4); fh(2, 1, 0)
    S('q', 5, 1, b5); fh(2, 1, 1)
    S('q', 6, 1, b6); ADD(AQ, AQ, AQ + 2)
    S('q', 7, 1, b7); ADD(AQ + 1, AQ + 1, AQ + 3)
    S('q', 8, 1, b8); CVT(AQ + 2, AQ)
    S('q', 4, 1, b4); fh(3, 0, 0)
    S('k', 4, 0, b4); fh(3, 0, 1)
    S('k', 6, 0, b6)
    ADD(AQ + 4, AQ + 4, AQ + 6); ADD(AQ + 5, AQ + 5, AQ + 7); CVT(AQ + 3, AQ + 4)
    S('k', 7, 0, b7)
    p.e(f"ds_write_b64 v{vL8}, {vr(AQ+2, 2)} offset:{L_Q + 512*w}", tag="wq")
    S('k', 8, 0, b8)
    S('k', 5, 0, b5); fh(3, 1, 0)
    S('k', 4, 1, b4); fh(3, 1, 1)
    trq = [f"ds_read_b64_tr_b16 {vr(AQ + 2*x, 2)}, v{vTR} offset:{L_Q + 512*x}" for x in range(4)]
    if cfg.get('bq', 1) == 0:
        p.wl("wq"); p.e("s_barrier")
        S('k', 6, 1, b6); p.e(trq[0], tag="Q0"); p.e(trq[1], tag="Q0"); ADD(AK, AK, AK + 2)
        S('k', 7, 1, b7); p.e(trq[2], tag="Q1"); ADD(AK + 1, AK + 1, AK + 3)
        S('k', 8, 1, b8); p.e(trq[3], tag="Q1"); CVT(AK + 2, AK)
        S('k', 5, 1, b5); fh(4, 1, 0)
    else:
        S('k', 6, 1, b6); ADD(AK, AK, AK + 2)
        p.wl("wq"); p.e("s_barrier")
        S('k', 7, 1, b7); p.e(trq[0], tag="Q0"); p.e(trq[1], tag="Q0"); ADD(AK + 1, AK + 1, AK + 3)
        S('k', 8, 1, b8); p.e(trq[2], tag="Q1"); p.e(trq[3], tag="Q1"); CVT(AK + 2, AK)
        S('k', 5, 1, b5); fh(4, 1, 0)
    if not cfg.get('pfw'): stamp(3)
    DX, P0, P1, DM, DL, ONE, HALF, DO, PM = KV, KV + 4, a0, AK, AK + 4, a4, KV + 2, AQ, AQ + 4
    wkey = lambda i: ('o',) + al.wo_l[i]
    DPA = lambda d: f"v_add_f32_dpp v{d}, v{d+2}, v{d} {QP('2,3,0,1')}"
    WX = f"ds_write_b32 v{vXr}, v{DX+2} offset:{L_XS + 32 + 256*w}"
    RP = lambda r, x: f"ds_read_b128 {vr(r, 4)}, v{vL16} offset:{L_XS + 32 - 32*x}"
    SET = lambda r, sp: f"v_mov_b64 {vr(r, 2)}, s[{sp}:{sp+1}]"
    CND = lambda d: f"v_cndmask_b32_e64 v{d}, 0, v{DM+2}, s[{sSP0}:{sSP0+1}]"
    DPM = lambda d: f"v_mov_b32_dpp v{d}, v{PM} {QP('2,3,0,1')}"
    OMUL = lambda j: f"v_mul_f32_dpp v{DO+j}, v{DL+1}, v{DO+j} {QP('0,1,0,1')}"
    WO = f"ds_write_b64 v{vTmp}, {vr(DO, 2)} offset:{L_MEM + 1024*(4+w)}"
    p.wv("K"); p.wl("Q0")
    p.e(f"{MF} {vr(DX, 4)}, {vr(KV, 4)}, {vr(AQ, 4)}, 0")
    fh(4, 1, 1)
    p.wl("Q1")
    p.e(f"{MF} {vr(DX, 4)}, {vr(KV+4, 4)}, {vr(AQ+4, 4)}, {vr(DX, 4)}")
    ADD(AK + 4, AK + 4, AK + 6); ADD(AK + 5, AK + 5, AK + 7); CVT(AK + 3, AK + 4)
    p.e(f"ds_write_b64 v{vL8}, {vr(AK+2, 2)} offset:{L_K + 512*w}", tag="wk")
    trk = [f"ds_read_b64_tr_b16 {vr(AK + 2*x, 2)}, v{vTR} offset:{L_K + 512*x}" for x in range(4)]
    vs = [('v', 4, 0, b4), ('v', 4, 1, b4), ('v', 5, 0, b5), ('v', 5, 1, b5), ('v', 8, 1, b8), ('v', 6, 1, b6), ('v', 7, 1, b7), ('v', 6, 0, b6), ('v', 7, 0, b7), ('v', 8, 0, b8)]
    done = []
    def V():
        x = vs.pop(0); S(*x); done.append(x[1:3])
    va = cfg.get('va', 0)
    V()
    p.e(DPA(DX)); p.e(DPA(DX + 1))
    if va & 1: V()
    p.e(f"v_exp_f32 v{DX+2}, v{DX}\nv_exp_f32 v{DX+3}, v{DX+1}")
    if not va & 1: V()
    CVT(DX + 2, DX + 2)
    if va & 2:
        p.wl("wk"); p.e("s_barrier"); p.e(trk[0], tag="K0"); p.e(trk[1], tag="K0")
        V(); p.e(WX, tag="wx")
        V(); p.e(trk[2], tag="K1"); p.e(trk[3], tag="K1")
    else:
        p.e(WX, tag="wx")
        p.wl("wk"); p.e("s_barrier"); p.e(trk[0], tag="K0")
        V(); p.e(trk[1], tag="K0"); p.e(trk[2], tag="K1")
        V(); p.e(trk[3], tag="K1")
    p.e(SET(ONE, sONE))
    V(); fh(4, 0, 0); p.e(SET(ONE + 2, sONE))
    p.wl("K0")
    p.e(f"{MF} {vr(DM, 4)}, {vr(AK, 4)}, {vr(AQ, 4)}, 0")
    p.wl("wx"); p.e("s_barrier")
    p.e(RP(P0, 0), tag="P0")
    p.wl("K1")
    p.e(f"{MF} {vr(DM, 4)}, {vr(AK+4, 4)}, {vr(AQ+4, 4)}, {vr(DM, 4)}")
    p.e(RP(P1, 1), tag="P1")
    stamp(4)
    V(); fh(4, 0, 1); p.e(SET(HALF, sHALF))
    V(); p.e(DPA(DM))
    V(); fillh(wkey(1), 1, 1); p.e(DPA(DM + 1))
    V(); fillh(wkey(2), 2, 0); p.e(f"v_mul_f32 v{DM}, s{sSC}, v{DM}")
    V(); fillh(wkey(2), 2, 1); p.e(f"v_mul_f32 v{DM+1}, s{sSC}, v{DM+1}")
    p.wv("V"); p.wl("P0")
    if not cfg.get('pfw'): stamp(5)
    p.e(f"{MF} {vr(DL, 4)}, {vr(ONE, 4)}, {vr(P0, 4)}, 0")
    p.e(f"v_exp_f32 v{DM+2}, v{DM}")
    p.e(f"{MF} {vr(DO, 4)}, {vr(VV, 4)}, {vr(P0, 4)}, 0")
    p.e(f"v_exp_f32 v{DM+3}, v{DM+1}")
    p.wl("P1")
    p.e(f"{MF} {vr(DO, 4)}, {vr(VV+4, 4)}, {vr(P1, 4)}, {vr(DO, 4)}")
    CVT(DM + 2, DM + 2)
    p.e(CND(PM)); p.e(CND(PM + 1))
    CVT(AV, AV); CVT(AV + 1, AV + 2)
    p.e(f"{M16} {vr(DL, 4)}, {vr(HALF, 2)}, {vr(PM, 2)}, {vr(DL, 4)}")
    CVT(AV + 2, AV + 4); CVT(AV + 3, AV + 6)
    p.e(DPM(PM + 2)); p.e(DPM(PM + 3))
    fillh(wkey(0), 0, 0)
    p.e(f"{MF} {vr(DO, 4)}, {vr(AV, 4)}, {vr(PM, 4)}, {vr(DO, 4)}")
    fillh(wkey(0), 0, 1)
    DACC = [a4, AV + 4, AQ + 4, AK + 4, AK]
    OA = [KV + 4, KV, VV, VV + 4]
    rdo = lambda j: f"ds_read_b128 {vr(OA[j], 4)}, v{vOr} offset:{L_MEM + 1024*(4 + (w+j) % 4)}"
    rdO = lambda j: p.e(rdo(j), tag=f"O{j}")
    p.e(f"v_rcp_f32 v{DL+1}, v{DL}")
    fillh(wkey(1), 1, 0)
    zs = "\n".join(zero(DACC[k], 4) for k in range(4)).split("\n")
    p.e(f"v_min_f32 v{DL}, v{DL}, v{DL+1}\nv_cmp_nlt_f32 vcc, s{sLIM}, v{DL}")
    p.e("\n".join(zs[:3]))
    for j in range(4): p.e(OMUL(j))
    CVT(DO, DO); CVT(DO + 1, DO + 2)
    p.e(WO, tag="wo")
    p.e(zs[3])
    rdO(0)
    p.e(f"s_and_b64 vcc, vcc, s[{sSP0}:{sSP0+1}]")
    nz = cfg.get('oz', 6)
    p.e("\n".join(zs[4:nz]))
    p.e(f"s_cbranch_scc1 L_mx_{nm}")
    p.e(f"L_mxb_{nm}:")
    zs = zs[nz:] + zero(DACC[4], 4).split("\n")
    for _ in range(cfg.get('oz2', 4)): p.e(zs.pop(0))
    q = Prog()
    m0_, m1_, FP1 = AK + 2, AK + 3, AV + 4
    def allg(op):
        q.e(f"v_mov_b32 v{m1_}, v{m0_}\nv_permlane16_swap_b32 v{m0_}, v{m1_}\n{op} v{m0_}, v{m0_}, v{m1_}\nv_mov_b32 v{m1_}, v{m0_}\nv_permlane32_swap_b32 v{m0_}, v{m1_}\n{op} v{m0_}, v{m0_}, v{m1_}")
    q.e(f"L_mx_{nm}:\ns_waitcnt lgkmcnt(0)\nv_max3_f32 v{m0_}, v{DX}, v{DX+1}, v{DM}\nv_max_f32 v{m0_}, v{m0_}, v{DM+1}")
    allg("v_max_f32")
    q.e(f"ds_write_b32 v{vL16}, v{m0_} offset:{L_Q + 4*w}\ns_waitcnt lgkmcnt(0)\ns_barrier\nds_read_b128 {vr(DL, 4)}, v{vL16} offset:{L_Q}\ns_waitcnt lgkmcnt(0)")
    q.e(f"""
v_max3_f32 v{DL}, v{DL}, v{DL+1}, v{DL+2}
v_max_f32 v{DL}, v{DL}, v{DL+3}
v_sub_f32 v{DX+2}, v{DX}, v{DL}
v_sub_f32 v{DX+3}, v{DX+1}, v{DL}
v_sub_f32 v{DM+2}, v{DM}, v{DL}
v_sub_f32 v{DM+3}, v{DM+1}, v{DL}
v_exp_f32 v{DX+2}, v{DX+2}
v_exp_f32 v{DX+3}, v{DX+3}
v_exp_f32 v{DM+2}, v{DM+2}
v_exp_f32 v{DM+3}, v{DM+3}
v_cvt_pk_bf16_f32 v{DX+2}, v{DX+2}, v{DX+3}
v_cvt_pk_bf16_f32 v{DM+2}, v{DM+2}, v{DM+3}
{WX}
{CND(PM)}
{CND(PM+1)}
{SET(ONE, sONE)}
{SET(ONE+2, sONE)}
{DPM(PM+2)}
{DPM(PM+3)}
s_waitcnt lgkmcnt(0)
s_barrier
{SET(HALF, sHALF)}
{RP(P0, 0)}
{RP(FP1, 1)}
s_waitcnt lgkmcnt(0)
{MF} {vr(DL, 4)}, {vr(ONE, 4)}, {vr(P0, 4)}, 0
{MF} {vr(DO, 4)}, {vr(VV, 4)}, {vr(P0, 4)}, 0
{MF} {vr(DO, 4)}, {vr(VV+4, 4)}, {vr(FP1, 4)}, {vr(DO, 4)}
{M16} {vr(DL, 4)}, {vr(HALF, 2)}, {vr(PM, 2)}, {vr(DL, 4)}
{MF} {vr(DO, 4)}, {vr(AV, 4)}, {vr(PM, 4)}, {vr(DO, 4)}
v_rcp_f32 v{DL+1}, v{DL}
""")
    for j in range(4): q.e(OMUL(j))
    q.e(f"v_cvt_pk_bf16_f32 v{DO}, v{DO}, v{DO+1}\nv_cvt_pk_bf16_f32 v{DO+1}, v{DO+2}, v{DO+3}\n{WO}\n{rdo(0)}")
    q.e("\n".join(zero(DACC[k], 4) for k in range(4)))
    q.e(f"s_waitcnt lgkmcnt(0)\ns_branch L_mxb_{nm}")
    p.ool.append(q.text())
    p.wl("wo"); p.e("s_barrier")
    if cfg.get('oz3', 0): p.e(zs.pop(0))
    rdO(1)
    if cfg.get('ord', 1) == 0: rdO(2); rdO(3)
    pend = []
    fq = []; nxt = [3]
    extra = zs
    for i, (k, j) in enumerate(al.wo_order):
        key = ('o', k, j)
        p.wl(f"O{j}")
        if key in al.lds:
            sl = al.wo_l.index((k, j)) % 3
            assert not any(x[0] == key for x in fq)
            p.wl(f"W{sl}")
        else: sl = None
        p.e(f"v_smfmac_f32_16x16x64_bf16 {vr(DACC[k], 4)}, {vr(OA[j], 4)}, {vr(wreg(key, sl), 8)}, v{vIdx} abid:1")
        if sl is not None and nxt[0] < len(al.wo_l):
            fq += [(wkey(nxt[0]), sl, 0), (wkey(nxt[0]), sl, 1)]; nxt[0] += 1
        if cfg.get('ord', 1) == 1 and i == 0: rdO(2); rdO(3)
        if fq and i >= cfg.get('wofd', 1): fillh(*fq.pop(0))
        if pend and pend[0][0] <= i:
            while pend and pend[0][0] <= i:
                _, ops = pend.pop(0)
                for o, tg in ops: p.e(o, tag=tg)
                if ops[-1][1] == "st1": stamp(7)
        elif extra: p.e(extra.pop(0))
        if j == 3:
            d = DACC[k]
            c0 = (f"v_cvt_pk_bf16_f32 v{d}, v{d}, v{d+1}", None)
            c1 = (f"v_cvt_pk_bf16_f32 v{d+1}, v{d+2}, v{d+3}", None)
            c2 = (f"v_bfi_b32 v{d}, 1, s{sT}, v{d}", None)
            c3 = (f"buffer_store_dwordx2 {vr(d, 2)}, v{vST}, {WSR}, s{sX[k]} offen{ST}", f"st{k}")
            if k <= cfg.get('wo_burst', 4): pend.append((i + cfg.get('wod', (2, 2, 2, 2, 2))[k], [c0, c1, c2, c3]))
            else: pend += [(i + 2, [c0]), (i + 3, [c1]), (i + 4, [c2, c3])]
    assert not extra
    for _, ops in pend:
        for o, tg in ops: p.e(o, tag=tg)
    stamp(8)
    if stamps:
        stamp(11)
        if cfg.get('abs'): p.e(f"s_memrealtime s[{sST+4}:{sST+5}]")
        if sel is None or sel: p.e("s_waitcnt lgkmcnt(0)")
        if cfg.get('abs'):
            p.e(f"s_lshl_b64 exec, 1, s{sS}")
            for i in range(12):
                if i in (0, 2) or i in sel: p.e(f"v_mov_b32 v{80+i}, s{sST+2*i}")
            for i in range(4): p.e(f"v_mov_b32 v{92+i}, s{95+i}")
            p.e("s_mov_b64 exec, -1")
        else:
            for i in range(1, 12):
                if sel is None or i in sel: p.e(f"s_sub_u32 s{sA}, s{sST+2*i}, s{sST}\ns_add_u32 s{84+i}, s{84+i}, s{sA}")
        p.e(f"s_cmp_eq_u32 s{sS}, 3\ns_cbranch_scc1 L_rst_{nm}")
        p.ool.append(f"L_rst_{nm}:\ns_memtime s[60:61]\ns_memrealtime s[62:63]\ns_waitcnt lgkmcnt(0)\ns_sub_u32 s59, s60, s84\ns_mov_b32 s84, s60\n" + "".join(f"s_mov_b32 s{i}, 0\n" for i in range(85, 99)) + ("s_mov_b32 s94, s62\n" if sel == [] else "") + f"s_branch L_ex_{nm}")
    p.e(f"s_branch L_ex_{nm}")
    i_ex = len(p.lines)
    p.e(f"L_ex_{nm}:")
    RD = AV; t1, t2 = AV + 4, AV + 5
    RL = "\n".join(f"buffer_load_dwordx4 {vr(a0+4*i, 4)}, v{vRD}, {WSR}, s{sRU} offen offset:{1024*i}{LD}" for i in range(4))
    def delay(c):
        while c > 0:
            k = min(c, 16); p.e(f"s_nop {k-1}"); c -= k
    def book():
        if red:
            p.e(f"v_and_b32 v{vTmp}, 0x70, v{vL16}")
            p.e(f"ds_read_b128 {vr(SEL, 4)}, v{vTmp} offset:{L_SEL}", tag="SEL")
            p.e(f"v_bfe_u32 v{vMask}, v{vL16}, 4, 2\nv_lshrrev_b32_e64 v{vMask}, v{vMask}, 1")
        p.e(f"s_add_u32 s{sS}, s{sS}, 1\ns_add_u32 s{sKV}, s{sKV}, {0 if cfg.get('nokv') else 524288}\ns_add_u32 s{sPF}, s{sPF}, 524288")
        p.e(f"s_mul_i32 s{sKM}, s{sS}, {MHS}\ns_add_u32 s{sKM}, s{sKM}, {WS_MH - WS_MEM}\ns_not_b32 s{sT}, s{sT}\ns_not_b32 s{sTn}, s{sTn}")
    for act in script:
        op, arg = act[0], act[1:]
        if op == 'y': book()
        elif op == 'z':
            if 'y' not in script: book()
            p.e(zero(AQ, 16 if 'x' in script else 24))
            if not red:
                p.e(f"s_cmp_eq_u32 s{sS}, 63\ns_cbranch_scc1 L_done_{nm}")
        elif op == 'e':
            if cfg.get('fused'):
                p.e(f"s_cmp_ge_u32 s{sS}, s{sEv}\ns_cbranch_scc1 L_ev_{nm}\nL_evb_{nm}:")
                p.ool.append(f"L_ev_{nm}:\n" + kvwait(nm) + f"s_branch L_evb_{nm}")
        elif op == 'f': fh(0, 0, 0); fh(0, 0, 1)
        elif op == 'x': p.e(zero(AV, 8))
        elif op == 't': p.e(TGA)
        elif op == 'L':
            p.e(f"v_mov_b32 v{vTmp}, s{sS}"); p.e(f"ds_write_b32 v{vL16}, v{vTmp} offset:{L_K}", tag="lf")
        elif op == 'l':
            p.e(f"v_mov_b32 v{a1+3}, 0\nL_lw_{nm}:")
            p.e(f"ds_read_b32 v{a1+3}, v{vL16} offset:{L_K}", tag="!lw")
            p.e(f"v_cmp_ne_u32 vcc, s{sS}, v{a1+3}\ns_sub_u32 s{sBud}, s{sBud}, 1\n{zero(AQ, 4)}\ns_cbranch_scc1 L_exit\n{zero(AK, 6)}\ns_cbranch_vccnz L_lw_{nm}")
        elif op == 'w': p.wv(arg)
        elif op == 'd': delay(int(arg))
        elif op == 'R':
            for i, x in enumerate(RL.split("\n")): p.e(x, tag=f"R{i}")
            stamp(9)
        elif op == 'r':
            p.wl("SEL")
            p.wv("R0")
            p.e(f"L_r_{nm}:")
            for i in range(4):
                p.wv(f"R{i}")
                p.e(f"{MF} {vr(RD, 4)}, {vr(a0 + 4*i, 4)}, {vr(SEL, 4)}, {vr(RD, 4) if i else 0}")
                if i == 1: p.e(f"v_bitop3_b32 v{t1}, v{a0}, v{a1}, s{sTn} bitop3:0x7e")
            p.e(f"""
v_bitop3_b32 v{t2}, v{a2}, v{a3}, s{sTn} bitop3:0x7e
v_bitop3_b32 v{t1}, v{t1}, v{t2}, 1 bitop3:0xa8
v_cmp_ne_u32 vcc, 0, v{t1}
v_nop
v_nop
v_nop
v_nop
v_nop
v_pk_add_f32 {vr(RD, 2)}, {vr(RD, 2)}, {vr(RD+2, 2)}
v_cvt_pk_bf16_f32 v{t1}, v{RD}, v{RD+1}
v_bfi_b32 v{t1}, v{vMask}, s{sT}, v{t1}
s_cbranch_vccnz L_rr_{nm}
""")
            p.ool.append(f"L_rr_{nm}:\n{RL}\n{cnt(2)}{BUD}s_waitcnt vmcnt(0)\ns_branch L_r_{nm}")
            p.e(f"buffer_store_dword v{t1}, v{vMS}, {WSR}, 0 offen{ST}", tag="ms")
            stamp(10)
            p.e(f"s_cmp_eq_u32 s{sS}, 63\nv_mov_b32 v{vMask}, v{t1}\ns_cbranch_scc1 L_done_{nm}")
        elif op in 'KP':
            if act not in hooks and act not in cfg.get('top', ('E',)) and not (op == 'K' and cfg.get('nok')): hook(act)
        elif op == 'b': p.e("s_barrier")
        elif op == 'D':
            edma([int(c) for c in arg])
            if arg[0] == '0': stamp(6)
        elif op == 'p':
            p.e(f"v_bfe_u32 v{vTmp}, v{vL16}, 2, {arg}\nv_mov_b32 v{AV+6}, s{sT}\ns_mov_b32 m0, {L_MEM}")
        elif op == 'F':
            p.e("s_mov_b64 exec, 1"); p.e(f"buffer_store_dword v{AV+6}, v{vL16}, {WSR}, s{sSYw} offen{ST}", tag="fl"); p.e("s_mov_b64 exec, -1")
        elif op == 'M':
            n, N = int(arg[0]), int(arg[1])
            if not fast: N = 1
            p.e(f"v_mov_b32 v{a4+3}, s{sTn}\nL_sp_{nm}:")
            p.e(f"buffer_load_dword v{a4+3}, v{vTmp}, {WSR}, s{sSYr} offen{LD}", tag="!sp")
            p.e(f"{cnt(3)}s_sub_u32 s{sBud}, s{sBud}, 1\ns_cbranch_scc1 L_exit")
            delay(cfg.get('lag', 0))
            for x, tg in dma(range(n))[1:]: p.e(x, tag="x")
            delay(int(arg[2:] or 0))
            p.e(f"s_waitcnt vmcnt({(N-1)*(n+1) + n})\nv_cmp_ne_u32 vcc, s{sT}, v{a4+3}\ns_cbranch_vccnz L_sp_{nm}")
            p.vmq = [(f"D{t}", set()) for t in range(n)] + [("!x", set())] * ((N-1)*(n+1))
            stamp(6)
        else: raise Exception(act)
    if probe is not None: probe.extend(t for t, _ in p.vmq)
    ls = p.lines
    p.lines = ls[:i_top] + [f"s_branch L_top_{nm}", ".p2align 6"] + ls[i_ex:] + ls[i_top:i_ex]
    p.e(f"L_done_{nm}:")
    p.fence(); p.ldsq = []; p.vmq = []
    p.e(gate(cfg, 'gate_ce', 'e' + nm))
    if red: p.e(PUB)
    p.e(tl(cfg, 4, AK, AK + 1))
    if cfg.get('abs'):
        p.e(f"s_lshl_b32 s{sA}, s{sH}, 14\ns_add_u32 s{sA}, s{sA}, {0x100000 + 4096*w}")
        for i in range(4): p.e(f"buffer_store_dwordx4 v[{80+4*i}:{83+4*i}], v{vL16}, {WSR}, s{sA} offen offset:{1024*i}")
    if stamps:
        p.e("s_memtime s[60:61]\ns_memrealtime s[62:63]\ns_waitcnt lgkmcnt(0)\ns_sub_u32 s84, s60, s84")
        if sel == []: p.e("s_sub_u32 s94, s62, s94")
        p.e(f"s_lshl_b32 s{sA}, s{sH}, 8\ns_add_u32 s{sA}, s{sA}, {WS_STMP + 64*w}\ns_waitcnt vmcnt(0) lgkmcnt(0)\nv_mov_b32 v{vL16}, 0")
        p.e("s_lshr_b32 s59, s59, 4\ns_lshl_b32 s59, s59, 16\ns_or_b32 s99, s99, s59")
        for i in range(16): p.e(f"v_mov_b32 v{20+i}, s{84+i}")
        for i in range(4): p.e(f"buffer_store_dwordx4 v[{20+4*i}:{23+4*i}], v{vL16}, {WSR}, s{sA} offen offset:{16*i}")
    p.e("s_waitcnt vmcnt(0) lgkmcnt(0)\ns_endpgm")

def chain_body(cfg):
    out = []
    Alloc.ORD = cfg.get('word', 1)
    p = Prog()
    if cfg.get('stamps'): p.e("s_memrealtime s[98:99]\ns_waitcnt lgkmcnt(0)\ns_mov_b32 s59, s98")
    setup_common(p)
    p.e(f"""
v_lshrrev_b32 v1, 6, v0
v_readfirstlane_b32 s{sW}, v1
s_cmp_eq_u32 s{sW}, 0
s_cbranch_scc1 L_pro_w0
s_cmp_eq_u32 s{sW}, 2
s_cbranch_scc1 L_pro_w2r
s_cmp_eq_u32 s{sW}, 3
s_cbranch_scc1 L_pro_w3r
s_cmp_lt_u32 s{sH}, 8
s_cbranch_scc1 L_pro_w1r
s_branch L_pro_w1
L_exit:
s_endpgm
""")
    out.append(p.text())
    for w, red in ((0, False), (1, False), (1, True), (2, True), (3, True)):
        nm = f"w{w}{'r' if red else ''}"
        p = Prog()
        p.ldsq.append(('smem', set()))
        p.e(f"L_pro_{nm}:")
        prologue(p, w, red, cfg)
        n0 = p.nops_added
        loop(p, w, red, True, cfg)
        if cfg.get('verbose'): print(nm, "nops in loop", p.nops_added - n0)
        if cfg.get('trace') is not None:
            nv = len(cfg['trace'])
            txt = p.text(); i0 = txt.index(f"s_cbranch_scc0 L_slow_{nm}\n") + len(f"s_cbranch_scc0 L_slow_{nm}\n")
            pro, body = txt[:i0], txt[i0:]
            m_ = re.search(rf"L_rdv2_{nm}:.*?s_branch L_rdv_{nm}\n", body, re.S)
            extra_ = m_.group(0).replace("L_exit", f"L_exit_{nm}"); body = body.replace(m_.group(0), "")
            o = pro.replace("L_exit", f"L_exit_{nm}") + f"L_slow_{nm}:\ns_and_b32 s{sA}, s{sH}, {nv-1}\n"
            for v in range(nv): o += f"s_cmp_eq_u32 s{sA}, {v}\ns_cbranch_scc1 L_var{v}_{nm}\n"
            o += "s_endpgm\n" + extra_
            for v in range(nv):
                ls = body.split("\n")
                top = ls.index(f"L_ex_{nm}f:"); tp2 = ls.index(f"L_top_{nm}f:")
                if cfg.get('solo'):
                    dn = ls.index(f"L_done_{nm}f:")
                    ls = ls[:top] + [x for x in ls[top:dn] if not (x.startswith('buffer_') and cfg['solo'] in x) ] + ls[dn:]
                cfg.setdefault('listing', {})[nm] = ls[top:]
                if cfg.get('refbar'):
                    bars = [x for x in range(tp2, len(ls)) if ls[x] == 's_barrier']
                    ls.insert(bars[cfg['refbar'] - 1] + 1, ls[tp2 + 1]); del ls[tp2 + 1]
                    cfg['listing'][nm] = ls[top:]
                for k, pos in sorted(enumerate(cfg['trace'][v]), key=lambda x: -x[1]):
                    ls.insert(top + pos, f"s_memtime s[{sST+2*k+2}:{sST+2*k+3}]")
                o += f"L_var{v}_{nm}:\n" + re.sub(rf"(L_\w+_{nm}f)", rf"\1_{v}", "\n".join(ls)).replace("L_exit", f"L_exit_{nm}")
            out.append(o + f"L_exit_{nm}:\ns_endpgm\n")
            continue
        out.append(p.text())
        p = Prog()
        p.e(f"L_slow_{nm}:")
        loop(p, w, red, False, cfg)
        out.append(p.text())
    t = "".join(out)
    hot = {}
    def cut(m):
        hot.setdefault(m.group(3), []).append(m.group(1)); return ""
    t = re.sub(r"(\.p2align 6\nL_ex_(w\dr?)([fs](?:_\d+)?):\n.*?s_branch L_ex_\2\3\n)(?=L_done_)", cut, t, flags=re.S)
    i = t.index("L_pro_w2r:")
    t = t[:i] + "".join("".join(hot[k]) for k in sorted(hot)) + t[i:]
    if cfg.get('nocheck'): t = re.sub(r"s_cbranch_vccnz L_r\w+", "s_nop 0", t)
    if cfg.get('nocheck'): t = re.sub(r"s_and_b64 vcc, vcc, s\[\d+:\d+\]", "s_and_b64 vcc, vcc, 0", t)
    if cfg.get('nosm'): t = re.sub(r"v_smfmac[^\n]*", "s_nop 0", t)
    if cfg.get('nobar'): t = re.sub(r"s_barrier", "s_nop 0", t)
    return t

if __name__ == "__main__":
    t = chain_body({'verbose': True})
    open('chain_body.s', 'w').write('.amdgcn_target "amdgcn-amd-amdhsa--gfx950"\n.text\n' + t)
```

```python
from asmgen import *
from chain import WS_MH, MHS, WS_KVX, WS_BYTES, WS_FLG, SCALE, tl, gate, coop_src, coop_tr
import math, struct
WS_QX  = 0x3000000
WS_O   = 0x4000000
WS_OA  = 0x5000000
WS_OMG = 0x5300000
F_KV = WS_FLG
F_O = WS_FLG + 4096
f2u = lambda x: struct.unpack('<I', struct.pack('<f', x))[0]
NEG = f2u(-1e30)
SC = " sc0 sc1"
S_WS, S_X, S_W0, S_W1, S_W2, S_DBG, S_OUT, S_G = 4, 8, 12, 16, 20, 24, 28, 64
sP0, sP1, sW, sI, sBud = 32, 33, 34, 35, 36
sA, sB, sC, sD, sE, sF = 37, 38, 39, 40, 41, 42
sXs, sXm = 43, 44
sSCp = 46
sP2, sP3 = 48, 49
def R(b): return f"s[{b}:{b+3}]"
def srd(p, b, slot, n):
    p.e(f"s_load_dwordx2 s[{b}:{b+1}], s[0:1], {slot}\ns_mov_b32 s{b+2}, {n}\ns_mov_b32 s{b+3}, 0x20000")
MF = "v_mfma_f32_16x16x32_bf16"
XBUF = 36864

def poll(p, name, srdb, vaddr, soff, off, vt, test, sleep=4):
    p.e(f"""
s_branch {name}_in
{name}:
s_sleep {sleep}
{name}_in:
buffer_load_dword v{vt}, v{vaddr}, {R(srdb)}, {soff} offen offset:{off}{SC}
s_sub_u32 s{sBud}, s{sBud}, 1
s_cbranch_scc1 L_exit_w
s_waitcnt vmcnt(0)
{test}
s_cbranch_scc0 {name}
""")

def lanes(p, l, n, g):
    p.e(f"v_and_b32 v{l}, 63, v0\nv_and_b32 v{n}, 15, v0\nv_bfe_u32 v{g}, v0, 4, 2\nv_lshrrev_b32 v1, 6, v0\nv_readfirstlane_b32 s{sW}, v1")

def x_addr(p, vXg, vXr, l, n, g, t0, t1):
    p.e(f"""
v_lshrrev_b32 v{t0}, 2, v{l}
v_mul_u32_u24 v{vXg}, 1152, v{t0}
v_lshrrev_b32 v{t0}, 5, v{l}
v_lshlrev_b32 v{t0}, 1, v{t0}
v_and_b32 v{t1}, 3, v{l}
v_xor_b32 v{t0}, v{t0}, v{t1}
v_lshl_add_u32 v{vXg}, v{t0}, 4, v{vXg}
v_lshrrev_b32 v{t0}, 3, v{n}
v_lshlrev_b32 v{t0}, 1, v{t0}
v_xor_b32 v{t0}, v{t0}, v{g}
v_lshlrev_b32 v{t0}, 4, v{t0}
v_lshl_add_u32 v{vXr}, v{n}, 6, v{t0}
""")

def x_dma(j, vXg):
    return f"s_add_u32 s{sA}, s{sXs}, {128*j}\ns_add_u32 m0, s{sXm}, {4096*j}\ns_nop 0\nbuffer_load_dwordx4 v{vXg}, {R(S_X)}, s{sA} offen lds"

def load_weights(p, pairs, rowstride, vTr, sRing, nslot, wreg, mid=None):
    items = [(pi, kk) for pi in range(len(pairs)) for kk in range(9)]
    D = nslot - 1
    def issue(i):
        pi, kk = items[i]; b, va, so = pairs[pi]
        for d in range(4):
            p.e(f"s_add_u32 s{sA}, s{so}, {(64*kk + 16*d) * rowstride}\ns_add_u32 m0, s{sRing}, {4096*(i % nslot) + 1024*d}")
            p.e(f"buffer_load_dwordx4 v{va}, {R(b)}, s{sA} offen lds", tag=f"d{i}")
    for i in range(D): issue(i)
    if mid: mid()
    for i, (pi, kk) in enumerate(items):
        p.wv(f"d{i}")
        for T in range(2):
            for k2 in range(2):
                for q in range(2):
                    p.e(f"ds_read_b64_tr_b16 {vr(wreg(2*pi + T, 2*kk + k2) + 2*q, 2)}, v{vTr} offset:{4096*(i % nslot) + 2048*k2 + 256*q + 32*T}", tag="tr")
        p.e("s_waitcnt lgkmcnt(0)")
        if i + D < len(items): issue(i + D)

def load_weights_coop(p, mats, vG, sCol, sRing, nslot, wreg, mid):
    items = [(pi, kk) for pi in range(len(mats)) for kk in range(9)]
    def issue(i):
        pi, kk = items[i]
        for d in range(4):
            p.e(f"s_add_u32 s{sA}, s{sCol}, {(64*kk + 4*d) * 8192}\ns_add_u32 m0, s{sRing}, {4096*(i % nslot) + 1024*d}")
            p.e(f"buffer_load_dwordx4 v{vG[d >> 1]}, {R(mats[pi][1])}, s{sA} offen lds", tag=f"d{i}")
    for i in range(nslot): issue(i)
    mid()
    for i, (pi, kk) in enumerate(items):
        p.wv(f"d{i}")
        p.e("s_barrier")
        if i >= 1 and i + nslot - 1 < len(items): issue(i + nslot - 1)
        for T in range(2):
            for k2 in range(2):
                for q in range(2):
                    p.e(f"ds_read_b64_tr_b16 {vr(wreg(2*mats[pi][0] + T, 2*kk + k2) + 2*q, 2)}, v{mats[pi][2][k2][T]} offset:{4096*(i % nslot) + 1024*q}", tag="tr")
        p.e("s_waitcnt lgkmcnt(0)")

def gemm_block(p, NT, wreg, accreg, XS, vXr, vXg, w_is_a, mid=None):
    def rd(ks):
        for tt in range(2): p.e(f"ds_read_b128 {vr(XS + 8*(ks & 1) + 4*tt, 4)}, v{vXr} offset:{(2*ks + tt) * 1024}", tag=f"x{ks}")
    rd(0)
    for ks in range(18):
        if ks + 1 < 18: rd(ks + 1)
        p.wl(f"x{ks}")
        for ti in range(NT):
            for tt in range(2):
                a = accreg(ti, tt); x = vr(XS + 8*(ks & 1) + 4*tt, 4); wv = vr(wreg(ti, ks), 4)
                A, B = (wv, x) if w_is_a(ti) else (x, wv)
                p.e(f"{MF} {vr(a, 4)}, {A}, {B}, {vr(a, 4) if ks else 0}")
            if ti == 1 and ks < 9: p.e(x_dma(ks, vXg), tag="xd")
            if ti == 1 and ks == 10 and mid: mid()

def tr_addr(p, v, n, g, t0, rowbytes, gmul):
    p.e(f"""
v_lshrrev_b32 v{t0}, 2, v{n}
v_lshl_add_u32 v{t0}, v{g}, {gmul.bit_length()-1}, v{t0}
v_mul_u32_u24 v{v}, {rowbytes}, v{t0}
v_and_b32 v{t0}, 3, v{n}
v_lshl_add_u32 v{v}, v{t0}, 3, v{v}
""")

def role_q(cfg):
    p = Prog()
    sH, sR = sP0, sP1
    vL16, vXg, vXr, vKst, vGq, vGv, vTr, vZ, l, n, g, t0, t1 = range(1, 14)
    ACC, XS, WB = 16, 64, 80
    wreg = lambda ti, ks: WB + 72*ti + 4*ks
    acc = lambda ti, tt: ACC + 8*ti + 4*tt
    p.e("L_role_q:")
    srd(p, S_WS, 104, WS_BYTES); srd(p, S_X, 0, 2359296); srd(p, S_W0, 40, 4718592); srd(p, S_W1, 48, 4718592); srd(p, S_W2, 56, 4718592); srd(p, S_DBG, 96, 256)
    lanes(p, l, n, g)
    x_addr(p, vXg, vXr, l, n, g, t0, t1)
    p.e(coop_src(vGq, vGv, n, g, t0, "", f"v_lshlrev_b32 v{t0}, 13, v{g}"))
    p.e(f"""
v_lshlrev_b32 v{vL16}, 4, v{l}
s_mul_i32 s{sB}, s{sW}, 20480
s_add_u32 s{sB}, s{sB}, {2*XBUF}
s_lshl_b32 s{sC}, s{sH}, 8
s_lshl_b32 s{sD}, s{sW}, 17
s_add_u32 s{sC}, s{sC}, s{sD}
s_lshl_b32 s{sXs}, s{sR}, 1
s_and_b32 s{sE}, s{sW}, 1
s_add_u32 s{sXs}, s{sXs}, s{sE}
s_mul_i32 s{sXs}, s{sXs}, 18432
s_lshr_b32 s{sE}, s{sW}, 1
s_lshl_b32 s{sE}, s{sE}, 6
s_add_u32 s{sXs}, s{sXs}, s{sE}
s_lshl_b32 s{sXm}, s{sW}, 10
s_mov_b32 s{sBud}, {cfg.get('budget', 400000)}
s_mov_b32 s{sSCp}, {SCALE:#x}
s_mov_b32 s{sSCp+1}, {SCALE:#x}
v_mov_b32 v{vZ}, 0
; vKst = (n>>2)*4096 + g*256 + (n&3)*16
v_lshrrev_b32 v{t0}, 2, v{n}
v_lshlrev_b32 v{vKst}, 12, v{t0}
v_lshl_add_u32 v{vKst}, v{g}, 8, v{vKst}
v_and_b32 v{t0}, 3, v{n}
v_lshl_add_u32 v{vKst}, v{t0}, 4, v{vKst}
s_waitcnt lgkmcnt(0)
""")
    TQ = [[16, 17], [18, 19]]; TV = [[20, 21], [22, 23]]
    def mid():
        for j in range(9): p.e(x_dma(j, vXg), tag="xd")
        reg = [2*XBUF + 20480*x for x in range(4)]
        for T in range(2):
            p.e(f"s_lshr_b32 s{sD}, s{sW}, 1\ns_lshl_b32 s{sD}, s{sD}, 3\ns_and_b32 s{sE}, s{sW}, 1\ns_lshl_b32 s{sE}, s{sE}, 1\ns_add_u32 s{sD}, s{sD}, s{sE}\ns_add_u32 s{sD}, s{sD}, {4*T}")
            p.e(f"s_lshl_b32 s{sE}, s{sW}, 2\ns_add_u32 s{sE}, s{sE}, {2*T}")
            for k2 in range(2):
                p.e(coop_tr(TQ[k2][T], f"s{sD}", reg[2*k2], reg[2*k2 + 1], n, g, t0, t1))
                p.e(coop_tr(TV[k2][T], f"s{sE}", reg[2*k2], reg[2*k2 + 1], n, g, t0, t1))
    load_weights_coop(p, [(0, S_W0, TQ), (1, S_W1, TQ), (2, S_W2, TV)], (vGq, vGv), sC, sB, 5, wreg, mid)
    sQ, sK, sV = sC, sD, sE
    p.e(tl(cfg, 1, t0, t1, True))
    p.e(f"""
s_lshl_b32 s{sF}, s{sR}, 5
s_add_u32 s{sF}, s{sF}, s{sH}
s_lshl_b32 s{sQ}, s{sF}, 13
s_lshl_b32 s{sA}, s{sW}, 11
s_add_u32 s{sQ}, s{sQ}, s{sA}
s_add_u32 s{sQ}, s{sQ}, {WS_QX}
s_lshl_b32 s{sK}, s{sF}, 14
s_add_u32 s{sK}, s{sK}, {WS_KVX}
s_lshl_b32 s{sA}, s{sW}, 12
s_add_u32 s{sV}, s{sK}, s{sA}
s_lshr_b32 s{sA}, s{sW}, 1
s_lshl_b32 s{sA}, s{sA}, 10
s_add_u32 s{sK}, s{sK}, s{sA}
s_and_b32 s{sA}, s{sW}, 1
s_lshl_b32 s{sA}, s{sA}, 6
s_add_u32 s{sK}, s{sK}, s{sA}
s_mov_b32 s{sI}, 0
s_mov_b32 s{sP2}, {XBUF}
s_lshl_b32 s{sP3}, s{sH}, 5
s_lshl_b32 s{sA}, s{sR}, 2
s_add_u32 s{sP3}, s{sP3}, s{sA}
s_add_u32 s{sP3}, s{sP3}, s{sW}
s_lshl_b32 s{sP3}, s{sP3}, 2
s_add_u32 s{sP3}, s{sP3}, {F_KV}
""")
    poll(p, "L_q_init", S_DBG, vZ, 0, 0, t0, f"v_readfirstlane_b32 s{sA}, v{t0}\ns_and_b32 s{sA}, s{sA}, 0xff\ns_cmp_eq_u32 s{sA}, 32")
    PROG = f"v_mov_b32 v{t0}, s{sI}\ns_mov_b64 exec, 1\nbuffer_store_dword v{t0}, v{vZ}, {R(S_WS)}, s{sP3} offen{SC}\ns_mov_b64 exec, -1"
    def prog():
        p.wv("st"); p.e(PROG, tag="pg")
    p.raw(".p2align 6")
    p.e("L_q_loop:")
    p.fence(); p.vmq = [("xd", set()), ("pg", set())] + [("st", set())] * 6
    p.wv("xd")
    p.e(f"""
s_barrier
s_add_u32 s{sXs}, s{sXs}, {4*XBUF}
s_add_u32 s{sXm}, s{sXm}, s{sP2}
""")
    gemm_block(p, 6, wreg, acc, XS, vXr, vXg, lambda ti: ti < 4, prog)
    p.e(f"v_add_u32 v{vXr}, s{sP2}, v{vXr}\ns_sub_u32 s{sP2}, 0, s{sP2}")
    def pack(d, a, b):
        for i, x in enumerate((a, a + 2, b, b + 2)): p.e(f"v_cvt_pk_bf16_f32 v{d+i}, v{x}, v{x+1}")
    for tt in range(2):
        pack(XS + 4*tt, acc(0, tt), acc(1, tt))
        p.e(f"buffer_store_dwordx4 {vr(XS + 4*tt, 4)}, v{vL16}, {R(S_WS)}, s{sQ} offen offset:{1024*tt}", tag="st")
    for x in range(acc(2, 0), acc(4, 0), 2): p.e(f"v_pk_mul_f32 {vr(x, 2)}, {vr(x, 2)}, s[{sSCp}:{sSCp+1}]")
    for tt in range(2):
        pack(XS + 8 + 4*tt, acc(2, tt), acc(3, tt))
        p.e(f"buffer_store_dwordx4 {vr(XS + 8 + 4*tt, 4)}, v{vKst}, {R(S_WS)}, s{sK} offen offset:{128*tt}{SC}", tag="st")
    for T in range(2):
        pack(acc(0, T), acc(4 + T, 0), acc(4 + T, 1))
        p.e(f"buffer_store_dwordx4 {vr(acc(0, T), 4)}, v{vL16}, {R(S_WS)}, s{sV} offen offset:{2048 + 1024*T}{SC}", tag="st")
    p.e(f"""
s_add_u32 s{sQ}, s{sQ}, {4*32*8192}
s_add_u32 s{sK}, s{sK}, {4*32*16384}
s_add_u32 s{sV}, s{sV}, {4*32*16384}
s_add_u32 s{sI}, s{sI}, 1
s_cmp_lg_u32 s{sI}, 1
s_cbranch_scc1 L_q_n1
s_waitcnt vmcnt(0)
{PROG}
{tl(cfg, 2, t0, t1)}
s_waitcnt vmcnt(0)
L_q_n1:
s_cmp_lt_u32 s{sI}, 16
s_cbranch_scc1 L_q_loop
s_waitcnt vmcnt(0)
{PROG}
s_barrier
""")
    p.fence(); p.vmq = []
    p.e(tl(cfg, 3, t0, t1))
    Q, K, V, BI, ONE, DX, DM, KM, VM, P, PM, O, DL, M, MA, MS, AC, KG = 16, 32, 64, 80, 92, 96, 104, 108, 124, 132, 136, 140, 156, 160, 164, 176, 192, 208
    vMr, vL4, vMk, vEw, vVr = 14, 15, vGq, vGv, vXr
    sQ0, sQ1, sKx, sV0, sV1, sMH, sO, sMH8, sFO, sTg, sMH1 = range(50, 61)
    L_KX, L_VX = 9216, 13312
    p.e(f"""
s_lshr_b32 s{sA}, s{sW}, 1
s_and_b32 s{sB}, s{sW}, 1
s_lshl_b32 s{sQ0}, s{sF}, 13
s_lshl_b32 s{sC}, s{sA}, 10
s_add_u32 s{sQ0}, s{sQ0}, s{sC}
s_add_u32 s{sQ0}, s{sQ0}, {WS_QX}
s_lshl_b32 s{sKx}, s{sF}, 14
s_add_u32 s{sKx}, s{sKx}, {WS_KVX}
s_lshl_b32 s{sC}, s{sB}, 13
s_add_u32 s{sV0}, s{sKx}, s{sC}
s_mul_i32 s{sMH}, s{sR}, {MHS}
s_add_u32 s{sMH}, s{sMH}, {WS_MH}
s_and_b32 s{sTg}, s{sR}, 1
s_sub_u32 s{sTg}, s{sTg}, 1
s_lshl_b32 s{sC}, s{sR}, 1
s_add_u32 s{sC}, s{sC}, s{sA}
s_lshl_b32 s{sO}, s{sC}, 6
s_lshl_b32 s{sD}, s{sH}, 1
s_add_u32 s{sD}, s{sD}, s{sB}
s_add_u32 s{sO}, s{sO}, s{sD}
s_lshl_b32 s{sFO}, s{sO}, 2
s_add_u32 s{sFO}, s{sFO}, {F_O}
s_lshl_b32 s{sO}, s{sO}, 11
s_add_u32 s{sO}, s{sO}, {WS_O}
s_mov_b32 s{sI}, 0
s_lshl_b32 s{sA}, s{sA}, 4
v_add_u32 v{t0}, s{sA}, v{n}
v_lshlrev_b32 v{t1}, 2, v{g}
v_sub_u32 v{t0}, v{t0}, v{t1}
v_mov_b32 v{t1}, {NEG:#x}
""")
    for kt in range(2):
        for r in range(4): p.e(f"v_cmp_le_i32 vcc, {16*kt + r}, v{t0}\nv_cndmask_b32 v{BI + 4*kt + r}, v{t1}, v{vZ}, vcc")
    p.e(f"v_cmp_gt_u32 vcc, 2, v{g}")
    for r in range(4): p.e(f"v_cndmask_b32 v{BI + 8 + r}, v{t1}, v{vZ}, vcc")
    for i in range(4): p.e(f"v_mov_b32 v{ONE+i}, 0x3f803f80")
    p.e(f"""
v_lshrrev_b32 v{t0}, 1, v{g}
v_lshlrev_b32 v{vMr}, 8, v{t0}
v_and_b32 v{t0}, 1, v{g}
v_lshl_add_u32 v{vMr}, v{t0}, 5, v{vMr}
v_bfe_u32 v{t0}, v{n}, 1, 2
v_lshl_add_u32 v{vMr}, v{t0}, 6, v{vMr}
v_and_b32 v{t0}, 1, v{n}
v_lshl_add_u32 v{vMr}, v{t0}, 4, v{vMr}
s_lshl_b32 s{sA}, s{sW}, 8
v_lshl_add_u32 v{vL4}, v{l}, 2, s{sA}
s_lshl_b32 s{sA}, s{sW}, 10
v_add_u32 v{vEw}, s{sA}, v{vL16}
s_lshl_b32 s{sB}, s{sB}, 11
v_add_u32 v{vVr}, s{sB}, v{vL16}
v_and_b32 v{t0}, 3, v{n}
v_cmp_eq_u32 vcc, 0, v{t0}
v_cndmask_b32 v{vMk}, 0, 1, vcc
""")
    p.e("L_at_loop:")
    p.fence()
    p.e(f"s_add_u32 s{sQ1}, s{sQ0}, 4096\ns_add_u32 s{sV1}, s{sV0}, 4096\ns_add_u32 s{sMH1}, s{sMH}, 4096\ns_add_u32 s{sMH8}, s{sMH}, 8192")
    for uT in range(4):
        p.e(f"buffer_load_dwordx4 {vr(Q + 4*uT, 4)}, v{vL16}, {R(S_WS)}, s{sQ0 if uT < 2 else sQ1} offen offset:{2048*(uT & 1)}", tag=f"Q{uT}")
        for kt in range(2):
            p.e(f"buffer_load_dwordx4 {vr(K + 16*kt + 4*uT, 4)}, v{vKst}, {R(S_WS)}, s{sKx} offen offset:{1024*(uT >> 1) + 64*(uT & 1) + 128*kt} sc1", tag=f"Q{uT}")
    for E in range(4):
        p.e(f"buffer_load_dwordx4 {vr(V + 4*E, 4)}, v{vL16}, {R(S_WS)}, s{sV0 if E < 2 else sV1} offen offset:{2048 + 1024*(E & 1)} sc1", tag="V")
    for uT in range(4):
        p.wv(f"Q{uT}")
        for kt in range(2):
            p.e(f"{MF} {vr(DX + 4*kt, 4)}, {vr(K + 16*kt + 4*uT, 4)}, {vr(Q + 4*uT, 4)}, {vr((DX if uT else BI) + 4*kt, 4)}")
    p.e(f"""
v_max3_f32 v{M}, v{DX}, v{DX+1}, v{DX+2}
v_max3_f32 v{M}, v{M}, v{DX+3}, v{DX+4}
v_max3_f32 v{M}, v{M}, v{DX+5}, v{DX+6}
v_max_f32 v{M}, v{M}, v{DX+7}
s_branch L_at_in
L_at_poll:
s_sleep {cfg.get('slq', 2)}
L_at_in:
buffer_load_dwordx4 {vr(MA, 4)}, v{vEw}, {R(S_WS)}, s{sMH} offen{SC}
buffer_load_dwordx4 {vr(MA+4, 4)}, v{vEw}, {R(S_WS)}, s{sMH1} offen{SC}
buffer_load_dword v{MA+8}, v{vL4}, {R(S_WS)}, s{sMH8} offen{SC}
s_sub_u32 s{sBud}, s{sBud}, 1
s_cbranch_scc1 L_exit_w
s_waitcnt vmcnt(0)
v_bitop3_b32 v{t0}, v{MA}, v{MA+4}, s{sTg} bitop3:0x7e
v_bitop3_b32 v{t1}, v{MA+8}, s{sTg}, v{vMk} bitop3:0x28
v_and_or_b32 v{t0}, v{t0}, 1, v{t1}
v_cmp_ne_u32 vcc, 0, v{t0}
s_cbranch_vccnz L_at_poll
ds_write_b128 v{vEw}, {vr(MA, 4)}
ds_write_b128 v{vEw}, {vr(MA+4, 4)} offset:4096
ds_write_b32 v{vL4}, v{MA+8} offset:8192
s_waitcnt lgkmcnt(0)
s_barrier
""")
    def rdm(ks): p.e(f"ds_read_b128 {vr(MS + 4*(ks & 3), 4)}, v{vMr} offset:{512*ks}", tag=f"m{ks}")
    for ks in range(3): rdm(ks)
    for ks in range(18):
        if ks + 3 < 18: rdm(ks + 3)
        p.wl(f"m{ks}")
        x = vr(MS + 4*(ks & 3), 4)
        for j in range(4):
            wv = vr(wreg(2 + j, ks), 4); a = vr(AC + 4*j, 4)
            A_, B_ = (wv, x) if j < 2 else (x, wv)
            p.e(f"{MF} {a}, {A_}, {B_}, {a if ks else 0}")
    for x in range(AC, AC + 8): p.e(f"v_mul_f32 v{x}, s{sSCp}, v{x}")
    for i in range(4): p.e(f"v_cvt_pk_bf16_f32 v{KG+i}, v{AC+2*i}, v{AC+2*i+1}")
    p.e(f"ds_write_b128 v{vEw}, {vr(KG, 4)} offset:{L_KX}", tag="e")
    for i in range(4, 8): p.e(f"v_cvt_pk_bf16_f32 v{KG+i}, v{AC+2*i}, v{AC+2*i+1}")
    p.e(f"ds_write_b128 v{vEw}, {vr(KG+4, 4)} offset:{L_VX}", tag="e")
    p.e("s_waitcnt lgkmcnt(0)\ns_barrier")
    for uT in range(4): p.e(f"ds_read_b128 {vr(KM + 4*uT, 4)}, v{vL16} offset:{L_KX + 1024*uT}", tag=f"k{uT}")
    for b in range(2): p.e(f"ds_read_b128 {vr(VM + 4*b, 4)}, v{vVr} offset:{L_VX + 1024*b}", tag="vm")
    for uT in range(4):
        p.wl(f"k{uT}")
        p.e(f"{MF} {vr(DM, 4)}, {vr(KM + 4*uT, 4)}, {vr(Q + 4*uT, 4)}, {vr(DM if uT else BI + 8, 4)}")
    p.e(f"""
v_max3_f32 v{M}, v{M}, v{DM}, v{DM+1}
v_max3_f32 v{M+1}, v{M}, v{DM+2}, v{DM+3}
v_max3_f32 v{M}, v{M}, v{DM+2}, v{DM+3}
v_permlane16_swap_b32 v{M}, v{M+1}
v_max_f32 v{M+2}, v{M}, v{M+1}
v_max_f32 v{M+3}, v{M}, v{M+1}
v_permlane32_swap_b32 v{M+2}, v{M+3}
v_max_f32 v{M}, v{M+2}, v{M+3}
""")
    for x in range(DX, DX + 12, 2):
        p.e(f"v_pk_add_f32 {vr(x, 2)}, {vr(x, 2)}, {vr(M, 2)} op_sel_hi:[1,0] neg_lo:[0,1] neg_hi:[0,1]")
    for x in range(DX, DX + 12): p.e(f"v_exp_f32 v{x}, v{x}")
    for i in range(6): p.e(f"v_cvt_pk_bf16_f32 v{P+i}, v{DX+2*i}, v{DX+2*i+1}")
    p.e(f"{MF} {vr(DL, 4)}, {vr(ONE, 4)}, {vr(P, 4)}, 0")
    for E in range(4): p.e(f"{MF} {vr(O + 4*E, 4)}, {vr(V + 4*E, 4)}, {vr(P, 4)}, 0")
    p.wl("vm")
    M16 = "v_mfma_f32_16x16x16_bf16"
    p.e(f"{M16} {vr(DL, 4)}, {vr(ONE, 2)}, {vr(PM, 2)}, {vr(DL, 4)}")
    for E in range(4): p.e(f"{M16} {vr(O + 4*E, 4)}, {vr(VM + 2*E, 2)}, {vr(PM, 2)}, {vr(O + 4*E, 4)}")
    p.e(f"v_rcp_f32 v{DL}, v{DL}")
    for b in range(2):
        for x in range(O + 8*b, O + 8*b + 8): p.e(f"v_mul_f32 v{x}, v{x}, v{DL}")
        for i in range(4): p.e(f"v_cvt_pk_bf16_f32 v{O + 8*b + i}, v{O + 8*b + 2*i}, v{O + 8*b + 2*i + 1}")
        p.e(f"buffer_store_dwordx4 {vr(O + 8*b, 4)}, v{vL16}, {R(S_WS)}, s{sO} offen offset:{1024*b}{SC}", tag="st")
    p.e(f"""
s_add_u32 s{sI}, s{sI}, 1
v_mov_b32 v{t1}, s{sI}
s_add_u32 s{sQ0}, s{sQ0}, {4*32*8192}
s_add_u32 s{sKx}, s{sKx}, {4*32*16384}
s_add_u32 s{sV0}, s{sV0}, {4*32*16384}
s_add_u32 s{sMH}, s{sMH}, {4*MHS}
s_add_u32 s{sO}, s{sO}, {8*131072}
s_waitcnt vmcnt(0)
s_mov_b64 exec, 1
buffer_store_dword v{t1}, v{vZ}, {R(S_WS)}, s{sFO} offen{SC}
s_mov_b64 exec, -1
s_cmp_lt_u32 s{sI}, 16
s_cbranch_scc1 L_at_loop
s_waitcnt vmcnt(0)
{tl(cfg, 5, t0, t1)}
s_endpgm
""")
    return p.text()

TS = 456; L_T = 2*XBUF; L_G = L_T + 192*TS
def role_aw(cfg):
    p = Prog()
    sHG, sRT, sTM, sCG = sP0, sP1, sP2, sP3
    vL16, vXg, vXr, vTw, vG0, vG1, vTr, vZ, l, n, g, t0, t1 = range(1, 14)
    ACC, XS, WB = 16, 64, 80
    wreg = lambda ti, ks: WB + 72*ti + 4*ks
    acc = lambda ti, tt: ACC + 8*ti + 4*tt
    sTog, sGw = 50, 51
    p.e("L_role_aw:")
    srd(p, S_WS, 104, WS_BYTES); srd(p, S_X, 0, 2359296); srd(p, S_W0, 8, 1990656); srd(p, S_W1, 16, 663552); srd(p, S_W2, 64, 4718592)
    srd(p, S_DBG, 96, 256); srd(p, S_OUT, 88, 2359296); srd(p, S_G, 80, 1152)
    if cfg.get('mall', False):
        for b, slot in ((68, 40), (72, 48), (76, 56)): srd(p, b, slot, 4718592)
        p.e(f"s_mul_i32 s{sA}, s{sTM}, 12\ns_add_u32 s{sA}, s{sA}, s{sCG}\ns_lshl_b32 s{sA}, s{sA}, 15\ns_add_u32 s{sB}, s{sA}, {96*32768}\nv_lshlrev_b32 v2, 7, v0\ns_waitcnt lgkmcnt(0)")
        for x, b in enumerate((68, 72, 76, S_W2)):
            p.e(f"buffer_load_dword v{64+2*x}, v2, {R(b)}, s{sA} offen\nbuffer_load_dword v{65+2*x}, v2, {R(b)}, s{sB} offen", tag="!pf")
    lanes(p, l, n, g)
    x_addr(p, vXg, vXr, l, n, g, t0, t1)
    tr_addr(p, vTr, n, g, t0, 64, 8)
    p.e(f"""
v_lshlrev_b32 v{vL16}, 4, v{l}
s_mul_i32 s{sB}, s{sW}, 20480
s_add_u32 s{sB}, s{sB}, {L_T}
v_add_u32 v{vTr}, s{sB}, v{vTr}
v_mov_b32 v{vZ}, 0
""")
    for pr, vg in ((0, vG0), (1, vG1)):
        p.e(f"""
; piece P = min(8w + {4*pr} + (l&3), 26): (P/9)*1152 + (P%9)*16 + (l>>2)*3456
s_lshl_b32 s{sA}, s{sW}, 3
s_add_u32 s{sA}, s{sA}, {4*pr}
v_and_b32 v{t0}, 3, v{l}
v_add_u32 v{t0}, s{sA}, v{t0}
v_min_u32 v{t0}, 26, v{t0}
v_mul_u32_u24 v{t1}, 57, v{t0}
v_lshrrev_b32 v{t1}, 9, v{t1}
v_mul_u32_u24 v{t1}, {1152 - 144}, v{t1}
v_lshl_add_u32 v{t1}, v{t0}, 4, v{t1}
v_lshrrev_b32 v{t0}, 2, v{l}
v_mul_u32_u24 v{t0}, 3456, v{t0}
v_add_u32 v{vg}, v{t0}, v{t1}
""")
    p.e(f"""
s_mul_i32 s{sC}, s{sHG}, 144
s_mul_i32 s{sD}, s{sRT}, 11
s_and_b32 s{sE}, s{sW}, 1
s_add_u32 s{sD}, s{sD}, s{sE}
s_sub_u32 s{sD}, s{sD}, 1
s_max_i32 s{sE}, s{sD}, 0
s_lshr_b32 s{sF}, s{sW}, 1
s_lshl_b32 s{sF}, s{sF}, 6
s_mul_i32 s{sXs}, s{sE}, 18432
s_add_u32 s{sXs}, s{sXs}, s{sF}
s_mul_i32 s{sD}, s{sD}, 18432
s_add_u32 s{sD}, s{sD}, s{sF}
s_lshl_b32 s{sXm}, s{sW}, 10
s_mov_b32 s{sBud}, {cfg.get('budget', 400000)}
v_mul_u32_u24 v{vTw}, {TS}, v{n}
v_lshl_add_u32 v{vTw}, v{g}, 3, v{vTw}
s_lshl_b32 s{sA}, s{sW}, 7
s_add_u32 s{sA}, s{sA}, {L_T}
v_add_u32 v{vTw}, s{sA}, v{vTw}
v_lshlrev_b32 v14, 2, v{n}
v_add_u32 v14, {L_G}, v14
s_waitcnt lgkmcnt(0)
""")
    def mid():
        for j in range(9): p.e(x_dma(j, vXg), tag="xd")
    load_weights(p, [(S_W0, vG0, sC), (S_W0, vG1, sC)], 3456, vTr, sB, 5, wreg, mid)
    p.e(f"s_cmp_lg_u32 s{sW}, 3\ns_cbranch_scc1 L_a_nogate\nv_lshlrev_b32 v{t0}, 4, v{g}")
    for ks in range(18): p.e(f"buffer_load_dwordx4 {vr(wreg(2, ks), 4)}, v{t0}, {R(S_G)}, 0 offen offset:{64*ks}", tag="gw")
    p.e(f"""
L_a_nogate:
{tl(cfg, 1, t0, t1, True)}
s_mov_b32 s{sXs}, s{sD}
s_mov_b32 s{sI}, 0
s_mov_b32 s{sTog}, {XBUF}
""")
    p.raw(".p2align 6")
    p.e("L_a_loop:")
    p.fence()
    p.e(f"""
s_waitcnt vmcnt(0)
s_barrier
s_add_u32 s{sXs}, s{sXs}, {XBUF}
s_add_u32 s{sXm}, s{sXm}, s{sTog}
""")
    gemm_block(p, 4, wreg, acc, XS, vXr, vXg, lambda ti: True)
    p.e(f"v_add_u32 v{vXr}, s{sTog}, v{vXr}\ns_sub_u32 s{sTog}, 0, s{sTog}")
    def put(ti):
        for tt in range(2):
            a = acc(ti, tt)
            p.e(f"v_cvt_pk_bf16_f32 v{a}, v{a}, v{a+1}\nv_cvt_pk_bf16_f32 v{a+1}, v{a+2}, v{a+3}")
            p.e(f"ds_write_b64 v{vTw}, {vr(a, 2)} offset:{16*TS*tt + 32*ti}", tag="tw")
    put(0); put(1)
    p.e(f"s_cmp_eq_u32 s{sW}, 3\ns_cbranch_scc1 L_a_gate")
    put(2); put(3)
    p.e(f"""
s_branch L_a_nog2
L_a_gate:
ds_write_b32 v14, v{acc(2, 0)}
ds_write_b32 v14, v{acc(2, 1)} offset:64
L_a_nog2:
v_add_u32 v{vTw}, {32*TS}, v{vTw}
v_add_u32 v14, 128, v14
s_add_u32 s{sI}, s{sI}, 1
s_cmp_lt_u32 s{sI}, 6
s_cbranch_scc1 L_a_loop
s_waitcnt vmcnt(0) lgkmcnt(0)
s_barrier
{tl(cfg, 2, t0, t1)}
""")
    p.fence()
    Qr, Kr, Vr, S_, Or, PL, PH, vRow, vA, vTok, vGl = 16, 26, 100, 176, 184, 204, 212, 14, 15, 2, 3
    CA = f2u(18 ** -0.5 * math.log2(math.e))
    p.e(f"""
s_mov_b32 s{sI}, 0
s_mul_i32 s{sC}, s{sW}, 36
s_add_u32 s{sC}, s{sC}, {L_T}
s_mul_i32 s{sD}, s{sRT}, 176
s_mov_b32 s{sE}, {CA:#x}
s_mov_b32 s{sF}, {f2u(-math.log2(math.e)):#x}
L_la_loop:
v_add_u32 v{t0}, s{sI}, v{l}
v_min_u32 v{t0}, 175, v{t0}
v_add_u32 v{vTok}, s{sD}, v{t0}
v_add_u32 v{t0}, 16, v{t0}
v_mul_u32_u24 v{vRow}, {TS}, v{t0}
v_add_u32 v{vRow}, s{sC}, v{vRow}
v_lshlrev_b32 v{t0}, 2, v{t0}
v_add_u32 v{t0}, {L_G}, v{t0}
""")
    p.e(f"ds_read_b32 v{vGl}, v{t0}", tag="gl")
    def rd9(d, a, off, tag):
        for i in range(4): p.e(f"ds_read2_b32 {vr(d + 2*i, 2)}, v{a} offset0:{off//4 + 2*i} offset1:{off//4 + 2*i + 1}", tag=tag)
        p.e(f"ds_read_b32 v{d+8}, v{a} offset:{off + 32}", tag=tag)
    rd9(Qr, vRow, 0, "q")
    koff = lambda j: Kr + 10*(j & 3)
    for j in range(8):
        p.e(f"v_subrev_u32 v{vA}, {2*j*TS}, v{vRow}")
        rd9(koff(j), vA, 144, f"k{j}")
        if j >= 1:
            p.wl(f"k{j-1}")
            for i in range(9): p.e(f"v_dot2_f32_bf16 v{S_+j-1}, v{Qr+i}, v{koff(j-1)+i}, {f'v{S_+j-1}' if i else 0}")
    p.wl("k7")
    for i in range(9): p.e(f"v_dot2_f32_bf16 v{S_+7}, v{Qr+i}, v{koff(7)+i}, {f'v{S_+7}' if i else 0}")
    voff = lambda j: Vr + 10*(j & 3)
    for j in range(2):
        p.e(f"v_subrev_u32 v{vA}, {2*j*TS}, v{vRow}")
        rd9(voff(j), vA, 288, f"v{j}")
    p.e(f"v_mov_b32 v{t1}, {NEG:#x}")
    for j in range(8):
        p.e(f"v_mul_f32 v{S_+j}, s{sE}, v{S_+j}")
    for j in range(1, 8):
        p.e(f"v_cmp_le_u32 vcc, {2*j}, v{vTok}\nv_cndmask_b32 v{S_+j}, v{t1}, v{S_+j}, vcc")
    p.e(f"""
v_max3_f32 v{t0}, v{S_}, v{S_+1}, v{S_+2}
v_max3_f32 v{t0}, v{t0}, v{S_+3}, v{S_+4}
v_max3_f32 v{t0}, v{t0}, v{S_+5}, v{S_+6}
v_max_f32 v{t0}, v{t0}, v{S_+7}
""")
    for j in range(8): p.e(f"v_sub_f32 v{S_+j}, v{S_+j}, v{t0}")
    for j in range(8): p.e(f"v_exp_f32 v{S_+j}, v{S_+j}")
    for j in range(8): p.e(f"v_cvt_pk_bf16_f32 v{PL+j}, v{S_+j}, v{vZ}")
    for j in range(8): p.e(f"v_lshlrev_b32 v{PH+j}, 16, v{PL+j}")
    p.e(f"""
v_add_f32 v{t0}, v{PH}, v{PH+1}
v_add_f32 v{t1}, v{PH+2}, v{PH+3}
v_add_f32 v{t0}, v{t0}, v{PH+4}
v_add_f32 v{t1}, v{t1}, v{PH+5}
v_add_f32 v{t0}, v{t0}, v{PH+6}
v_add_f32 v{t1}, v{t1}, v{PH+7}
v_add_f32 v{t0}, v{t0}, v{t1}
v_mul_f32 v{t1}, s{sF}, v{vGl}
v_exp_f32 v{vGl}, v{t1}
v_exp_f32 v{t1}, -v{t1}
v_add_f32 v{vGl}, 1.0, v{vGl}
v_add_f32 v{t1}, 1.0, v{t1}
v_mul_f32 v{t0}, v{t0}, v{vGl}
v_rcp_f32 v{t0}, v{t0}
v_rcp_f32 v{t1}, v{t1}
""")
    for j in range(8):
        if j + 2 < 8:
            p.e(f"v_subrev_u32 v{vA}, {2*(j+2)*TS}, v{vRow}")
            rd9(voff(j + 2), vA, 288, f"v{j+2}")
        p.wl(f"v{j}")
        for i in range(9):
            for hh, P_ in ((0, PL), (1, PH)):
                o = Or + 2*i + hh
                p.e(f"v_dot2_f32_bf16 v{o}, v{voff(j)+i}, v{P_+j}, {f'v{o}' if j else 0}")
    p.e(f"""
s_or_b32 s{sA}, s{sHG}, s{sW}
s_cmp_lg_u32 s{sA}, 0
s_cbranch_scc1 L_la_noomg
v_lshlrev_b32 v{vA}, 2, v{vTok}
v_min_u32 v{vA}, 8192, v{vA}
s_mov_b32 s{sA}, {WS_OMG}
buffer_store_dword v{t1}, v{vA}, {R(S_WS)}, s{sA} offen{SC}
L_la_noomg:
""")
    for i in range(18): p.e(f"v_mul_f32 v{Or+i}, v{Or+i}, v{t0}")
    for i in range(9): p.e(f"v_cvt_pk_bf16_f32 v{Or+i}, v{Or+2*i}, v{Or+2*i+1}")
    for i in range(4): p.e(f"ds_write2_b32 v{vRow}, v{Or+2*i}, v{Or+2*i+1} offset0:{2*i} offset1:{2*i+1}", tag="ow")
    p.e(f"ds_write_b32 v{vRow}, v{Or+8} offset:32", tag="ow")
    p.e(f"""
s_add_u32 s{sI}, s{sI}, 64
s_cmp_lt_u32 s{sI}, 192
s_cbranch_scc1 L_la_loop
s_waitcnt lgkmcnt(0)
s_barrier
v_mul_u32_u24 v{vRow}, {TS}, v{n}
v_lshl_add_u32 v{vRow}, v{g}, 4, v{vRow}
s_add_u32 s{sA}, s{sW}, 1
s_mul_i32 s{sA}, s{sA}, {16*TS}
s_add_u32 s{sA}, s{sA}, {L_T}
v_add_u32 v{vRow}, s{sA}, v{vRow}
s_mul_i32 s{sD}, s{sRT}, 11
s_add_u32 s{sD}, s{sD}, s{sW}
s_mov_b32 s{sI}, s{sW}
s_mul_i32 s{sE}, s{sHG}, 2304
s_add_u32 s{sE}, s{sE}, {WS_OA}
L_oa_loop:
s_cmp_ge_u32 s{sD}, 128
s_cbranch_scc1 L_oa_done
""")
    p.fence()
    for x in range(3): p.e(f"ds_read2_b64 {vr(16 + 4*x, 4)}, v{vRow} offset0:{8*x} offset1:{8*x+1}", tag=f"o{x}")
    p.e(f"s_mul_i32 s{sA}, s{sD}, 18432\ns_add_u32 s{sA}, s{sA}, s{sE}")
    for x in range(3):
        p.wl(f"o{x}")
        if x == 2: p.e("s_mov_b64 exec, 0xffff")
        p.e(f"buffer_store_dwordx4 {vr(16 + 4*x, 4)}, v{vL16}, {R(S_WS)}, s{sA} offen offset:{1024*x}{SC}", tag="st")
    p.e(f"""
s_mov_b64 exec, -1
v_add_u32 v{vRow}, {64*TS}, v{vRow}
s_add_u32 s{sD}, s{sD}, 4
s_add_u32 s{sI}, s{sI}, 4
s_cmp_lt_u32 s{sI}, 11
s_cbranch_scc1 L_oa_loop
L_oa_done:
s_waitcnt vmcnt(0)
s_barrier
s_cmp_lg_u32 s{sW}, 0
s_cbranch_scc1 L_a_sig
v_mov_b32 v{t0}, 1
s_mov_b64 exec, 1
buffer_atomic_add v{t0}, v{vZ}, {R(S_DBG)}, 0 offen offset:4 sc1
s_mov_b64 exec, -1
L_a_sig:
{tl(cfg, 3, t0, t1)}
""")
    p.fence(); p.vmq = []; p.ldsq = []
    vD0, vD1, vD2, vTrB, vTrA, vOl, vRw, vOut, vFl, vOm = 2, 3, 4, 5, 6, 7, 14, 15, 9, 10
    AB, AA, ST, WA, WBB = 16, 28, 40, 68, 128
    for d, vd in enumerate((vD0, vD1, vD2)):
        p.e(f"""
v_add_u32 v{t0}, {64*d}, v{l}
v_mul_u32_u24 v{t1}, 171, v{t0}
v_lshrrev_b32 v{t1}, 10, v{t1}
v_mul_u32_u24 v{t1}, {1152 - 96}, v{t1}
v_lshl_add_u32 v{vd}, v{t0}, 4, v{t1}
""")
    tr_addr(p, vTrB, n, g, t0, 96, 4)
    tr_addr(p, vTrA, n, g, t0, 96, 8)
    sRing, sWb, sWa, sOb, sOA, sOut, sOm, sFO, sRed = range(50, 59)
    p.e(f"""
s_lshl_b32 s{sRing}, s{sW}, 15
v_add_u32 v{vTrB}, s{sRing}, v{vTrB}
v_add_u32 v{vTrA}, s{sRing}, v{vTrA}
v_add_u32 v{vOl}, s{sRing}, v{vL16}
s_mul_i32 s{sA}, s{sCG}, 96
s_mul_i32 s{sWb}, s{sW}, {1024*1152}
s_add_u32 s{sWb}, s{sWb}, s{sA}
s_mul_i32 s{sWa}, s{sW}, {160*1152}
s_add_u32 s{sWa}, s{sWa}, s{sA}
v_mul_u32_u24 v{vOut}, 1152, v{n}
v_lshl_add_u32 v{vOut}, v{g}, 3, v{vOut}
s_lshl_b32 s{sB}, s{sW}, 5
s_add_u32 s{sA}, s{sA}, s{sB}
s_mul_i32 s{sOut}, s{sTM}, 18432
s_add_u32 s{sOA}, s{sOut}, {WS_OA}
s_add_u32 s{sOut}, s{sOut}, s{sA}
s_lshl_b32 s{sOb}, s{sTM}, 17
s_add_u32 s{sOb}, s{sOb}, s{sRing}
s_add_u32 s{sOb}, s{sOb}, {WS_O}
s_lshl_b32 s{sOm}, s{sTM}, 6
s_add_u32 s{sOm}, s{sOm}, {WS_OMG}
s_lshl_b32 s{sFO}, s{sTM}, 8
s_add_u32 s{sFO}, s{sFO}, {F_O}
v_lshlrev_b32 v{vFl}, 2, v{l}
v_lshlrev_b32 v{vOm}, 2, v{n}
v_add_u32 v{vRw}, 131072, v{vL16}
""")
    items = [('A', k) for k in range(5)] + [('B', k) for k in range(32)]
    nslot = 10; D = nslot - 1
    def issue(i):
        kind, k = items[i]
        p.e(f"s_add_u32 s{sA}, s{sWa if kind == 'A' else sWb}, {32*k*1152}")
        for d, vd in enumerate((vD0, vD1, vD2)):
            p.e(f"s_add_u32 m0, s{sRing}, {3072*(i % nslot) + 1024*d}")
            p.e(f"buffer_load_dwordx4 v{vd}, {R(S_W1 if kind == 'A' else S_W2)}, s{sA} offen lds", tag=f"d{i}")
    for i in range(D): issue(i)
    for i, (kind, k) in enumerate(items):
        p.wv(f"d{i}")
        for ct in range(3):
            for q in range(2):
                if kind == 'A': p.e(f"ds_read_b64_tr_b16 {vr(WA + 12*k + 4*ct + 2*q, 2)}, v{vTrA} offset:{3072*(i % nslot) + 96*4*q + 32*ct}", tag="tr")
                else: p.e(f"ds_read_b64_tr_b16 {vr(WBB + 12*k + 4*ct + 2*q, 2)}, v{vTrB} offset:{3072*(i % nslot) + 96*16*q + 32*ct}", tag="tr")
        p.e("s_waitcnt lgkmcnt(0)")
        if i + D < len(items): issue(i + D)
    p.e(tl(cfg, 4, t0, t1))
    poll(p, "L_w_init", S_DBG, vZ, 0, 0, t0, f"v_readfirstlane_b32 s{sA}, v{t0}\ns_and_b32 s{sA}, s{sA}, 0xff\ns_cmp_eq_u32 s{sA}, 32")
    poll(p, "L_w_adone", S_DBG, vZ, 0, 4, t0, f"v_readfirstlane_b32 s{sA}, v{t0}\ns_cmp_eq_u32 s{sA}, 96")
    p.e(f"s_mov_b32 s{sI}, 0\ns_mul_i32 s{sWa}, s{sW}, 5\ns_mul_i32 s{sRed}, s{sW}, 3072\nv_add_u32 v{vD0}, s{sRed}, v{vRw}\ns_lshl_b32 s{sA}, s{sW}, 10\nv_add_u32 v{vRw}, s{sA}, v{vRw}")
    p.e("L_w_loop:")
    p.fence()
    for k in range(5):
        p.e(f"s_add_u32 s{sA}, s{sWa}, {k}\ns_min_u32 s{sA}, s{sA}, 17\ns_lshl_b32 s{sA}, s{sA}, 10\ns_add_u32 s{sA}, s{sA}, s{sOA}")
        p.e(f"buffer_load_dwordx4 {vr(ST + 4*k, 4)}, v{vL16}, {R(S_WS)}, s{sA} offen sc1", tag=f"a{k}")
    p.e(f"buffer_load_dword v{t1}, v{vOm}, {R(S_WS)}, s{sOm} offen sc1", tag="om")
    for k in range(5):
        p.wv(f"a{k}")
        for ct in range(3): p.e(f"{MF} {vr(AA + 4*ct, 4)}, {vr(WA + 12*k + 4*ct, 4)}, {vr(ST + 4*k, 4)}, {vr(AA + 4*ct, 4) if k else 0}")
    poll(p, "L_w_poll", S_WS, vFl, f"s{sFO}", 0, t0, f"v_cmp_ge_u32 vcc, s{sI}, v{t0}\ns_nop 1\ns_cmp_eq_u64 vcc, 0", sleep=cfg.get('slw', 2))
    for k in range(32):
        if k % 4 == 0: p.e(f"s_add_u32 s{sA}, s{sOb}, {1024*k}\ns_add_u32 m0, s{sRing}, {1024*k}")
        p.e(f"buffer_load_dwordx4 v{vL16}, {R(S_WS)}, s{sA} offen offset:{1024*(k % 4)} sc1 lds", tag=f"o{k}")
    def rdo(k):
        p.wv(f"o{k}")
        p.e(f"ds_read_b128 {vr(ST + 4*(k % 4), 4)}, v{vOl} offset:{1024*k}", tag=f"r{k}")
    rdo(0); rdo(1)
    for k in range(32):
        if k + 2 < 32: rdo(k + 2)
        p.wl(f"r{k}")
        for ct in range(3): p.e(f"{MF} {vr(AB + 4*ct, 4)}, {vr(WBB + 12*k + 4*ct, 4)}, {vr(ST + 4*(k % 4), 4)}, {vr(AB + 4*ct, 4) if k else 0}")
    for ct in range(3):
        for r in range(4): p.e(f"v_fma_f32 v{AB + 4*ct + r}, v{AB + 4*ct + r}, v{t1}, v{AA + 4*ct + r}")
        p.e(f"ds_write_b128 v{vD0}, {vr(AB + 4*ct, 4)} offset:{1024*ct}", tag="rw")
    p.e(f"""
s_waitcnt lgkmcnt(0)
s_barrier
s_cmp_eq_u32 s{sW}, 3
s_cbranch_scc1 L_w_next
""")
    for x in range(4): p.e(f"ds_read_b128 {vr(ST + 4*x, 4)}, v{vRw} offset:{3072*x}", tag="rr")
    p.e(f"""
s_waitcnt lgkmcnt(0)
v_pk_add_f32 {vr(ST, 2)}, {vr(ST, 2)}, {vr(ST+4, 2)}
v_pk_add_f32 {vr(ST+2, 2)}, {vr(ST+2, 2)}, {vr(ST+6, 2)}
v_pk_add_f32 {vr(ST+8, 2)}, {vr(ST+8, 2)}, {vr(ST+12, 2)}
v_pk_add_f32 {vr(ST+10, 2)}, {vr(ST+10, 2)}, {vr(ST+14, 2)}
v_pk_add_f32 {vr(ST, 2)}, {vr(ST, 2)}, {vr(ST+8, 2)}
v_pk_add_f32 {vr(ST+2, 2)}, {vr(ST+2, 2)}, {vr(ST+10, 2)}
v_cvt_pk_bf16_f32 v{ST+20}, v{ST}, v{ST+1}
v_cvt_pk_bf16_f32 v{ST+21}, v{ST+2}, v{ST+3}
buffer_store_dwordx2 {vr(ST+20, 2)}, v{vOut}, {R(S_OUT)}, s{sOut} offen{cfg.get('outfl', '')}
L_w_next:
v_xor_b32 v{vD0}, 16384, v{vD0}
v_xor_b32 v{vRw}, 16384, v{vRw}
s_add_u32 s{sOut}, s{sOut}, {8*18432}
s_add_u32 s{sOA}, s{sOA}, {8*18432}
s_add_u32 s{sOb}, s{sOb}, {8*131072}
s_add_u32 s{sOm}, s{sOm}, 512
s_add_u32 s{sI}, s{sI}, 1
s_cmp_lt_u32 s{sI}, 16
s_cbranch_scc1 L_w_loop
s_waitcnt vmcnt(0)
{gate(cfg, 'gate_end', 'w')}
{tl(cfg, 5, t0, t1)}
s_endpgm
""")
    return p.text()
```

```python
import re

def regs_of(tok):
    tok = tok.strip()
    tok = re.sub(r'^-', '', tok)
    m = re.match(r'^(?:abs\()?([vas])(\d+)\)?$', tok)
    if m: return [(m.group(1), int(m.group(2)))]
    m = re.match(r'^([vas])\[(\d+):(\d+)\]$', tok)
    if m: return [(m.group(1), i) for i in range(int(m.group(2)), int(m.group(3)) + 1)]
    if tok == 'vcc': return [('s', 'vcc')]
    if tok == 'exec': return [('s', 'exec')]
    if tok == 'm0': return [('s', 'm0')]
    return []

TRANS = ('v_exp_', 'v_log_', 'v_rcp_', 'v_rsq_', 'v_sqrt_', 'v_sin_', 'v_cos_')

class Ins:
    def __init__(s, text):
        s.text = text
        t = text.split(';')[0].strip()
        parts = t.split(None, 1)
        s.op = parts[0]
        rest = parts[1] if len(parts) > 1 else ''
        ops = [o.strip() for o in rest.split(',')] if rest else []
        flat = []
        s.mods = ''
        depth_fix = []
        i = 0
        m = re.search(r'\s(quad_perm|row_|op_sel|neg_lo|neg_hi|bitop3|offset|offen|abid|cbsz|sc0|sc1|nt\b|lds\b|dst_sel|src0_sel|clamp|mul:|div:)', ' ' + rest)
        if m:
            s.mods = rest[m.start():]
            rest = rest[:m.start()]
        s.ops = [o.strip() for o in rest.split(',')] if rest.strip() else []
        op = s.op
        s.kind = 'salu'
        R, W = [], []
        o = [regs_of(x) for x in s.ops]
        s.passes = 0
        if op.startswith('v_smfmac'):
            s.kind = 'mfma'; W = o[0]; s.C = o[0]; s.AB = o[1] + o[2] + o[3]; R = s.C + s.AB
            s.passes = 8 if '32x32' in op else 4
        elif op.startswith('v_mfma'):
            s.kind = 'mfma'; W = o[0]; s.C = o[3]; s.AB = o[1] + o[2]; R = s.C + s.AB
            s.passes = 8 if '32x32' in op else 4
        elif op.startswith('v_'):
            s.kind = 'valu'
            if 'swap' in op: W = o[0] + o[1]; R = o[0] + o[1]
            elif op.startswith('v_nop'): pass
            else:
                W = o[0]; R = sum(o[1:], [])
                if op.startswith(('v_add_co', 'v_addc_co', 'v_sub_co')): W = o[0] + o[1]; R = sum(o[2:], [])
                if op.startswith(('v_fmac', 'v_writelane', 'v_dot2c')) or 'bank_mask' in s.mods and 'bank_mask:0xf' not in s.mods or 'UNUSED_PRESERVE' in s.mods: R = R + o[0]
        elif op.startswith('ds_'):
            s.kind = 'ds'
            if op.startswith(('ds_read', 'ds_bpermute', 'ds_swizzle')): W = o[0]; R = sum(o[1:], [])
            else: R = sum(o, [])
        elif op.startswith(('buffer_', 'global_')):
            s.kind = 'vmem'
            if 'load' in op and ' lds' not in ' ' + s.mods and 'load_lds' not in op: W = o[0]; R = sum(o[1:], [])
            elif 'atomic' in op and 'sc0' in s.mods:
                W = o[0]; R = sum(o, []) if op.startswith('buffer') else sum(o[1:], [])
            else: R = sum(o, [])
            if ' lds' in ' ' + s.mods or 'load_lds' in op: R = R + [('s', 'm0')]
        elif op.startswith(('s_load', 's_memtime', 's_memrealtime', 's_buffer_load')):
            s.kind = 'smem'; W = o[0]; R = sum(o[1:], [])
        elif op.startswith(('s_cmp', 's_cbranch', 's_branch', 's_waitcnt', 's_nop', 's_barrier', 's_endpgm', 's_sleep', 's_setprio', 's_bitcmp')):
            R = sum(o, [])
        else:
            W = o[0] if o else []; R = sum(o[1:], [])
        s.R, s.W = set(R), set(W)
        s.dpp = s.kind == 'valu' and ('quad_perm' in s.mods or 'row_' in s.mods)
        s.trans = op.startswith(TRANS)
        s.wide_store = s.kind == 'vmem' and 'store' in op and ('x3' in op or 'x4' in op)

_INS = {}
def sched(ops, pred, keys, wave):
    import heapq
    key = [keys.get(f"{o['name']}@{wave}", keys.get(o['name'], None)) for o in ops]
    last = -1.0
    for i in range(len(ops)):
        if key[i] is None: key[i] = i if not keys else last + 1e-3
        last = key[i]
    succ = [[] for _ in ops]; cnt = [len(x) for x in pred]
    for j, x in enumerate(pred):
        for i in x: succ[i].append(j)
    ready = [(key[i], i) for i in range(len(ops)) if not cnt[i]]; heapq.heapify(ready); order = []
    while ready:
        _, i = heapq.heappop(ready); order.append(i)
        for j in succ[i]:
            cnt[j] -= 1
            if not cnt[j]: heapq.heappush(ready, (key[j], j))
    return order
class Prog:
    def __init__(p, check=True):
        p.lines = []
        p.hist = []
        p.now = 0
        p.last_mfma = None
        p.ldsq = []
        p.vmq = []
        p.check = check
        p.nops_added = 0
        p.ool = []
        p.rec = None
        p.auto = False
    def raw(p, text): p.lines.append(text)
    def label(p, name, reset=True):
        p.lines.append(name + ':')
    def comment(p, t): p.lines.append('; ' + t)
    def need(p, ins):
        t = 0
        win = p.hist[-14:]
        for hi in range(len(win)):
            h = win[hi][0]
            d = 0
            hw = h.W
            if h.kind == 'valu':
                vw = {r for r in hw if r[0] in 'va'}; sw = {r for r in hw if r[0] == 's'}
                if ins.kind == 'mfma' and vw & ins.R: d = max(d, 2)
                if ins.kind == 'valu' and (ins.dpp or 'permlane' in ins.op) and vw & ins.R: d = max(d, 2)
                if ins.op.startswith(('v_readfirstlane', 'v_readlane')) and vw & ins.R: d = max(d, 1)
                if h.trans and ins.kind == 'valu' and not ins.trans and vw & ins.R: d = max(d, 1)
                if h.trans and ins.kind in ('ds', 'vmem') and vw & ins.R: d = max(d, 1)
                if sw & ins.R:
                    if ins.kind == 'valu': d = max(d, 4 if 'lane' in ins.op else 2)
                    if ins.kind == 'vmem': d = max(d, 5)
                    if ins.kind in ('salu', 'smem'): d = max(d, 1)
                if ('s', 'exec') in sw and ins.kind in ('mfma', 'valu'): d = max(d, 5)
                if h.op.startswith('v_dot'):
                    if ins.op == h.op:
                        if vw & set(regs_of(ins.ops[1]) + regs_of(ins.ops[2])): d = max(d, 3)
                    elif vw & (ins.R | ins.W): d = max(d, 3)
                if 'dst_sel' in h.mods and ins.kind == 'valu' and vw & (ins.R | ins.W): d = max(d, 1)
            elif h.kind == 'mfma':
                big = {4: 8, 8: 12}[h.passes]; ov = {4: 6, 8: 10}[h.passes]; war = {4: 3, 8: 7}[h.passes]
                if ins.kind == 'mfma':
                    if hw & set(ins.AB): d = max(d, big)
                    if hw & set(ins.C):
                        if not (set(ins.C) == hw and ins.op == h.op): d = max(d, ov)
                    elif hw & ins.W: d = max(d, ov)
                elif ins.kind in ('valu', 'ds', 'vmem'):
                    if hw & (ins.R | ins.W): d = max(d, big)
                    if ins.kind == 'valu' and set(h.C) & ins.W: d = max(d, war)
            elif h.kind == 'vmem' and h.wide_store:
                if regs_data(h) & ins.W: d = max(d, 2)
            elif h.kind == 'salu':
                if ('s', 'm0') in hw and ('s', 'm0') in ins.R and ins.kind in ('vmem', 'ds'): d = max(d, 1)
            if d:
                now = 0; lm = None; lv = 0
                for x, _ in win[hi:]:
                    if x.kind == 'mfma':
                        if lm is not None: now = max(now, lm)
                        now = max(now, lv)
                        lm = now + x.passes; lv = now + (3 if 'smfmac' in x.op else 2)
                    elif x.kind == 'valu':
                        now = max(now, lv)
                        if x.trans and x is not h: lv = now + 2
                    now += (int(x.ops[0]) + 1) if x.op == 's_nop' else 1
                nat = now
                if ins.kind == 'mfma' and lm is not None: nat = max(nat, lm)
                if ins.kind in ('mfma', 'valu'): nat = max(nat, lv)
                if nat < d + 1: t = max(t, d + 1 - now)
        return t
    def record(p):
        p.rec = []; p.pre = []
    def flush(p, keys, extra, wave, cache=None, ck=None):
        ops, p.rec = p.rec, None
        seen = {}
        hit = cache is not None and ck in cache
        if hit: ops, pred = cache[ck]
        for i, o in enumerate([] if hit else ops):
            ins = o['ins'] = Ins(o['text'])
            nm = re.sub(r' offset\d?:\d+', '', o['text'])
            nm = re.sub(r'_w\dr?[fs]$', '', nm).replace(' sc0', '').replace(' sc1', '')
            if ins.op.startswith('v_smfmac'): nm = f"S {ins.ops[0]} {ins.ops[1]} {'w' if o['info'] == 's3' else ''}"
            seen[nm] = seen.get(nm, 0) + 1
            o['name'] = f"{nm}#{seen[nm]}"
            R, W = set(ins.R), set(ins.W)
            if ins.op.startswith('s_cbranch_vcc'): R.add(('s', 'vcc'))
            if ins.op.startswith('s_cbranch_scc'): R.add('scc')
            if ins.op.startswith(('s_and', 's_add', 's_cmp', 's_or')): W.add('scc')
            if o['tag']: W.add('m:' + o['tag'] + str(i))
            for k, tg in o['pre']: R |= {'m:' + x['tag'] + str(j) for j, x in enumerate(ops[:i]) if x['tag'] in tg}
            r2, w2 = extra(o)
            o['R'], o['W'] = R | r2, W | w2
        p.names = [o['name'] for o in ops]
        if not hit: pred = [set() for _ in ops]
        for j, b in enumerate([] if hit else ops):
            sb = b['ins'].op.startswith('v_smfmac')
            for i in range(j):
                a = ops[i]
                c = (a['W'] & (b['R'] | b['W'])) | (a['R'] & b['W'])
                if c and sb and a['ins'].op == b['ins'].op and a['ins'].W == b['ins'].W: c = c - b['ins'].W
                if c: pred[j].add(i)
        if cache is not None: cache[ck] = (ops, pred)
        order = sched(ops, pred, keys, wave)
        p.order = [ops[i]['name'] for i in order]
        p.auto = True
        for i in order:
            o = ops[i]
            for k, tg in o['pre']: (p.wl if k == 'l' else p.wv)(tg)
            if o['text'].startswith('v_wait'): p.wv(['K', 'V']); continue
            p.e(o['text'], o['tag'])
            for x in o['post']: p.e(x)
        p.auto = False
    def e(p, text, tag=None):
        for line in text.strip().split('\n'):
            line = line.strip()
            if not line: continue
            if p.rec is not None:
                if line.startswith((';', 's_nop')): continue
                if line.endswith(':') or line.startswith('s_memtime'): p.rec[-1]['post'].append(line); continue
                p.rec.append(dict(text=line, tag=tag if line.startswith(('ds_', 'buffer_')) else None, pre=p.pre if line == 's_barrier' else [], post=[], info=getattr(p, 'info', None)))
                p.pre = []
                continue
            if line.endswith(':') or line.startswith((';', '.')): p.lines.append(line); continue
            p._e(line, tag)
    def _e(p, text, tag):
        ins = _INS.get(text)
        if ins is None: ins = _INS[text] = Ins(text)
        if p.auto:
            for q, cn in ((p.ldsq, 'lgkmcnt'), (p.vmq, 'vmcnt')):
                hit = [i for i, (tg, regs) in enumerate(q) if regs & (ins.R | ins.W) and not (tg or '').startswith('!')]
                if hit: p._e(f's_waitcnt {cn}({min(len(q) - 1 - max(hit), 15 if cn[0] == "l" else 63)})', None)
        if p.check:
            n = p.need(ins)
            p.nops_added += n
            while n > 0:
                k = min(n, 16); p.lines.append(f's_nop {k-1}'); p.hist.append((Ins(f's_nop {k-1}'), 0)); n -= k
            for q, nm in ((p.ldsq, 'lds'), (p.vmq, 'vm')):
                for tg, regs in q:
                    if regs & (ins.R | ins.W) and not (tg or '').startswith('!'):
                        raise Exception(f'{nm} result {tg} {sorted(regs & (ins.R|ins.W))} not waited before: {text}')
        if ins.op == 's_waitcnt':
            m = re.search(r'vmcnt\((\d+)\)', text)
            if m: k = int(m.group(1)); p.vmq = p.vmq[len(p.vmq) - k:] if k else []
            m = re.search(r'lgkmcnt\((\d+)\)', text)
            if m: k = int(m.group(1)); p.ldsq = p.ldsq[len(p.ldsq) - k:] if k else []
        if ins.kind == 'ds' : p.ldsq.append((tag, ins.W))
        if ins.kind == 'smem' and not ins.op.startswith('s_mem'): p.ldsq.append(('smem', ins.W))
        if ins.kind == 'vmem': p.vmq.append((tag, ins.W))
        p.lines.append(text)
        p.hist.append((ins, p.now))
        if ins.kind == 'mfma': p.last_mfma = (p.now, ins.passes)
        if ins.op == 's_nop': p.now += int(ins.ops[0]) + 1
        else: p.now += 1
    def _cnt(p, q, tags):
        if isinstance(tags, str): tags = [tags]
        idx = [i for i, (tg, _) in enumerate(q) if tg in tags]
        if not idx: return None
        return len(q) - 1 - max(idx)
    def wl(p, tags):
        if p.rec is not None: p.pre.append(('l', [tags] if isinstance(tags, str) else tags)); return
        n = p._cnt(p.ldsq, tags)
        if n is not None:
            assert not any(tg == 'smem' for tg, _ in p.ldsq)
            p.e(f's_waitcnt lgkmcnt({min(n, 15)})')
    def wv(p, tags):
        if p.rec is not None: p.pre.append(('v', [tags] if isinstance(tags, str) else tags)); return
        n = p._cnt(p.vmq, tags)
        if n is not None: p.e(f's_waitcnt vmcnt({min(n, 63)})')
    def fence(p, n=12):
        p.hist = []; p.last_mfma = None
    def text(p): return '\n'.join(p.lines + p.ool) + '\n'

def regs_data(ins):
    o = ins.ops[0] if ins.op.startswith('buffer') else ins.ops[1]
    return set(regs_of(o))

def vr(base, n=1):
    k, b = ('v', base) if base < 256 else ('a', base - 256)
    if n == 1: return f'{k}{b}'
    assert (base < 256) == (base + n - 1 < 256)
    return f'{k}[{b}:{b+n-1}]'
def sr(b, n=1): return f's{b}' if n == 1 else f's[{b}:{b+n-1}]'
```

```python
from asmgen import *
import math, struct

WS_X    = 0x0
WS_MEM  = 0x48000
WS_FLG  = 0x50000
WS_SYN  = WS_MEM + 9216
WS_STMP = 0x60000
WS_TL   = 0x70000
WS_MH   = 0x800000
MHS = 10240
WS_KVX  = 0x1000000
WS_BYTES = 0x10000000
L_DUM = 0; L_SEL = 256; L_MEM = 1024; L_Q = 10240; L_K = 12288; L_XS = 14336; L_W = [16384, 16384 + 40960, 16384 + 81920, 16384 + 81920 + 32768]
S_WS, S_WQ, S_WK, S_WV, S_WO, S_M0, S_DBG = 4, 8, 12, 16, 20, 24, 28
sH, sW, sS, sT, sTn, sKV, sKVn, sPF, sKM, sBud = 32, 33, 34, 35, 36, 37, 38, 39, 40, 41
sX = [42, 43, 44, 45, 46]
sMEMo, sMEM1, sMEM8 = 47, 48, 49
sSC = 50
sONE = 52
sA, sB, sC, sD = 54, 55, 56, 57
sRU = 3
sEv, sFL = 100, 101
sSYw, sSYr = 33, 58
sPar = 38
sSP0 = 56; sLIM = 2; sM24 = 55
sHALF = 0
sST = 60
vIdx, vL16, vW, vL8, vTR, vXr, vTmp, vOr, vST, vRD, vMS, vMask = range(12)
KV = 12; VV = 52; AQ = 20; AK = 28; AV = 36; WST = 44; AS = [60, 64, 68, 72, 76]; SEL = 76
WBASE = 80
SCALE = struct.unpack('<I', struct.pack('<f', 128 ** -0.5 * math.log2(math.e)))[0]

def tile_order(w):
    return list(range(9))

KSO = ((0, 2, 1, 3), (1, 3, 0, 2), (2, 0, 3, 1), (3, 1, 2, 0))
class Alloc:
    ORD = 0
    LK = (1, 2, 3)
    def __init__(s, w):
        s.w = w
        s.ndt = 5 if w < 2 else 4
        s.lpairs = [('q', 0), ('q', 3), ('q', 4), ('k', 5), ('v', 8)]
        o = [(0, 0), (1, 0), (0, 1), (0, 2), (0, 3), (1, 1), (1, 2), (1, 3), (2, 0), (2, 1), (2, 2), (2, 3), (3, 0), (3, 1), (3, 2), (3, 3)]
        if Alloc.ORD & 1: o[2:8] = [(0, 1), (1, 1), (0, 2), (1, 2), (0, 3), (1, 3)]
        o = [x for x in o if x[1] == 0] + [x for x in o if x[1]]
        if s.ndt == 5: o += [(4, 0), (4, 1), (4, 2), (4, 3)]
        s.wo_order = o
        s.wo_l = [(k, j) for k, j in o if (k in Alloc.LK and KSO[w][j] < 2) or k == 4]
        s.reg = {}; s.lds = {}
        r = WBASE; off = 0
        for m, sl in s.lpairs:
            s.lds[(m, sl, 0)] = off; s.lds[(m, sl, 1)] = off + 2048; off += 4096
        for k, j in s.wo_l:
            ks = KSO[w][j]
            s.lds[('o', k, j)] = off + 4096 * (Alloc.LK.index(k) if k < 4 else 3 + (ks >> 1)) + 2048 * (ks & 1)
        for m in 'qkv':
            for sl in range(9):
                for T in range(2):
                    if (m, sl, T) not in s.lds: s.reg[(m, sl, T)] = r; r += 8
        for kj in o:
            if ('o',) + kj not in s.lds: s.reg[('o',) + kj] = r; r += 8
        assert r == 512, r

def setup_common(p):
    p.e(f"""
s_load_dwordx2 s[{S_M0}:{S_M0+1}], s[0:1], 32
s_load_dwordx2 s[{S_WQ}:{S_WQ+1}], s[0:1], 40
s_load_dwordx2 s[{S_WK}:{S_WK+1}], s[0:1], 48
s_load_dwordx2 s[{S_WV}:{S_WV+1}], s[0:1], 56
s_load_dwordx2 s[{S_WO}:{S_WO+1}], s[0:1], 64
s_load_dwordx2 s[{S_DBG}:{S_DBG+1}], s[0:1], 96
s_load_dwordx2 s[{S_WS}:{S_WS+1}], s[0:1], 104
""")
    for b, n in ((S_M0, 9216), (S_WQ, 4718592), (S_WK, 4718592), (S_WV, 4718592), (S_WO, 4718592), (S_DBG, 256), (S_WS, WS_BYTES)):
        p.e(f"s_mov_b32 s{b+2}, {n}\ns_mov_b32 s{b+3}, 0x20000")

def tl(cfg, idx, va, vb, start=False):
    if not cfg.get('tl'): return ""
    t = f"s_waitcnt lgkmcnt(0)\ns_memrealtime s[92:93]\ns_waitcnt lgkmcnt(0)\nv_mov_b32 v{va}, s92\nv_mov_b32 v{vb}, 0\nbuffer_store_dword v{va}, v{vb}, s[4:7], s95 offen offset:{4*idx}\n"
    t += f"s_memtime s[92:93]\ns_waitcnt lgkmcnt(0)\nv_mov_b32 v{va}, s92\nbuffer_store_dword v{va}, v{vb}, s[4:7], s95 offen offset:{32+4*idx}\n"
    if start: t += f"v_mov_b32 v{va}, s94\nbuffer_store_dword v{va}, v{vb}, s[4:7], s95 offen\n"
    return t + "s_waitcnt vmcnt(0)\n"

def gate(cfg, key, nm):
    if not cfg.get(key): return ""
    return f"L_gate_{nm}:\ns_memrealtime s[92:93]\ns_waitcnt lgkmcnt(0)\ns_sub_u32 s92, s92, s94\ns_cmp_lt_u32 s92, {cfg[key]}\ns_cbranch_scc1 L_gate_{nm}\n"

def kvwait(nm):
    t = f"""
L_kvw_{nm}:
s_load_dwordx16 s[64:79], s[{S_WS}:{S_WS+1}], s{sFL} glc
s_sub_u32 s{sBud}, s{sBud}, 1
s_cbranch_scc1 L_exit
s_waitcnt lgkmcnt(0)
"""
    for i in range(65, 80): t += f"s_min_u32 s64, s64, s{i}\n"
    return t + f"""s_lshl_b32 s{sEv}, s64, 2
s_sub_u32 s{sEv}, s{sEv}, 1
s_cmp_ge_i32 s{sS}, s{sEv}
s_cbranch_scc1 L_kvw_{nm}
"""

def coop_src(vA, vB, n, g, t0, rowexpr, shift_or_mul):
    return f"""
{rowexpr}
{shift_or_mul}
v_lshlrev_b32 v{vA}, 1, v{g}
v_xor_b32 v{vA}, v{vA}, v{n}
v_lshl_add_u32 v{vA}, v{vA}, 4, v{t0}
v_xor_b32 v{vB}, 128, v{vA}
"""
def coop_tr(v, ch0, lo, hi, n, g, t0, t1):
    return f"""
v_and_b32 v{t0}, 1, v{g}
v_lshrrev_b32 v{t1}, 2, v{n}
v_lshl_add_u32 v{t0}, v{t0}, 2, v{t1}
v_lshlrev_b32 v{t0}, 1, v{t0}
v_bfe_u32 v{v}, v{n}, 1, 1
v_add_u32 v{v}, {ch0}, v{v}
v_xor_b32 v{v}, v{v}, v{t0}
v_lshlrev_b32 v{v}, 4, v{v}
v_lshl_add_u32 v{v}, v{t1}, 8, v{v}
v_and_b32 v{t0}, 1, v{g}
v_lshl_add_u32 v{v}, v{t0}, 11, v{v}
v_and_b32 v{t0}, 1, v{n}
v_lshl_add_u32 v{v}, v{t0}, 3, v{v}
v_lshrrev_b32 v{t0}, 1, v{g}
v_mul_u32_u24 v{t0}, {hi - lo}, v{t0}
v_add_u32 v{t0}, {lo}, v{t0}
v_add_u32 v{v}, v{v}, v{t0}
"""

def prologue(p, w, red, cfg):
    al = Alloc(w)
    nm = f"w{w}{'r' if red else ''}"
    l, n, g, t0, t1, t2 = 20, 21, 22, 23, 24, 25
    vG1, vG1b, vG2, vG3, vR3, vDb = 26, 27, 28, 29, 31, 32
    vRq = [[44, 45], [46, 47]]; vRo = [48, 49]; TMP = AS[0]; M0R = 40
    p.e(f"""
v_and_b32 v{l}, 63, v0
v_lshlrev_b32 v{vL16}, 4, v{l}
v_add_u32 v{vW}, {L_W[w]}, v{vL16}
""")
    NE = cfg.get('nh', 6)
    if not cfg.get('noload'): p.vmq = [(f"d{i}", set()) for i in range(NE) for _ in range(4)]
    p.e(f"""
; wo rows 16*g1+g0, chunk n ^ 4g
v_and_b32 v{t0}, 1, v{g}
v_lshl_add_u32 v{t0}, v{t1}, 4, v{t0}
v_mul_u32_u24 v{t0}, 1152, v{t0}
v_lshlrev_b32 v{vG2}, 2, v{g}
v_xor_b32 v{vG2}, v{vG2}, v{n}
v_lshl_add_u32 v{vG2}, v{vG2}, 4, v{t0}
s_mul_i32 s{sB}, s{sH}, 147456
""")
    if w == 0:
        p.e(f"""
v_lshrrev_b32 v{t0}, 2, v{n}
v_and_b32 v{t1}, 1, v{n}
v_lshl_add_u32 v{t0}, v{t0}, 1, v{t1}
v_mul_u32_u24 v{t0}, 1152, v{t0}
v_lshl_add_u32 v{t0}, v{g}, 5, v{t0}
v_bfe_u32 v{t1}, v{n}, 1, 1
v_lshl_add_u32 v{t0}, v{t1}, 4, v{t0}
s_lshl_b32 s{sC}, s{sH}, 7
""")
    p.e("s_waitcnt lgkmcnt(0)")
    if w == 0: p.e(f"buffer_load_dwordx4 v[{KV}:{KV+3}], v{t0}, s[{S_M0}:{S_M0+3}], s{sC} offen", tag="m0")
    items = [('R', m, t) for m in 'qkv' for t in range(9) if (m, t, 0) in al.reg]
    items += [('R', 'o', (k, 1)) for k in range(4)] + [('R', 'o', (k, 0)) for k in range(4) if k not in Alloc.LK]
    nreg = len(items)
    items += [('L', m, t) for m, t in al.lpairs] + [('L', 'o', (k, 0)) for k in Alloc.LK]
    nslot = 8; DEPTH = 7
    assert len(items) - nreg == nslot
    def slot(i): return (i - nreg) % nslot
    def issue(i):
        kind, m, t = items[i]
        if cfg.get('noload'): return
        for d in range(4):
            if m != 'o':
                srd = {'q': S_WQ, 'k': S_WK, 'v': S_WV}[m]; va = (vG1, vG1b)[d >> 1]; sb = sA
                so = (64 * t + 16 * w + 2 * d) * 8192
            else:
                k, par = t; srd = S_WO; va = vG2; sb = sB
                so = (32 * (2 * par + (w >> 1)) + 4 * (w & 1) + 8 * (d >> 1) + 2 * (d & 1)) * 1152 + 256 * k
            p.e(f"s_add_u32 s{sC}, s{sb}, {so}\ns_mov_b32 m0, {L_W[w] + 4096*slot(i) + 1024*d}")
            p.e(f"buffer_load_dwordx4 v{va}, s[{srd}:{srd+3}], s{sC} offen{cfg.get('wfl', '')} lds", tag=f"d{i}")
    def keys(i):
        kind, m, t = items[i]
        return [(m, t, 0), (m, t, 1)] if m != 'o' else [('o', t[0], KSO[w].index(2*t[1] + x)) for x in range(2)]
    def writeback(off):
        for x in range(4): p.e(f"ds_write_b128 v{vW}, {vr(TMP + 4*x, 4)} offset:{off + 1024*x}", tag="lw")
    def consume(i, mid):
        kind, m, t = items[i]
        off = 4096 * slot(i)
        if cfg.get('noload'):
            if i in (NE, 19, 28, 29): p.e("s_waitcnt vmcnt(0) lgkmcnt(0)\ns_barrier"); mid(i)
            return
        p.wv(f"d{i}")
        p.e("s_barrier")
        if i >= 1 and i + DEPTH < len(items): issue(i + DEPTH)
        if i > nreg: writeback(4096 * slot(i - 1))
        for x, key in enumerate(keys(i)):
            if kind == 'L': assert al.lds[key] == off + 2048 * x
            dst = al.reg[key] if kind == 'R' else TMP + 8 * x
            for q in range(4):
                a, o = (vRq[q >> 1][x], off + 1024 * (q & 1)) if m != 'o' else (vRo[x], off + 1024 * q)
                p.e(f"ds_read_b64_tr_b16 {vr(dst + 2*q, 2)}, v{a} offset:{o}", tag="tr")
        mid(i)
        p.e("s_waitcnt lgkmcnt(0)")
    assert nreg == 27
    if cfg.get('ptl'): p.e('s_memrealtime s[80:81]')
    def fifth():
        p.e(f"""
v_and_b32 v{t0}, 3, v{l}
v_lshrrev_b32 v{t1}, 2, v{l}
v_mul_u32_u24 v{vG3}, 1152, v{t1}
v_lshl_add_u32 v{vG3}, v{t0}, 4, v{vG3}
v_lshrrev_b32 v{t1}, 2, v{n}
v_and_b32 v{t2}, 1, v{g}
v_lshlrev_b32 v{vR3}, 10, v{t2}
v_lshrrev_b32 v{t2}, 1, v{g}
v_lshl_add_u32 v{vR3}, v{t2}, 8, v{vR3}
v_and_b32 v{t2}, 1, v{t1}
v_lshl_add_u32 v{vR3}, v{t2}, 6, v{vR3}
v_lshrrev_b32 v{t2}, 1, v{t1}
v_lshl_add_u32 v{vR3}, v{t2}, 3, v{vR3}
v_lshl_add_u32 v{vR3}, v{t0}, 4, v{vR3}
v_add_u32 v{vR3}, {L_W[w]}, v{vR3}
""")
        for ks in range(4):
            for d in range(2):
                p.e(f"s_add_u32 s{sC}, s{sB}, {(32*ks + 16*d) * 1152 + 64 * (16 + w)}\ns_mov_b32 m0, {L_W[w] + al.lds[('o', 4, KSO[w].index(ks))] + 1024*d}")
                p.e(f"buffer_load_dwordx4 v{vG3}, s[{S_WO}:{S_WO+3}], s{sC} offen lds", tag="e5")
    for h2 in range(2):
        for T in range(2): p.e(coop_tr(vRq[h2][T], 4*w + 2*T, L_W[2*h2], L_W[2*h2 + 1], n, g, t0, t1))
    for x in range(2):
        p.e(f"""
; wo tr address: region + 256*s + 16*((4w+c) ^ 4s) + 8*(r>>1), s = 2*(g&1) + (r&1)
v_and_b32 v{t0}, 1, v{g}
v_bfe_u32 v{t1}, v{n}, 2, 1
v_lshl_add_u32 v{t0}, v{t0}, 1, v{t1}
v_xor_b32 v{t1}, {w}, v{t0}
v_lshlrev_b32 v{t1}, 6, v{t1}
v_lshl_add_u32 v{vRo[x]}, v{t0}, 8, v{t1}
v_and_b32 v{t0}, 3, v{n}
v_lshl_add_u32 v{vRo[x]}, v{t0}, 4, v{vRo[x]}
v_and_b32 v{t0}, 8, v{n}
v_add_u32 v{vRo[x]}, v{vRo[x]}, v{t0}
v_lshrrev_b32 v{t0}, 1, v{g}
v_mul_u32_u24 v{t0}, {L_W[2*x+1] - L_W[2*x]}, v{t0}
v_add_u32 v{t0}, {L_W[2*x]}, v{t0}
v_add_u32 v{vRo[x]}, v{vRo[x]}, v{t0}
""")
    p.e(f"""
v_bfe_u32 v{t0}, v{n}, 1, 1
v_mul_u32_u24 v{t0}, 0xaaaa, v{t0}
v_add_u32 v{vIdx}, 0x4444, v{t0}
v_lshlrev_b32 v{vL8}, 3, v{l}
v_lshrrev_b32 v{t2}, 5, v{l}
v_lshlrev_b32 v{t2}, 6, v{t2}
v_xor_b32 v{vL8}, v{vL8}, v{t2}
; vTR = (128c + 8*(4g + r)) ^ (64*(c>>1))   (c = n&3, r = n>>2)
v_lshrrev_b32 v{t2}, 2, v{l}
v_and_b32 v{vTR}, 3, v{n}
v_lshl_add_u32 v{vTR}, v{vTR}, 4, v{t2}
v_lshlrev_b32 v{vTR}, 3, v{vTR}
v_bfe_u32 v{t2}, v{n}, 1, 1
v_lshlrev_b32 v{t0}, 6, v{t2}
v_xor_b32 v{vTR}, v{vTR}, v{t0}
v_lshlrev_b32 v{vXr}, 4, v{n}
v_lshl_add_u32 v{vXr}, v{g}, 2, v{vXr}
v_mul_u32_u24 v{t0}, {1024 - 256*w}, v{t2}
v_add_u32 v{vXr}, v{vXr}, v{t0}
; vRD = g*256 + n3*128 + n1*64 + n2*32 + n0*16
v_lshlrev_b32 v{vRD}, 8, v{g}
v_lshl_add_u32 v{vRD}, v{t2}, 6, v{vRD}
v_bfe_u32 v{t0}, v{n}, 3, 1
v_lshl_add_u32 v{vRD}, v{t0}, 7, v{vRD}
v_bfe_u32 v{t0}, v{n}, 2, 1
v_lshl_add_u32 v{vRD}, v{t0}, 5, v{vRD}
v_and_b32 v{t0}, 1, v{n}
v_lshl_add_u32 v{vRD}, v{t0}, 4, v{vRD}
v_lshrrev_b32 v{t0}, 1, v{g}
v_and_b32 v{t1}, 1, v{g}
v_and_b32 v{t2}, 7, v{n}
v_lshrrev_b32 v{vOr}, 3, v{n}
; vST = w*16384 + (2*n3+(g>>1))*4096 + (h>>1)*256 + (g&1)*128 + (h&1)*64 + n2*32 + n0*16 + n1*8
v_lshl_add_u32 v{vST}, v{vOr}, 1, v{t0}
v_lshlrev_b32 v{vST}, 12, v{vST}
v_lshl_add_u32 v{vST}, v{t1}, 7, v{vST}
v_and_b32 v{t2}, 4, v{n}
v_lshl_add_u32 v{vST}, v{t2}, 3, v{vST}
v_and_b32 v{t2}, 1, v{n}
v_lshl_add_u32 v{vST}, v{t2}, 4, v{vST}
v_bfe_u32 v{t2}, v{n}, 1, 1
v_lshl_add_u32 v{vST}, v{t2}, 3, v{vST}
s_lshr_b32 s{sC}, s{sH}, 1
s_lshl_b32 s{sC}, s{sC}, 8
s_and_b32 s{sD}, s{sH}, 1
s_lshl_b32 s{sD}, s{sD}, 6
s_add_u32 s{sC}, s{sC}, s{sD}
s_add_u32 s{sC}, s{sC}, {WS_X + 16384*w}
v_add_u32 v{vST}, s{sC}, v{vST}
; vOr = 256*g + 16*(n & 13)
v_and_b32 v{vOr}, 0x3d0, v{vL16}
""")
    for k in range(5): p.e(f"s_mov_b32 s{sX[k]}, {65536*k}")
    p.e(f"""
s_mov_b32 s{sMEMo}, {WS_MEM}
s_mov_b32 s{sMEM1}, {WS_MEM + 4096}
s_mov_b32 s{sMEM8}, {WS_MEM + 8192}
s_mov_b32 s{sSC}, {SCALE:#x}
s_mov_b32 s{sSC+1}, {SCALE:#x}
s_mov_b32 s{sONE}, 0x3f803f80
s_mov_b32 s{sONE+1}, 0x3f803f80
v_lshlrev_b32 v{vMask}, 2, v{n}
s_mov_b32 s{sS}, 0
s_mov_b32 s{sT}, -1
s_mov_b32 s{sTn}, 0
s_mov_b32 s{sBud}, {cfg.get('budget', 300000)}
s_lshl_b32 s{sKV}, s{sH}, 14
s_add_u32 s{sPF}, s{sKV}, {WS_KVX + (8192*(w & 1) if cfg.get('pf2', True) else 4096*w) + 524288}
s_add_u32 s{sKV}, s{sKV}, {WS_KVX + 4096*w}
s_mov_b32 s{sKM}, {WS_MH - WS_MEM + 64*MHS}
v_mov_b64 v[{AV}:{AV+1}], 0
v_mov_b64 v[{AV+2}:{AV+3}], 0
""")
    if w < 2: p.e(f"ds_write_b128 v{vL16}, v[{AV}:{AV+3}] offset:{L_XS + 1024*w}", tag="z")
    p.e(f"s_lshl_b32 s{sC}, s{sH}, 1\ns_add_u32 s{sC}, s{sC}, {w >> 1}\ns_cmp_eq_u32 s{sC}, 0\ns_cselect_b32 s{sC}, 64, s{sC}\ns_mul_i32 s{sC}, s{sC}, {MHS}\ns_add_u32 s{sC}, s{sC}, {WS_MH + 4096*(w & 1)}\ns_add_u32 s{sD}, s{sC}, 4096")
    for i in range(4): p.e(f"v_mov_b32 v{AV+4+i}, {w >> 1}")
    for i in range(0 if cfg.get('nohist') else 4 + (w & 1)):
        p.e(f"buffer_store_dwordx4 v[{AV+4}:{AV+7}], v{vL16}, s[{S_WS}:{S_WS+3}], s{sC if i < 4 else sD} offen offset:{1024*(i & 3)} sc0 sc1", tag="init")
    if w == 3:
        p.e(f"s_lshl_b32 s{sC}, s{sH}, 10\ns_add_u32 s{sC}, s{sC}, {WS_FLG}")
        p.e(f"buffer_store_dwordx4 v[{AV}:{AV+3}], v{vL16}, s[{S_WS}:{S_WS+3}], s{sC} offen sc0 sc1", tag="init")
    if red:
        ub = {2: 0, 1: 32, 0: 64}[w]
        p.e(f"""
s_add_u32 s{sC}, s{sH}, {ub}
s_lshl_b32 s{sRU}, s{sC}, 12
v_and_b32 v{t0}, 1, v{n}
v_bfe_u32 v{t1}, v{n}, 2, 1
v_bfe_u32 v{t2}, v{n}, 1, 1
s_lshl_b32 s{sD}, s{sC}, 7
s_add_u32 s{sD}, s{sD}, {WS_MEM}
v_and_b32 v{vMS}, 7, v{n}
v_lshlrev_b32 v{vMS}, 2, v{vMS}
v_lshl_add_u32 v{vMS}, v{g}, 5, v{vMS}
v_add_u32 v{vMS}, s{sD}, v{vMS}
; the unit's timing word starts with the tag of mem0
s_lshl_b32 s{sSYw}, s{sC}, 2
s_add_u32 s{sSYw}, s{sSYw}, {WS_SYN}
v_mov_b32 v30, -1
s_mov_b64 exec, 1
buffer_store_dword v30, v{vL16}, s[{S_WS}:{S_WS+3}], s{sSYw} offen sc0 sc1
s_mov_b64 exec, -1
v_lshl_add_u32 v{t0}, v{t0}, 1, v{t1}
v_lshlrev_b32 v{t2}, 4, v{t2}
v_mov_b32 v{t1}, 0x3f80
v_lshlrev_b32 v{t1}, v{t2}, v{t1}
""")
        for j in range(4):
            p.e(f"v_cmp_eq_u32 vcc, {j}, v{t0}\nv_cndmask_b32 v{SEL+j}, 0, v{t1}, vcc")
        if w == 2:
            p.e(f"v_and_b32 v{t0}, 0x70, v{vL16}\nds_write_b128 v{t0}, v[{SEL}:{SEL+3}] offset:{L_SEL}", tag="z")
        for i in range(4):
            p.e(f"buffer_store_dwordx4 v[{AV}:{AV+3}], v{vRD}, s[{S_WS}:{S_WS+3}], s{sRU} offen offset:{1024*i} sc0 sc1", tag="init")
    if w == 0:
        p.e(f"""
s_lshl_b32 s{sC}, s{sH}, 10
s_cmp_ge_u32 s{sH}, 9
s_cselect_b32 s{sC}, {WS_BYTES}, s{sC}
s_add_u32 s{sD}, s{sC}, {WS_MH}
s_add_u32 s{sC}, s{sC}, {WS_MEM}
""")
        p.wv("m0")
        p.e(f"v_or_b32 v{KV}, 1, v{KV}")
        p.e(f"""
buffer_store_dwordx4 v[{KV}:{KV+3}], v{vL16}, s[{S_WS}:{S_WS+3}], s{sC} offen sc0 sc1
buffer_store_dwordx4 v[{KV}:{KV+3}], v{vL16}, s[{S_WS}:{S_WS+3}], s{sD} offen sc0 sc1
""", tag="init")
    p.e(f"""
s_getreg_b32 s{sC}, hwreg(HW_REG_XCC_ID)
s_and_b32 s{sC}, s{sC}, 15
s_mul_i32 s{sD}, s{sC}, s{sC}
s_lshl_b32 s{sD}, s{sD}, 18
s_lshl_b32 s{sC}, s{sC}, 8
s_add_u32 s{sD}, s{sD}, s{sC}
s_add_u32 s58, s{sD}, 1
s_lshl_b32 s{sFL}, s{sH}, 7
s_add_u32 s{sFL}, s{sFL}, {WS_FLG}
v_mov_b32 v{t1}, 0
""")
    if w == 3: p.e(f"s_mov_b32 s{sRU}, s{sFL}\nv_mov_b32 v{vMS}, 0")
    for i in range(NE, DEPTH + 1): issue(i)
    if w < 2: fifth()
    p.e(f"v_mov_b32 v{t1}, 0")
    WSR = f"s[{S_WS}:{S_WS+3}]"
    DBL = f"buffer_load_dword v{vDb}, v{t1}, s[{S_DBG}:{S_DBG+3}], 0 offen sc0 sc1"
    def mid(i):
        if cfg.get('ptl') and i in (0, 9, 18, 27, 34): p.e(f"s_memrealtime s[{82 + 2*((i+2)//9)}:{83 + 2*((i+2)//9)}]")
        if i == NE:
            assert not any(t == "init" for t, _ in p.vmq)
            if w == 0: p.e(f"v_mov_b32 v{t0}, s58\ns_mov_b64 exec, 1\nbuffer_atomic_add v{t0}, v{t1}, s[{S_DBG}:{S_DBG+3}], 0 offen sc1\ns_mov_b64 exec, -1", tag="arr")
        if w < 2 and i in (DEPTH + 2, DEPTH + 3):
            off = 4096 * (8 + i - DEPTH - 2)
            for x in range(2):
                for q in range(4): p.e(f"ds_read_b64_tr_b16 {vr(TMP + 8*x + 2*q, 2)}, v{vR3} offset:{off + 2048*x + 64*(8*(q >> 1) + 2*(q & 1))}", tag="tr")
            p.e("s_waitcnt lgkmcnt(0)")
            writeback(off)
        if i == 19: p.e(DBL, tag="db")
        if i == 28:
            p.wv("db")
            p.e(f"""
L_rdv_{nm}:
v_readfirstlane_b32 s{sPar}, v{vDb}
s_and_b32 s{sD}, s{sPar}, 0xff
s_cmp_lg_u32 s{sD}, 32
s_cbranch_scc1 L_rdv2_{nm}
{kvwait(nm + 'p') if cfg.get('fused') and w == 3 else ''}
""")
            p.ool.append(f"L_rdv2_{nm}:\n{DBL}\ns_sub_u32 s{sBud}, s{sBud}, 1\ns_cbranch_scc1 L_exit\ns_waitcnt vmcnt(0)\ns_branch L_rdv_{nm}")
        if i == 29:
            for x, r in enumerate((KV, KV + 4, VV, VV + 4)):
                p.e(f"buffer_load_dwordx4 {vr(r, 4)}, v{vRD if x < 2 else vL16}, {WSR}, s{sKV} offen offset:{1024*x}", tag="K0")
            p.e(f"s_mov_b32 m0, {L_MEM}\ns_nop 0\nbuffer_load_dwordx4 v{vL16}, {WSR}, s{sMEMo} offen offset:{1024*w} sc1 lds", tag="K0")
            if w == 2: p.e(f"s_mov_b32 s{sC}, {WS_SYN}\nbuffer_load_dword v33, v{t1}, {WSR}, s{sC} offen sc1", tag="!w")
            if red:
                for x in range(4): p.e(f"buffer_load_dword v33, v{vL16}, {WSR}, s{sRU} offen offset:{1024*x} sc1", tag="!w")
    for i in range(len(items)): consume(i, mid)
    p.e("s_barrier")
    writeback(4096 * slot(len(items) - 1))
    PTL = "".join(f"v_mov_b32 v{t0}, s{80+2*x}\nbuffer_store_dword v{t0}, v{t1}, s[4:7], s95 offen offset:{(1, 3, 6, 7, 13, 14)[x]*4}\n" for x in range(6)) if cfg.get('ptl') else ''
    p.e(f"""
{tl(cfg, 2, t0, t1, True)}
{PTL}
{gate(cfg, 'gate_go', nm)}
s_lshl_b32 s{sD}, s58, 5
s_mov_b32 s{sHALF}, 0x3f003f00
s_mov_b32 s{sHALF+1}, 0x3f003f00
s_mov_b32 s{sSYr}, {WS_SYN}
s_cmp_eq_u32 s{sPar}, s{sD}
s_mov_b32 s{sSP0}, 0x33333333
s_mov_b32 s{sSP0+1}, 0x33333333
s_mov_b32 s{sLIM}, {cfg.get('lim', 0x21800000):#x}
s_mov_b32 s{sM24}, -24
s_cbranch_scc{'0' if not cfg.get('force_slow') else '1'} L_slow_{nm}
""")

import os, json
KEYS = json.load(open(os.path.join(os.path.dirname(os.path.abspath(__file__)), 'keys.json'))) if os.path.exists(os.path.join(os.path.dirname(os.path.abspath(__file__)), 'keys.json')) else {}
PARAMS = dict(N=2, pd=0, r1=0, r2=0, r3=0, df=0, da=0, ds=0, d2=0, d3=0, a0=4)
SCRIPTS = {
 'base': {'0': "y u z x f t b", '0r': "v z f y b wst4 u d{r3} R r x t", '1': "v z f y u b wst4 d{r2} R r x t",
          '2': "y v p7 wst2 d{r1} R b r F z x t f u d{ds} M{N}{pd}:0123", '3': "y u z x f t b e"},
 'two':  {'0': "y u z x f t b c", '0r': "v z f y b wst4 u d{r3} R c r x t", '1': "v z f y u b wst4 d{r2} R c r x t",
          '2': "y v p7 wst1 d{r1} R b r F c z x t f u d{ds} M{N}{pd}:02", '3': "y b e p7 c u z x f t d{d3} M{N}{pd}:13"},
}
ROLES = ((0, False), (0, True), (1, True), (2, True), (3, False))
def loop(p, w, red, fast, cfg, probe=None):
    cache = cfg.get('cache')
    if probe is None and cache is not None and ('q', w, red) in cache: topq = cache[('q', w, red)]
    elif probe is None:
        topq = []
        loop(Prog(), w, red, fast, cfg, topq)
        if cache is not None: cache[('q', w, red)] = topq
    else: topq = []
    al = Alloc(w)
    nm = f"w{w}{'r' if red else ''}{'f' if fast else 's'}"
    ST = "" if fast else " sc0 sc1"
    LD = " sc1" if fast else " sc0 sc1"
    WSR = f"s[{S_WS}:{S_WS+3}]"
    a0, a1, a2, a3, a4 = AS
    stamps = cfg.get('stamps')
    sel = cfg.get('sel')
    def stamp(i):
        if cfg.get('trace') is not None and i != 0: return
        if stamps and (sel is None or i in sel or (i == 0 and sel)): p.e(f"s_memtime s[{sST+2*i}:{sST+2*i+1}]")
    acc = {'q': AQ, 'k': AK, 'v': AV}
    SLOT = [WST, a0, a2, AV]
    role = f"{w}{'r' if red and w == 0 else ''}"
    script = {**SCRIPTS[cfg.get('policy', 'base')], **cfg.get('script', {})}[role]
    script = script.format(**{**PARAMS, **{k[1:]: int(x) for k, x in cfg.get('keys', KEYS).items() if k[0] == '$'}, **cfg.get('par', {})}).split()
    early = cfg.get('early', True)
    if early: cfg = {'pf': None, 'pub': None, 'hooks': {'G': cfg.get('g', 0), 'K0': (3, 4, 5, 6), 'K1': (5, 6, 7, 8), 'K2': (8, 9, 10, 11), 'K3': (10, 11, 12, 13), 'P': 15, 'F': 15}, **cfg}
    hooks = cfg.get('hooks', {'G': 2, 'K0': (5, 6, 7, 8), 'K1': (9, 10, 11, 12), 'K2': (13, 14, 15, 16), 'K3': (17, 18, 19, 20)})
    def wreg(key, slot): return al.reg[key] if key in al.reg else SLOT[slot]
    nS = [0]
    def S(m, t, T, a):
        key = (m, t, T)
        if key in al.lds: p.wl("W0")
        for h, pos in hooks.items():
            if nS[0] == (pos[w] if isinstance(pos, tuple) else pos): hook(h)
        nS[0] += 1
        p.info = ('s2b' if early and nS[0] > 17 else 's0' if nS[0] <= hooks.get('G', 0) else 's1') if t < 4 else ('s2' if (m, T) == ('q', 0) and t in (5, 6, 7) else 's2b')
        p.e(f"v_smfmac_f32_16x16x64_bf16 {vr(acc[m] + 4*T, 4)}, {vr(a, 4)}, {vr(wreg(key, 0), 8)}, v{vIdx}")
    def fillh(key, slot, h):
        p.e(f"ds_read_b128 {vr(SLOT[slot] + 4*h, 4)}, v{vW} offset:{al.lds[key] + 1024*h}", tag=f"W{slot}")
    def fh(i, T, h): fillh(al.lpairs[i] + (T,), 0, h)
    rdt = lambda t, a: f"ds_read_b128 {vr(a, 4)}, v{vL16} offset:{L_MEM + 1024*t}"
    def rdA(t, a): p.e(rdt(t, a), tag=f"A{t}")
    def dma(ts):
        o = []; cur = None
        for t in ts:
            if t >> 2 != cur:
                cur = t >> 2; o.append((f"s_mov_b32 m0, {L_MEM + 4096*cur}\ns_nop 0", None))
            o.append((f"buffer_load_dwordx4 v{vL16}, {WSR}, s{(sMEMo, sMEM1, sMEM8)[cur]} offen offset:{1024*(t & 3)}{LD} lds", f"D{t}"))
        return o
    def edma(ts):
        for x, tg in dma(ts): p.e(x, tag=tg)
    tdma = lambda ts: "\n".join(x for x, _ in dma(ts)) + "\n"
    PUB = f"buffer_store_dword v{vMask}, v{vMS}, {WSR}, s{sKM} offen sc0 sc1"
    def zero(r, n): return "\n".join(f"v_mov_b64 {vr(r + i, 2)}, 0" for i in range(0, n, 2))
    BUD = f"s_sub_u32 s{sBud}, s{sBud}, 1\ns_cbranch_scc1 L_exit\n"
    def cnt(i): return f"s_add_u32 s{(96, 97, 98, 95)[i]}, s{(96, 97, 98, 95)[i]}, 1\n" if stamps else ""
    def loadK(which=(0, 1, 2, 3)):
        for x, r in enumerate((KV, KV + 4, VV, VV + 4)):
            if x in which: p.e(f"buffer_load_dwordx4 {vr(r, 4)}, v{vRD if x < 2 else vL16}, {WSR}, s{sKV} offen offset:{1024*x}", tag="K" if x < 2 else "V")
    def hook(h):
        if h[0] == 'K': loadK([int(c) for c in h[1:]] if h[1:] else (0, 1, 2, 3))
        elif h == 'E': edma([4 + w] + ([8] if w == 3 and 'G' not in hooks else []))
        elif h == 'F':
            if w in (0, 3) or not pf2: p.e(f"s_mov_b32 m0, {L_DUM}\ns_nop 0\nbuffer_load_dword v{a4+2}, {WSR}, s{sPF} offen lds", tag="PF")
            if w == 3 and cfg.get('fused'): p.e(f"buffer_load_dword v{vMask}, v{vMask}, {WSR}, s{sRU} offen sc1", tag="pub")
        elif h == 'G':
            if w == 3: edma([8])
        elif h == 'P':
            if red: p.e(PUB, tag="pub")
        else: raise Exception(h)
    ADD = lambda d, x, y: p.e(f"v_add_f32 v{d}, v{x}, v{y}")
    CVT = lambda d, x: p.e(f"v_cvt_pk_bf16_f32 v{d}, v{x}, v{x+1}")
    QP = lambda a: f"quad_perm:[{a}] row_mask:0xf bank_mask:0xf"
    MF = "v_mfma_f32_16x16x32_bf16"; M16 = "v_mfma_f32_16x16x16_bf16"
    ck2 = lambda x, y: f"v_bitop3_b32 v{vTmp}, v{x}, v{y}, s{sT} bitop3:0x7e"
    ck1 = lambda x: f"v_bitop3_b32 v{vTmp}, v{vTmp}, v{x}, s{sT} bitop3:0xf6"
    ckA = f"v_and_b32 v{vTmp}, 1, v{vTmp}"; ckC = f"v_cmp_ne_u32 vcc, 0, v{vTmp}"

    pf2 = cfg.get('pf2', True)
    PFA = f"s_mov_b32 m0, {L_DUM}\nv_lshlrev_b32 v{vTmp}, {3 if pf2 else 2}, v{vL16}" if not early else "\n"
    TGA = f"v_bfe_u32 v{a4+1}, v{vL16}, 6, 1\nv_lshl_add_u32 v{a4+1}, v{a4+1}, 3, v{vL16}\nv_lshlrev_b32 v{a4+1}, 1, v{a4+1}" + (f"\nv_lshlrev_b32 v{a4+2}, {3 if pf2 else 2}, v{vL16}" if 'F' in hooks else "")
    p.fence()
    if stamps:
        for i in range(60, 100): p.e(f"s_mov_b32 s{i}, 0")
        p.e("s_memtime s[60:61]\ns_memrealtime s[62:63]\ns_waitcnt lgkmcnt(0)\ns_mov_b32 s84, s60\ns_sub_u32 s99, s62, s59")
    p.e(zero(AQ, 24))
    fh(0, 0, 0); fh(0, 0, 1)
    p.e(TGA)
    p.e("s_waitcnt vmcnt(0) lgkmcnt(0)")
    p.vmq = [(t, set()) for t in topq]
    p.ldsq = [("W0", set(regs_of(vr(WST + 4*h, 4)))) for h in range(2)]
    i_top = len(p.lines)
    p.e(f"L_top_{nm}:")
    p.fence()
    stamp(0)
    n1 = cfg.get('n1', 4)
    b0 = min(cfg.get('b0', 0), n1 - 1)
    p.wv([f"D{t}" for t in range(b0 + 1)]); p.e("s_barrier")
    for t in range(b0 + 1): rdA(t, AS[t])
    if n1 == 3 and w == cfg.get('w3', 0): edma([3])
    if not cfg.get('elate'):
        for h in cfg.get('top', ('E',)): hook(h)
    if b0 < n1 - 1:
        p.wv([f"D{t}" for t in range(n1)]); p.e("s_barrier")
        if cfg.get('elate') == 1: hook('E')
        for t in range(b0 + 1, n1): rdA(t, AS[t])
    if cfg.get('elate') == 2: hook('E')
    p.e(f"L_s0_{nm}:")
    refill0 = "\n".join(f"ds_read_b128 {vr(WST + 4*h, 4)}, v{vW} offset:{al.lds[al.lpairs[0] + (0,)] + 1024*h}" for h in range(2))
    again = BUD + refill0 + "\n" + zero(AQ, 24) + "\ns_waitcnt vmcnt(0)\n" + "".join(rdt(t, AS[t]) + "\n" for t in range(n1)) + f"s_branch L_s0_{nm}"
    p.ool.append(f"L_ra0_{nm}:\n{cnt(0)}" + tdma(range(n1)) + again)
    p.wl("A0")
    stamp(1)
    p.record()
    b4, b5, b6, b7, b8 = a4, a0, a1, a2, a3
    TGR = f"ds_read_b32 v{vTmp}, v{a4+1} offset:{L_MEM + 7168}"
    S('k', 0, 0, a0)
    S('k', 0, 1, a0)
    S('v', 0, 0, a0)
    S('v', 0, 1, a0)
    S('q', 1, 0, a1)
    S('q', 0, 0, a0); fh(0, 1, 0)
    S('q', 1, 1, a1); fh(0, 1, 1)
    S('k', 1, 0, a1); p.e(ck2(a0, a1))
    if n1 == 4:
        S('k', 1, 1, a1); p.e(f"v_bitop3_b32 v{a4}, v{a2}, v{a3}, s{sT} bitop3:0x7e")
        S('v', 1, 0, a1); p.e(f"v_bitop3_b32 v{vTmp}, v{vTmp}, v{a4}, 1 bitop3:0xa8")
    else:
        S('k', 1, 1, a1); p.e(ck1(a2))
        S('v', 1, 0, a1); p.e(ckA)
    S('q', 0, 1, a0); fh(1, 0, 0); p.e(ckC)
    S('v', 1, 1, a1); fh(1, 0, 1)
    S('q', 2, 0, a2)
    p.e(f"s_cbranch_vccnz L_ra0_{nm}")
    S('q', 2, 1, a2)
    p.wv([f"D{t}" for t in range(n1, 9)]); p.e("s_barrier")
    if not cfg.get('s3'): stamp(2)
    if n1 == 4:
        p.e(TGR, tag="TG")
        S('k', 2, 0, a2); rdA(5, b5)
        S('q', 3, 0, a3); rdA(6, b6)
        S('k', 2, 1, a2); fh(1, 1, 0); rdA(4, b4)
        S('v', 2, 0, a2); fh(1, 1, 1)
        S('v', 2, 1, a2); rdA(7, b7); p.e(ck2(vTmp, b5))
        S('k', 3, 0, a3); p.e(ck1(b6))
        S('k', 3, 1, a3); p.e(PFA.split("\n")[0]); p.e(ck1(b4)); p.e(ckA)
        S('q', 3, 1, a3); fh(2, 0, 0); p.e(ckC)
        S('v', 3, 0, a3); fh(2, 0, 1); p.e(PFA.split("\n")[1])
        S('v', 3, 1, a3); rdA(8, b8)
        p.e(f"s_cbranch_vccnz L_ra1_{nm}")
        p.e(f"L_a1_{nm}:")
        pre = ""
    else:
        rdA(3, a3)
        S('k', 2, 0, a2); p.e(TGR, tag="TG")
        S('k', 2, 1, a2); rdA(5, b5)
        S('v', 2, 0, a2); rdA(6, b6)
        S('v', 2, 1, a2); rdA(4, b4)
        S('q', 3, 0, a3); fh(1, 1, 0); p.e(ck2(vTmp, a3))
        S('k', 3, 0, a3); fh(1, 1, 1); p.e(ck1(b5))
        S('k', 3, 1, a3); rdA(7, b7); p.e(PFA.split("\n")[0]); p.e(ck1(b6))
        S('v', 3, 0, a3); p.e(ck1(b4)); p.e(ckA); p.e(ckC)
        S('v', 3, 1, a3); p.e(PFA.split("\n")[1])
        S('q', 3, 1, a3); fh(2, 0, 0)
        p.e(f"s_cbranch_vccnz L_ra1_{nm}")
        p.e(f"L_a1_{nm}:")
        rdA(8, b8); fh(2, 0, 1)
        pre = f"{ck2(a3, a3)}\n{ckA}\n{ckC}\ns_cbranch_vccnz L_ra3_{nm}\n"
        p.ool.append(f"L_ra3_{nm}:\ns_waitcnt lgkmcnt(0)\ns_barrier\n" + tdma([3, 4 + w] if w == 0 else [4 + w]) + TGA + "\n" + again)
    p.ool.append(f"L_ra1_{nm}:\n{pre}L_ra2_{nm}:\n{cnt(1)}s_waitcnt lgkmcnt(0)\ns_barrier\n" + tdma([4 + w] + ([8] if w == 0 else [])) + BUD + f"s_waitcnt vmcnt(0)\ns_barrier\n" +
                 "".join(rdt(t, a) + "\n" for t, a in ((4, b4), (5, b5), (6, b6), (7, b7), (8, b8))) + "s_waitcnt lgkmcnt(0)\n" +
                 "\n".join([ck2(b4, b5), ck1(b6), ck1(b7), ck1(b8), ckA, ckC]) + f"\n{PFA}\ns_cbranch_vccnz L_ra2_{nm}\ns_branch L_a1_{nm}")
    pfpos = cfg.get('pf', 'a')
    def PF(pos):
        if pos == cfg.get('pub', 'a') and red: p.e(PUB, tag="pub")
        if pos == pfpos and cfg.get('pfreg'):
            if w == 0: p.e(f"s_add_u32 s{sA}, s{sPF}, 8192\nbuffer_load_dword v{vMS}, v{vTmp}, {WSR}, s{sPF} offen\nbuffer_load_dword v{vMask}, v{vTmp}, {WSR}, s{sA} offen", tag="!PF")
        elif pos == pfpos and (w in (0, 3) or not pf2):
            p.e(f"buffer_load_dword v{vTmp}, {WSR}, s{sPF} offen{cfg.get('pffl', '')} lds", tag="PF")
            if w == 3 and cfg.get('fused'): p.e(f"buffer_load_dword v{vMask}, v{vMask}, {WSR}, s{sRU} offen sc1", tag="pub")
        if pos == pfpos and cfg.get('pfw'):
            stamp(3); p.e("s_waitcnt vmcnt(0)"); stamp(5)
    PF('a')
    S('q', 5, 0, b5)
    S('q', 6, 0, b6); p.e(f"v_bfe_u32 v{vTmp}, v{vL16}, 5, 1")
    p.wl("A7"); S('q', 7, 0, b7); p.e(f"v_mad_i32_i24 v{vTmp}, v{vTmp}, s{sM24}, v{vL16}")
    p.wl("A8"); S('q', 8, 0, b8)
    S('q', 4, 0, b4); fh(2, 1, 0)
    S('q', 5, 1, b5); fh(2, 1, 1)
    S('q', 6, 1, b6); ADD(AQ, AQ, AQ + 2)
    S('q', 7, 1, b7); ADD(AQ + 1, AQ + 1, AQ + 3)
    S('q', 8, 1, b8); CVT(AQ + 2, AQ)
    S('q', 4, 1, b4); fh(3, 0, 0)
    S('k', 4, 0, b4); fh(3, 0, 1)
    S('k', 6, 0, b6)
    ADD(AQ + 4, AQ + 4, AQ + 6); ADD(AQ + 5, AQ + 5, AQ + 7); CVT(AQ + 3, AQ + 4)
    S('k', 7, 0, b7)
    p.e(f"ds_write_b64 v{vL8}, {vr(AQ+2, 2)} offset:{L_Q + 512*w}", tag="wq")
    S('k', 8, 0, b8); p.e(f"v_wait_swap {vr(KV, 8)}, {vr(VV, 8)}")
    S('k', 5, 0, b5); fh(3, 1, 0)
    S('k', 4, 1, b4); fh(3, 1, 1)
    trq = [f"ds_read_b64_tr_b16 {vr(AQ + 2*x, 2)}, v{vTR} offset:{L_Q + 512*x}" for x in range(4)]
    if cfg.get('bq', 1) == 0:
        p.wl("wq"); p.e("s_barrier")
        S('k', 6, 1, b6); p.e(trq[0], tag="Q0"); p.e(trq[1], tag="Q0"); ADD(AK, AK, AK + 2)
        S('k', 7, 1, b7); p.e(trq[2], tag="Q1"); ADD(AK + 1, AK + 1, AK + 3)
        S('k', 8, 1, b8); p.e(trq[3], tag="Q1"); CVT(AK + 2, AK)
        S('k', 5, 1, b5); fh(4, 1, 0)
    else:
        S('k', 6, 1, b6); ADD(AK, AK, AK + 2)
        p.wl("wq"); p.e("s_barrier")
        S('k', 7, 1, b7); p.e(trq[0], tag="Q0"); p.e(trq[1], tag="Q0"); ADD(AK + 1, AK + 1, AK + 3)
        S('k', 8, 1, b8); p.e(trq[2], tag="Q1"); p.e(trq[3], tag="Q1"); CVT(AK + 2, AK)
        S('k', 5, 1, b5); fh(4, 1, 0)
    if not cfg.get('pfw') and not cfg.get('s3'): stamp(3)
    DX, P0, P1, DM, DL, ONE, HALF, DO, PM = KV, KV + 4, a0, AK, AK + 4, a4, KV + 2, AQ, AQ + 4
    wkey = lambda i: ('o',) + al.wo_l[i]
    DPA = lambda d: f"v_add_f32_dpp v{d}, v{d+2}, v{d} {QP('2,3,0,1')}"
    WX = f"ds_write_b32 v{vXr}, v{DX+2} offset:{L_XS + 32 + 256*w}"
    RP = lambda r, x: f"ds_read_b128 {vr(r, 4)}, v{vL16} offset:{L_XS + 32 - 32*x}"
    SET = lambda r, sp: f"v_mov_b64 {vr(r, 2)}, s[{sp}:{sp+1}]"
    CND = lambda d: f"v_cndmask_b32_e64 v{d}, 0, v{DM+2}, s[{sSP0}:{sSP0+1}]"
    DPM = lambda d: f"v_mov_b32_dpp v{d}, v{PM+2} {QP('2,3,0,1')}"
    OMUL = lambda j: f"v_mul_f32_dpp v{DO+j}, v{DL+1}, v{DO+j} {QP('0,1,0,1')}"
    WO = f"ds_write_b64 v{vTmp}, {vr(DO, 2)} offset:{L_MEM + 1024*(4+w)}"
    p.wv("K"); p.wl("Q0")
    p.e(f"{MF} {vr(DX, 4)}, {vr(KV, 4)}, {vr(AQ, 4)}, 0")
    fh(4, 1, 1)
    p.wl("Q1")
    p.e(f"{MF} {vr(DX, 4)}, {vr(KV+4, 4)}, {vr(AQ+4, 4)}, {vr(DX, 4)}")
    ADD(AK + 4, AK + 4, AK + 6); ADD(AK + 5, AK + 5, AK + 7); CVT(AK + 3, AK + 4)
    p.e(f"ds_write_b64 v{vL8}, {vr(AK+2, 2)} offset:{L_K + 512*w}", tag="wk")
    trk = [f"ds_read_b64_tr_b16 {vr(AK + 2*x, 2)}, v{vTR} offset:{L_K + 512*x}" for x in range(4)]
    vs = [('v', 4, 0, b4), ('v', 4, 1, b4), ('v', 5, 0, b5), ('v', 5, 1, b5), ('v', 8, 1, b8), ('v', 6, 1, b6), ('v', 7, 1, b7), ('v', 6, 0, b6), ('v', 7, 0, b7), ('v', 8, 0, b8)]
    done = []
    def V():
        x = vs.pop(0); S(*x); done.append(x[1:3])
    va = cfg.get('va', 0)
    V()
    p.e(DPA(DX)); p.e(DPA(DX + 1))
    if va & 1: V()
    p.e(f"v_exp_f32 v{DX+2}, v{DX}\nv_exp_f32 v{DX+3}, v{DX+1}")
    if not va & 1: V()
    CVT(DX + 2, DX + 2)
    if va & 2:
        p.wl("wk"); p.e("s_barrier"); p.e(trk[0], tag="K0"); p.e(trk[1], tag="K0")
        V(); p.e(WX, tag="wx")
        V(); p.e(trk[2], tag="K1"); p.e(trk[3], tag="K1")
    else:
        p.e(WX, tag="wx")
        p.wl("wk"); p.e("s_barrier"); p.e(trk[0], tag="K0")
        V(); p.e(trk[1], tag="K0"); p.e(trk[2], tag="K1")
        V(); p.e(trk[3], tag="K1")
    p.e(SET(ONE, sONE))
    V(); fh(4, 0, 0); p.e(SET(ONE + 2, sONE))
    p.wl("K0")
    p.e(f"{MF} {vr(DM, 4)}, {vr(AK, 4)}, {vr(AQ, 4)}, 0")
    p.wl("wx"); p.e("s_barrier")
    p.e(RP(P0, 0), tag="P0")
    p.wl("K1")
    p.e(f"{MF} {vr(DM, 4)}, {vr(AK+4, 4)}, {vr(AQ+4, 4)}, {vr(DM, 4)}")
    p.e(RP(P1, 1), tag="P1")
    stamp(4)
    V(); fh(4, 0, 1); p.e(SET(HALF, sHALF))
    V(); p.e(DPA(DM))
    V(); fillh(wkey(1), 1, 1); p.e(DPA(DM + 1))
    V(); fillh(wkey(2), 2, 0); p.e(f"v_mul_f32 v{DM}, s{sSC}, v{DM}")
    CVT(AV + 4, AV + 4)
    V(); fillh(wkey(2), 2, 1); p.e(f"v_mul_f32 v{DM+1}, s{sSC}, v{DM+1}")
    CVT(AV + 5, AV + 6)
    p.wv("V"); p.wl("P0")
    if not cfg.get('pfw'): stamp(5)
    p.e(f"{MF} {vr(DL, 4)}, {vr(ONE, 4)}, {vr(P0, 4)}, 0")
    p.e(f"v_exp_f32 v{DM+2}, v{DM}")
    p.e(f"{MF} {vr(DO, 4)}, {vr(VV, 4)}, {vr(P0, 4)}, 0")
    p.e(f"v_exp_f32 v{DM+3}, v{DM+1}")
    p.wl("P1")
    p.e(f"{MF} {vr(DO, 4)}, {vr(VV+4, 4)}, {vr(P1, 4)}, {vr(DO, 4)}")
    CVT(DM + 2, DM + 2)
    p.e(CND(PM + 2)); p.e(CND(PM + 3))
    CVT(AV + 6, AV); CVT(AV + 7, AV + 2)
    p.e(DPM(PM)); p.e(DPM(PM + 1))
    p.e(f"{M16} {vr(DL, 4)}, {vr(HALF, 2)}, {vr(PM+2, 2)}, {vr(DL, 4)}")
    fillh(wkey(0), 0, 0)
    p.e(f"{MF} {vr(DO, 4)}, {vr(AV+4, 4)}, {vr(PM, 4)}, {vr(DO, 4)}")
    fillh(wkey(0), 0, 1)
    DACC = [a4, AV, AQ + 4, AK + 4, AK]
    OA = [KV + 4, KV, VV, VV + 4]
    rdo = lambda j: f"ds_read_b128 {vr(OA[j], 4)}, v{vOr} offset:{L_MEM + 1024*(4 + KSO[w][j])}"
    rdO = lambda j: p.e(rdo(j), tag=f"O{j}")
    p.e(f"v_rcp_f32 v{DL+1}, v{DL}")
    fillh(wkey(1), 1, 0)
    zs = "\n".join(zero(DACC[k], 4) for k in range(4)).split("\n")
    p.e(f"v_min_f32 v{DL}, v{DL}, v{DL+1}\nv_cmp_nlt_f32 vcc, s{sLIM}, v{DL}")
    p.e("\n".join(zs[:3]))
    for j in range(4): p.e(OMUL(j))
    CVT(DO, DO); CVT(DO + 1, DO + 2)
    p.e(WO, tag="wo")
    OWN = "\n".join(f"v_mov_b32_dpp v{OA[0]+x}, v{DO + (x & 1)} {QP(('0,1,0,1', '2,3,2,3')[x >> 1])}" for x in range(4))
    p.e(f"s_and_b64 vcc, vcc, s[{sSP0}:{sSP0+1}]")
    p.e(OWN)
    p.e(f"s_cbranch_scc1 L_mx_{nm}")
    p.e(f"L_mxb_{nm}:")
    p.e(zs[3]); p.e(zs[4])
    p.wl("wo"); p.e("s_barrier"); rdO(1)
    zs = zs[5:] + (zero(DACC[4], 4).split("\n") if al.ndt == 5 else [])
    q = Prog()
    m0_, m1_, FP1 = AK + 2, AK + 3, AV
    def allg(op):
        q.e(f"v_mov_b32 v{m1_}, v{m0_}\nv_permlane16_swap_b32 v{m0_}, v{m1_}\n{op} v{m0_}, v{m0_}, v{m1_}\nv_mov_b32 v{m1_}, v{m0_}\nv_permlane32_swap_b32 v{m0_}, v{m1_}\n{op} v{m0_}, v{m0_}, v{m1_}")
    q.e(f"L_mx_{nm}:\ns_waitcnt lgkmcnt(0)\nv_max3_f32 v{m0_}, v{DX}, v{DX+1}, v{DM}\nv_max_f32 v{m0_}, v{m0_}, v{DM+1}")
    allg("v_max_f32")
    q.e(f"ds_write_b32 v{vL16}, v{m0_} offset:{L_Q + 4*w}\ns_waitcnt lgkmcnt(0)\ns_barrier\nds_read_b128 {vr(DL, 4)}, v{vL16} offset:{L_Q}\ns_waitcnt lgkmcnt(0)")
    q.e(f"""
v_max3_f32 v{DL}, v{DL}, v{DL+1}, v{DL+2}
v_max_f32 v{DL}, v{DL}, v{DL+3}
v_sub_f32 v{DX+2}, v{DX}, v{DL}
v_sub_f32 v{DX+3}, v{DX+1}, v{DL}
v_sub_f32 v{DM+2}, v{DM}, v{DL}
v_sub_f32 v{DM+3}, v{DM+1}, v{DL}
v_exp_f32 v{DX+2}, v{DX+2}
v_exp_f32 v{DX+3}, v{DX+3}
v_exp_f32 v{DM+2}, v{DM+2}
v_exp_f32 v{DM+3}, v{DM+3}
v_cvt_pk_bf16_f32 v{DX+2}, v{DX+2}, v{DX+3}
v_cvt_pk_bf16_f32 v{DM+2}, v{DM+2}, v{DM+3}
{WX}
{CND(PM+2)}
{CND(PM+3)}
{SET(ONE, sONE)}
{SET(ONE+2, sONE)}
{DPM(PM)}
{DPM(PM+1)}
s_waitcnt lgkmcnt(0)
s_barrier
{SET(HALF, sHALF)}
{RP(P0, 0)}
{RP(FP1, 1)}
s_waitcnt lgkmcnt(0)
{MF} {vr(DL, 4)}, {vr(ONE, 4)}, {vr(P0, 4)}, 0
{MF} {vr(DO, 4)}, {vr(VV, 4)}, {vr(P0, 4)}, 0
{MF} {vr(DO, 4)}, {vr(VV+4, 4)}, {vr(FP1, 4)}, {vr(DO, 4)}
{M16} {vr(DL, 4)}, {vr(HALF, 2)}, {vr(PM+2, 2)}, {vr(DL, 4)}
{MF} {vr(DO, 4)}, {vr(AV+4, 4)}, {vr(PM, 4)}, {vr(DO, 4)}
v_rcp_f32 v{DL+1}, v{DL}
""")
    for j in range(4): q.e(OMUL(j))
    q.e(f"v_cvt_pk_bf16_f32 v{DO}, v{DO}, v{DO+1}\nv_cvt_pk_bf16_f32 v{DO+1}, v{DO+2}, v{DO+3}\n{WO}\n{OWN}")
    q.e("\n".join(zero(DACC[k], 4) for k in range(4)))
    q.e(f"s_waitcnt lgkmcnt(0)\ns_branch L_mxb_{nm}")
    p.ool.append(q.text())
    pend = []
    fq = []; nxt = [3]; slot_of = {wkey(x): x for x in range(3)}
    def freed(sl):
        if nxt[0] < len(al.wo_l):
            slot_of[wkey(nxt[0])] = sl; fq.extend([(wkey(nxt[0]), sl, 0), (wkey(nxt[0]), sl, 1)]); nxt[0] += 1
    extra = zs
    for i, (k, j) in enumerate(al.wo_order):
        key = ('o', k, j)
        p.wl(f"O{j}")
        if key in al.lds:
            sl = slot_of[key]
            while any(x[0] == key for x in fq): fillh(*fq.pop(0))
            p.wl(f"W{sl}")
        else: sl = None
        assert not any(vr(DACC[k] + x, 2) in z for z in extra for x in (0, 2))
        p.info = 's3'
        p.e(f"v_smfmac_f32_16x16x64_bf16 {vr(DACC[k], 4)}, {vr(OA[j], 4)}, {vr(wreg(key, sl), 8)}, v{vIdx}")
        if sl is not None: freed(sl)
        if i in (0, 1): rdO(i + 2)
        if i == 1: p.e(extra.pop(0))
        if fq and i >= cfg.get('wofd', 2): fillh(*fq.pop(0))
        if pend and pend[0][0] <= i:
            while pend and pend[0][0] <= i:
                _, ops = pend.pop(0)
                for o, tg in ops: p.e(o, tag=tg)
                if ops[-1][1] == "st1":
                    stamp(7)
                    if cfg.get('slot4', True): freed(3)
                if ops[-1][1] == "st0" and cfg.get('s3'): stamp(3)
                if ops[-1][1] == "st3" and cfg.get('s3'): stamp(2)
        elif extra: p.e(extra.pop(0))
        if j == 3:
            d = DACC[k]
            c0 = (f"v_cvt_pk_bf16_f32 v{d}, v{d}, v{d+2}", None)
            c1 = (f"v_cvt_pk_bf16_f32 v{d+1}, v{d+1}, v{d+3}", None)
            c2 = (f"v_bfi_b32 v{d}, 1, s{sT}, v{d}", None)
            c3 = (f"buffer_store_dwordx2 {vr(d, 2)}, v{vST}, {WSR}, s{sX[k]} offen{ST}", f"st{k}")
            if k <= cfg.get('wo_burst', 4): pend.append((i + cfg.get('wod', (2, 2, 2, 2, 2))[k], [c0, c1, c2, c3]))
            else: pend += [(i + 2, [c0]), (i + 3, [c1]), (i + 4, [c2, c3])]
    assert not extra
    for _, ops in pend:
        for o, tg in ops: p.e(o, tag=tg)
        if ops[-1][1] == "st3" and cfg.get('s3'): stamp(2)
    stamp(8)
    nb = [0]
    def extra_dep(o):
        t, tg = o['text'], o['tag'] or ''
        R, W = set(), set()
        vs_ = lambda b, n: {('v', b + i) for i in range(n)}
        if t == 's_barrier': R.add('bar'); W |= {'bar', f'b{nb[0]}'}; nb[0] += 1
        if tg in ('A3', 'A4', 'A5', 'A6', 'A7', 'A8', 'TG'): R.add('b0')
        if tg in ('Q0', 'Q1'): R.add('b1')
        if tg in ('K0', 'K1'): R.add('b2')
        if tg in ('P0', 'P1'): R.add('b3')
        if tg in ('O1', 'O2', 'O3'): R.add('b4')
        if tg == 'wo': W.add('wo')
        if tg == 'O0': R.add('wo')
        if tg in ('K', 'V'): R.add('b0' if early else 'pf')
        if tg in ('pub', 'PF'): W |= {'pf', 'pg'}; R.add('b0' if 'F' in hooks else 'f1')
        if tg.startswith('st'): W.add('st')
        if tg == 'D8': W.add('g8')
        if t.startswith('v_smfmac') and o['info'] == 's0': R.add('g8')
        if t.startswith('v_smfmac'): R |= {'s0': {'f1'}, 's1': {'f1'}, 's2': {'f1'}, 's2b': {'f1', 'pg'}, 's3': {'f3'}}[o['info']]
        if t.startswith('s_cbranch'): R.add('bar'); W.add('bar')
        if 'L_ra1' in t:
            W |= {'f1', ('v', vTmp), ('s', 'm0')}
            if n1 == 3: R |= vs_(a3, 4)
        if 'L_mx' in t: W.add('f3'); R |= {'wo', ('v', vTmp)} | vs_(KV, 2) | vs_(AK, 2) | vs_(VV, 8) | vs_(AV + 4, 4)
        return R, W
    p.flush(cfg.get('keys', KEYS), extra_dep, w, cache, (w, red))
    if 'names' in cfg: cfg['names'][role] = p.order
    p.e(f"s_branch L_ex_{nm}")
    i_ex = len(p.lines)
    p.e(f"L_ex_{nm}:")
    RD = AV; t1, t2 = AV + 4, AV + 5
    RL = "\n".join(f"buffer_load_dwordx4 {vr(a0+4*i, 4)}, v{vRD}, {WSR}, s{sRU} offen offset:{1024*i}{LD}" for i in range(4))
    def delay(c):
        while c > 0:
            k = min(c, 16); p.e(f"s_nop {k-1}"); c -= k
    def instrument():
        if stamps:
            stamp(11)
            if cfg.get('abs'): p.e(f"s_memrealtime s[{sST+4}:{sST+5}]")
            if sel is None or sel: p.e("s_waitcnt lgkmcnt(0)")
            if cfg.get('abs'):
                p.e(f"s_lshl_b64 exec, 1, s{sS}")
                for i in range(12):
                    if i in (0, 2) or i in sel: p.e(f"v_mov_b32 v{80+i}, s{sST+2*i}")
                for i in range(4): p.e(f"v_mov_b32 v{92+i}, s{95+i}")
                p.e("s_mov_b64 exec, -1")
            else:
                for i in range(1, 12):
                    if sel is None or i in sel: p.e(f"s_sub_u32 s{sA}, s{sST+2*i}, s{sST}\ns_add_u32 s{84+i}, s{84+i}, s{sA}")
            p.e(f"s_cmp_eq_u32 s{sS}, 4\ns_cbranch_scc1 L_rst_{nm}\nL_rsb_{nm}:")
            if red and sel == []: p.ool.append(f"L_rst_{nm}:\ns_mov_b32 s95, 0\ns_mov_b64 s[96:97], 0\ns_mov_b32 s98, 0\ns_branch L_rsb_{nm}")
            else: p.ool.append(f"L_rst_{nm}:\ns_memtime s[60:61]\ns_memrealtime s[62:63]\ns_waitcnt lgkmcnt(0)\ns_sub_u32 s59, s60, s84\ns_mov_b32 s84, s60\n" + "".join(f"s_mov_b32 s{i}, 0\n" for i in range(85, 99)) + ("s_mov_b32 s94, s62\n" if sel == [] else "") + f"s_branch L_rsb_{nm}")
    KMS = f"s_mul_i32 s{sKM}, s{sS}, {MHS}\ns_add_u32 s{sKM}, s{sKM}, {WS_MH - WS_MEM}"
    ipos = max(script.index('b'), script.index('R') if red else 0)
    for ia, act in enumerate(script):
        op, arg = act[0], act[1:]
        if op == 'y':
            p.e(f"s_add_u32 s{sS}, s{sS}, 1\ns_not_b32 s{sT}, s{sT}\ns_not_b32 s{sTn}, s{sTn}")
        elif op == 'u':
            p.e(f"s_add_u32 s{sKV}, s{sKV}, {0 if cfg.get('nokv') else 524288}")
            if w in (0, 3) or not pf2: p.e(f"s_add_u32 s{sPF}, s{sPF}, {0 if cfg.get('nokv') == 2 else 524288}")
            if red: p.e(KMS)
        elif op == 'v':
            p.e(f"v_and_b32 v{vTmp}, 0x70, v{vL16}")
            p.e(f"ds_read_b128 {vr(SEL, 4)}, v{vTmp} offset:{L_SEL}", tag="SEL")
            p.e(f"v_bfe_u32 v{vMask}, v{vL16}, 4, 2\nv_lshrrev_b32_e64 v{vMask}, v{vMask}, 1")
        elif op == 'z': p.e(zero(AQ, 16))
        elif op == 'e':
            if cfg.get('fused'):
                p.e(f"s_add_u32 s{sEv}, s{sS}, 1\ns_lshr_b32 s{sEv}, s{sEv}, 2")
                p.wv("pub")
                p.e(f"""
L_evb_{nm}:
v_max_u32 v{vMS}, v{vMS}, v{vMask}
v_bfe_u32 v{vMask}, v{vL16}, 2, 6
v_cmp_ge_u32 vcc, s{sEv}, v{vMS}
s_cbranch_vccnz L_ev_{nm}
s_add_u32 s{sEv}, s{sS}, 4
s_lshr_b32 s{sEv}, s{sEv}, 2
s_min_u32 s{sEv}, s{sEv}, 15
v_cmp_ge_u32 vcc, s{sEv}, v{vMS}
s_cmp_eq_u64 vcc, 0
s_cselect_b32 s{sRU}, {WS_BYTES}, s{sFL}
""")
                p.ool.append(f"L_ev_{nm}:\nbuffer_load_dword v{vMask}, v{vMask}, {WSR}, s{sFL} offen sc0 sc1\n{BUD}s_waitcnt vmcnt(0)\ns_branch L_evb_{nm}")
        elif op == 'f': fh(0, 0, 0); fh(0, 0, 1)
        elif op == 'x': p.e(zero(AV, 8))
        elif op == 't': p.e(TGA)
        elif op == 'L':
            p.e(f"v_mov_b32 v{vTmp}, s{sS}"); p.e(f"ds_write_b32 v{vL16}, v{vTmp} offset:{L_K}", tag="lf")
        elif op == 'l':
            p.e(f"v_mov_b32 v{a1+3}, 0\nL_lw_{nm}:")
            p.e(f"ds_read_b32 v{a1+3}, v{vL16} offset:{L_K}", tag="!lw")
            p.e(f"v_cmp_ne_u32 vcc, s{sS}, v{a1+3}\ns_sub_u32 s{sBud}, s{sBud}, 1\n{zero(AQ, 4)}\ns_cbranch_scc1 L_exit\n{zero(AK, 6)}\ns_cbranch_vccnz L_lw_{nm}")
        elif op == 'w': p.wv(arg)
        elif op == 'd': delay(int(arg))
        elif op == 'R':
            for i, x in enumerate(RL.split("\n")): p.e(x, tag=f"R{i}")
            stamp(9)
        elif op == 'r':
            p.wl("SEL")
            p.wv("R0")
            p.e(f"L_r_{nm}:")
            for i in range(4):
                p.wv(f"R{i}")
                p.e(f"{MF} {vr(RD, 4)}, {vr(a0 + 4*i, 4)}, {vr(SEL, 4)}, {vr(RD, 4) if i else 0}")
                if i == 1: p.e(f"v_bitop3_b32 v{t1}, v{a0}, v{a1}, s{sTn} bitop3:0x7e")
            p.e(f"""
v_bitop3_b32 v{t2}, v{a2}, v{a3}, s{sTn} bitop3:0x7e
v_bitop3_b32 v{t1}, v{t1}, v{t2}, 1 bitop3:0xa8
v_cmp_ne_u32 vcc, 0, v{t1}
v_nop
v_nop
v_nop
v_nop
v_nop
v_pk_add_f32 {vr(RD, 2)}, {vr(RD, 2)}, {vr(RD+2, 2)}
v_cvt_pk_bf16_f32 v{t1}, v{RD}, v{RD+1}
v_bfi_b32 v{t1}, v{vMask}, s{sT}, v{t1}
s_cbranch_vccnz L_rr_{nm}
""")
            p.ool.append(f"L_rr_{nm}:\n{RL}\n{cnt(2)}{BUD}s_waitcnt vmcnt(0)\ns_branch L_r_{nm}")
            p.e(f"buffer_store_dword v{t1}, v{vMS}, {WSR}, 0 offen{ST}", tag="ms")
            stamp(10)
            p.e(f"s_cmp_eq_u32 s{sS}, 63\nv_mov_b32 v{vMask}, v{t1}\ns_cbranch_scc1 L_done_{nm}")
        elif op in 'KP':
            if act not in hooks and act not in cfg.get('top', ('E',)) and not (op == 'K' and cfg.get('nok')): hook(act)
        elif op == 'c': p.e("s_barrier")
        elif op == 'b':
            p.e("s_barrier")
            if not red: p.e(f"s_cmp_eq_u32 s{sS}, 63\ns_cbranch_scc1 L_done_{nm}")
        elif op == 'D':
            edma([int(c) for c in arg])
            if arg[0] == '0': stamp(6)
        elif op == 'p':
            p.e(f"v_bfe_u32 v{vTmp}, v{vL16}, 2, {arg}\ns_mov_b32 m0, {L_MEM}")
            if red: p.e(f"v_mov_b32 v{AV+6}, s{sT}")
        elif op == 'F':
            p.e("s_mov_b64 exec, 1"); p.e(f"buffer_store_dword v{AV+6}, v{vL16}, {WSR}, s{sSYw} offen{ST}", tag="fl"); p.e("s_mov_b64 exec, -1")
        elif op == 'U' and fast:
            a_, ts = arg.split(':'); ts = [int(c) for c in ts]
            n, N = len(ts), int(a_[0])
            def attempt(r):
                p.e(f"buffer_load_dword v{KV+r}, v{vTmp}, {WSR}, s{sSYr} offen{LD}", tag="!sp")
                p.e(cnt(3)); delay(cfg.get('lag', 0))
                for x, tg in dma(ts)[1:]: p.e(x, tag="x")
            fill_ = cfg.get('ufill', ['z', 'xt'])
            for r in range(N - 1):
                attempt(r)
                for c in fill_[r]: p.e({'z': zero(AQ, 16), 'x': zero(AV, 8), 't': TGA}[c])
                delay(int(a_[1:] or 0))
            p.e(f"L_sp_{nm}:")
            for r in range(N):
                attempt((r + N - 1) % N)
                p.e(f"s_waitcnt vmcnt({(N-1)*(n+1) + n})\nv_cmp_ne_u32 vcc, s{sT}, v{KV+r}\ns_cbranch_vccz L_spx_{nm}")
            p.e(f"s_sub_u32 s{sBud}, s{sBud}, 1\ns_cbranch_scc0 L_sp_{nm}\ns_endpgm\nL_spx_{nm}:")
            p.vmq = [(f"D{t}", set()) for t in ts] + [("!x", set())] * ((N-1)*(n+1))
            stamp(6)
        elif op in 'MU':
            a_, ts = arg.split(':'); ts = [int(c) for c in ts]
            n, N = len(ts), (int(a_[0]) if fast else 1)
            if op == 'U': p.e(zero(AQ, 24)); p.e(TGA)
            p.e(f"v_mov_b32 v{a4+3}, s{sTn}\nL_sp_{nm}:")
            p.e(f"buffer_load_dword v{a4+3}, v{vTmp}, {WSR}, s{sSYr} offen{LD}", tag="!sp")
            p.e(f"{cnt(3)}s_sub_u32 s{sBud}, s{sBud}, 1\ns_cbranch_scc1 L_exit")
            delay(cfg.get('lag', 0))
            for x, tg in dma(ts)[1:]: p.e(x, tag="x")
            delay(int(a_[1:] or 0))
            p.e(f"s_waitcnt vmcnt({(N-1)*(n+1) + n})\nv_cmp_ne_u32 vcc, s{sT}, v{a4+3}\ns_cbranch_vccnz L_sp_{nm}")
            p.vmq = [(f"D{t}", set()) for t in ts] + [("!x", set())] * ((N-1)*(n+1))
            stamp(6)
        else: raise Exception(act)
        if ia == ipos: instrument()
    if probe is not None: probe.extend(t for t, _ in p.vmq)
    ls = p.lines
    p.lines = ls[:i_top] + [f"s_branch L_top_{nm}", ".p2align 6"] + ls[i_ex:] + ls[i_top:i_ex]
    p.e(f"L_done_{nm}:")
    p.fence(); p.ldsq = []; p.vmq = []
    p.e(gate(cfg, 'gate_ce', 'e' + nm))
    if red: p.e(KMS); p.e(PUB)
    p.e(tl(cfg, 4, AK, AK + 1))
    if cfg.get('abs'):
        p.e(f"s_lshl_b32 s{sA}, s{sH}, 14\ns_add_u32 s{sA}, s{sA}, {0x100000 + 4096*w}")
        for i in range(4): p.e(f"buffer_store_dwordx4 v[{80+4*i}:{83+4*i}], v{vL16}, {WSR}, s{sA} offen offset:{1024*i}")
    if stamps:
        p.e("s_memtime s[60:61]\ns_memrealtime s[62:63]\ns_waitcnt lgkmcnt(0)\ns_sub_u32 s84, s60, s84")
        if sel == []: p.e("s_sub_u32 s94, s62, s94")
        p.e(f"s_lshl_b32 s{sA}, s{sH}, 8\ns_add_u32 s{sA}, s{sA}, {WS_STMP + 64*w}\ns_waitcnt vmcnt(0) lgkmcnt(0)\nv_mov_b32 v{vL16}, 0")
        p.e("s_lshr_b32 s59, s59, 4\ns_lshl_b32 s59, s59, 16\ns_or_b32 s99, s99, s59")
        for i in range(16): p.e(f"v_mov_b32 v{20+i}, s{84+i}")
        for i in range(4): p.e(f"buffer_store_dwordx4 v[{20+4*i}:{23+4*i}], v{vL16}, {WSR}, s{sA} offen offset:{16*i}")
    p.e("s_waitcnt vmcnt(0) lgkmcnt(0)\ns_endpgm")

def chain_body(cfg):
    out = []
    Alloc.ORD = cfg.get('word', 0); Alloc.LK = tuple(cfg.get('lk', (1, 2, 3)))
    p = Prog()
    if cfg.get('stamps'): p.e("s_memrealtime s[98:99]\ns_waitcnt lgkmcnt(0)\ns_mov_b32 s59, s98")
    setup_common(p)
    l, n, g, t0, t1 = 20, 21, 22, 23, 24
    p.e(f"""
v_lshrrev_b32 v1, 6, v0
v_and_b32 v{n}, 15, v0
v_readfirstlane_b32 s{sW}, v1
v_bfe_u32 v{g}, v0, 4, 2
""")
    p.e(coop_src(26, 27, n, g, t0, f"v_lshrrev_b32 v{t1}, 1, v{g}\nv_and_b32 v{t0}, 1, v{g}\nv_lshl_add_u32 v{t0}, v{t1}, 3, v{t0}", f"v_lshlrev_b32 v{t0}, 13, v{t0}"))
    p.e(f"""
s_lshl_b32 s{sA}, s{sH}, 8
s_lshl_b32 s{sB}, s{sW}, 17
s_add_u32 s{sB}, s{sB}, s{sA}
s_mul_i32 s{sD}, s{sW}, {L_W[1] - L_W[0]}
s_min_u32 s{sD}, s{sD}, {L_W[3] - L_W[0]}
s_waitcnt lgkmcnt(0)
""")
    al = Alloc(0)
    first = [t for t in range(9) if ('q', t, 0) in al.reg][:cfg.get('nh', 6)]
    for i, t in enumerate([] if cfg.get('noload') else first):
        for d in range(4):
            p.e(f"s_add_u32 s{sC}, s{sB}, {(64*t + 2*d) * 8192}\ns_add_u32 m0, s{sD}, {L_W[0] + 4096*((i - 27) % 8) + 1024*d}")
            p.e(f"buffer_load_dwordx4 v{26 + (d >> 1)}, s[{S_WQ}:{S_WQ+3}], s{sC} offen lds")
    p.e(f"""
s_cmp_eq_u32 s{sW}, 1
s_cbranch_scc1 L_pro_w1r
s_cmp_eq_u32 s{sW}, 2
s_cbranch_scc1 L_pro_w2r
s_cmp_eq_u32 s{sW}, 3
s_cbranch_scc1 L_pro_w3
s_cmp_lt_u32 s{sH}, 8
s_cbranch_scc1 L_pro_w0r
s_branch L_pro_w0
L_exit:
s_endpgm
""")
    out.append(p.text())
    for w, red in ROLES:
        nm = f"w{w}{'r' if red else ''}"
        p = Prog()
        p.ldsq.append(('smem', set()))
        p.e(f"L_pro_{nm}:")
        prologue(p, w, red, cfg)
        n0 = p.nops_added
        loop(p, w, red, True, cfg)
        if cfg.get('verbose'): print(nm, "nops in loop", p.nops_added - n0)
        if cfg.get('trace') is not None:
            nv = len(cfg['trace'])
            txt = p.text(); i0 = txt.index(f"s_cbranch_scc0 L_slow_{nm}\n") + len(f"s_cbranch_scc0 L_slow_{nm}\n")
            pro, body = txt[:i0], txt[i0:]
            m_ = re.search(rf"L_rdv2_{nm}:.*?s_branch L_rdv_{nm}\n", body, re.S)
            extra_ = m_.group(0).replace("L_exit", f"L_exit_{nm}"); body = body.replace(m_.group(0), "")
            o = pro.replace("L_exit", f"L_exit_{nm}") + f"L_slow_{nm}:\ns_and_b32 s{sA}, s{sH}, {nv-1}\n"
            for v in range(nv): o += f"s_cmp_eq_u32 s{sA}, {v}\ns_cbranch_scc1 L_var{v}_{nm}\n"
            o += "s_endpgm\n" + extra_
            for v in range(nv):
                ls = body.split("\n")
                top = ls.index(f"L_ex_{nm}f:"); tp2 = ls.index(f"L_top_{nm}f:")
                if cfg.get('solo'):
                    dn = ls.index(f"L_done_{nm}f:")
                    ls = ls[:top] + [x for x in ls[top:dn] if not (x.startswith('buffer_') and cfg['solo'] in x) ] + ls[dn:]
                cfg.setdefault('listing', {})[nm] = ls[top:]
                if cfg.get('refbar'):
                    bars = [x for x in range(tp2, len(ls)) if ls[x] == 's_barrier']
                    ls.insert(bars[cfg['refbar'] - 1] + 1, ls[tp2 + 1]); del ls[tp2 + 1]
                    cfg['listing'][nm] = ls[top:]
                for k, pos in sorted(enumerate(cfg['trace'][v]), key=lambda x: -x[1]):
                    ls.insert(top + pos, f"s_memtime s[{sST+2*k+2}:{sST+2*k+3}]")
                o += f"L_var{v}_{nm}:\n" + re.sub(rf"(L_\w+_{nm}f)", rf"\1_{v}", "\n".join(ls)).replace("L_exit", f"L_exit_{nm}")
            out.append(o + f"L_exit_{nm}:\ns_endpgm\n")
            continue
        out.append(p.text())
        p = Prog()
        p.e(f"L_slow_{nm}:")
        loop(p, w, red, False, cfg)
        out.append(p.text())
    t = "".join(out)
    hot = {}
    def cut(m):
        hot.setdefault(m.group(3), []).append(m.group(1)); return ""
    t = re.sub(r"(\.p2align 6\nL_ex_(w\dr?)([fs](?:_\d+)?):\n.*?s_branch L_ex_\2\3\n)(?=L_done_)", cut, t, flags=re.S)
    i = t.index("L_pro_w2r:")
    t = t[:i] + "".join("".join(hot[k]) for k in sorted(hot)) + t[i:]
    if cfg.get('nocheck'): t = re.sub(r"v_cmp_ne_u32 vcc, 0, (v\d+)", r"v_cmp_gt_u32 vcc, 0, \1", t)
    if cfg.get('nocheck') or cfg.get('abs'): t = re.sub(r"s_and_b64 vcc, vcc, s\[\d+:\d+\]", "s_and_b64 vcc, vcc, 0", t)
    if cfg.get('nosm'): t = re.sub(r"v_smfmac[^\n]*", "s_nop 0", t)
    if cfg.get('nobar'): t = re.sub(r"s_barrier", "s_nop 0", t)
    return t

if __name__ == "__main__":
    t = chain_body({'verbose': True})
    open('chain_body.s', 'w').write('.amdgcn_target "amdgcn-amd-amdhsa--gfx950"\n.text\n' + t)
```

```python
from asmgen import *
from chain import WS_MH, MHS, WS_KVX, WS_BYTES, WS_FLG, SCALE, tl, gate, coop_src, coop_tr
import math, struct
WS_QX  = 0x3000000
WS_O   = 0x4000000
WS_OA  = 0x5000000
WS_OMG = 0x5300000
F_KV = WS_FLG
F_O = WS_FLG + 4096
f2u = lambda x: struct.unpack('<I', struct.pack('<f', x))[0]
NEG = f2u(-1e30)
SC = " sc0 sc1"
S_WS, S_X, S_W0, S_W1, S_W2, S_DBG, S_OUT, S_G = 4, 8, 12, 16, 20, 24, 28, 64
sP0, sP1, sW, sI, sBud = 32, 33, 34, 35, 36
sA, sB, sC, sD, sE, sF = 37, 38, 39, 40, 41, 42
sXs, sXm = 43, 44
sSCp = 46
sP2, sP3 = 48, 49
def R(b): return f"s[{b}:{b+3}]"
def srd(p, b, slot, n):
    p.e(f"s_load_dwordx2 s[{b}:{b+1}], s[0:1], {slot}\ns_mov_b32 s{b+2}, {n}\ns_mov_b32 s{b+3}, 0x20000")
MF = "v_mfma_f32_16x16x32_bf16"
XBUF = 36864

def poll(p, name, srdb, vaddr, soff, off, vt, test, sleep=4):
    p.e(f"""
s_branch {name}_in
{name}:
s_sleep {sleep}
{name}_in:
buffer_load_dword v{vt}, v{vaddr}, {R(srdb)}, {soff} offen offset:{off}{SC}
s_sub_u32 s{sBud}, s{sBud}, 1
s_cbranch_scc1 L_exit_w
s_waitcnt vmcnt(0)
{test}
s_cbranch_scc0 {name}
""")

def lanes(p, l, n, g):
    p.e(f"v_and_b32 v{l}, 63, v0\nv_and_b32 v{n}, 15, v0\nv_bfe_u32 v{g}, v0, 4, 2\nv_lshrrev_b32 v1, 6, v0\nv_readfirstlane_b32 s{sW}, v1")

def x_addr(p, vXg, vXr, l, n, g, t0, t1):
    p.e(f"""
v_lshrrev_b32 v{t0}, 2, v{l}
v_mul_u32_u24 v{vXg}, 1152, v{t0}
v_lshrrev_b32 v{t0}, 5, v{l}
v_lshlrev_b32 v{t0}, 1, v{t0}
v_and_b32 v{t1}, 3, v{l}
v_xor_b32 v{t0}, v{t0}, v{t1}
v_lshl_add_u32 v{vXg}, v{t0}, 4, v{vXg}
v_lshrrev_b32 v{t0}, 3, v{n}
v_lshlrev_b32 v{t0}, 1, v{t0}
v_xor_b32 v{t0}, v{t0}, v{g}
v_lshlrev_b32 v{t0}, 4, v{t0}
v_lshl_add_u32 v{vXr}, v{n}, 6, v{t0}
""")

def x_dma(j, vXg):
    return f"s_add_u32 s{sA}, s{sXs}, {128*j}\ns_add_u32 m0, s{sXm}, {4096*j}\ns_nop 0\nbuffer_load_dwordx4 v{vXg}, {R(S_X)}, s{sA} offen lds"

def load_weights(p, pairs, rowstride, vTr, sRing, nslot, wreg, mid=None):
    items = [(pi, kk) for pi in range(len(pairs)) for kk in range(9)]
    D = nslot - 1
    def issue(i):
        pi, kk = items[i]; b, va, so = pairs[pi]
        for d in range(4):
            p.e(f"s_add_u32 s{sA}, s{so}, {(64*kk + 16*d) * rowstride}\ns_add_u32 m0, s{sRing}, {4096*(i % nslot) + 1024*d}")
            p.e(f"buffer_load_dwordx4 v{va}, {R(b)}, s{sA} offen lds", tag=f"d{i}")
    for i in range(D): issue(i)
    if mid: mid()
    for i, (pi, kk) in enumerate(items):
        p.wv(f"d{i}")
        for T in range(2):
            for k2 in range(2):
                for q in range(2):
                    p.e(f"ds_read_b64_tr_b16 {vr(wreg(2*pi + T, 2*kk + k2) + 2*q, 2)}, v{vTr} offset:{4096*(i % nslot) + 2048*k2 + 256*q + 32*T}", tag="tr")
        p.e("s_waitcnt lgkmcnt(0)")
        if i + D < len(items): issue(i + D)

def load_weights_coop(p, mats, vG, sCol, sRing, nslot, wreg, mid):
    items = [(pi, kk) for pi in range(len(mats)) for kk in range(9)]
    def issue(i):
        pi, kk = items[i]
        for d in range(4):
            p.e(f"s_add_u32 s{sA}, s{sCol}, {(64*kk + 4*d) * 8192}\ns_add_u32 m0, s{sRing}, {4096*(i % nslot) + 1024*d}")
            p.e(f"buffer_load_dwordx4 v{vG[d >> 1]}, {R(mats[pi][1])}, s{sA} offen lds", tag=f"d{i}")
    for i in range(nslot): issue(i)
    mid()
    for i, (pi, kk) in enumerate(items):
        p.wv(f"d{i}")
        p.e("s_barrier")
        if i >= 1 and i + nslot - 1 < len(items): issue(i + nslot - 1)
        for T in range(2):
            for k2 in range(2):
                for q in range(2):
                    p.e(f"ds_read_b64_tr_b16 {vr(wreg(2*mats[pi][0] + T, 2*kk + k2) + 2*q, 2)}, v{mats[pi][2][k2][T]} offset:{4096*(i % nslot) + 1024*q}", tag="tr")
        p.e("s_waitcnt lgkmcnt(0)")

def gemm_block(p, NT, wreg, accreg, XS, vXr, vXg, w_is_a, mid=None):
    def rd(ks):
        for tt in range(2): p.e(f"ds_read_b128 {vr(XS + 8*(ks & 1) + 4*tt, 4)}, v{vXr} offset:{(2*ks + tt) * 1024}", tag=f"x{ks}")
    rd(0)
    for ks in range(18):
        if ks + 1 < 18: rd(ks + 1)
        p.wl(f"x{ks}")
        for ti in range(NT):
            for tt in range(2):
                a = accreg(ti, tt); x = vr(XS + 8*(ks & 1) + 4*tt, 4); wv = vr(wreg(ti, ks), 4)
                A, B = (wv, x) if w_is_a(ti) else (x, wv)
                p.e(f"{MF} {vr(a, 4)}, {A}, {B}, {vr(a, 4) if ks else 0}")
            if ti == 1 and ks < 9: p.e(x_dma(ks, vXg), tag="xd")
            if ti == 1 and ks == 10 and mid: mid()

def tr_addr(p, v, n, g, t0, rowbytes, gmul):
    p.e(f"""
v_lshrrev_b32 v{t0}, 2, v{n}
v_lshl_add_u32 v{t0}, v{g}, {gmul.bit_length()-1}, v{t0}
v_mul_u32_u24 v{v}, {rowbytes}, v{t0}
v_and_b32 v{t0}, 3, v{n}
v_lshl_add_u32 v{v}, v{t0}, 3, v{v}
""")

def role_q(cfg):
    p = Prog()
    RT = lambda i: f"s_memrealtime s[{80+2*i}:{81+2*i}]" if cfg.get('rtl') else ""
    RTS = lambda a, b: "".join(f"v_mov_b32 v{a}, s{80+2*x}\nbuffer_store_dword v{a}, v{b}, s[4:7], s95 offen offset:{(6, 7, 14, 15)[x]*4}\n" for x in range(4)) if cfg.get('rtl') else ""
    sH, sR = sP0, sP1
    vL16, vXg, vXr, vKst, vGq, vGv, vTr, vZ, l, n, g, t0, t1 = range(1, 14)
    ACC, XS, WB = 16, 64, 80
    wreg = lambda ti, ks: WB + 72*ti + 4*ks
    acc = lambda ti, tt: ACC + 8*ti + 4*tt
    p.e("L_role_q:")
    srd(p, S_WS, 104, WS_BYTES); srd(p, S_X, 0, 2359296); srd(p, S_W0, 40, 4718592); srd(p, S_W1, 48, 4718592); srd(p, S_W2, 56, 4718592); srd(p, S_DBG, 96, 256)
    lanes(p, l, n, g)
    x_addr(p, vXg, vXr, l, n, g, t0, t1)
    p.e(coop_src(vGq, vGv, n, g, t0, "", f"v_lshlrev_b32 v{t0}, 13, v{g}"))
    p.e(f"""
v_lshlrev_b32 v{vL16}, 4, v{l}
s_mul_i32 s{sB}, s{sW}, 20480
s_add_u32 s{sB}, s{sB}, {2*XBUF}
s_lshl_b32 s{sC}, s{sH}, 8
s_lshl_b32 s{sD}, s{sW}, 17
s_add_u32 s{sC}, s{sC}, s{sD}
s_lshl_b32 s{sXs}, s{sR}, 1
s_and_b32 s{sE}, s{sW}, 1
s_add_u32 s{sXs}, s{sXs}, s{sE}
s_mul_i32 s{sXs}, s{sXs}, 18432
s_lshr_b32 s{sE}, s{sW}, 1
s_lshl_b32 s{sE}, s{sE}, 6
s_add_u32 s{sXs}, s{sXs}, s{sE}
s_lshl_b32 s{sXm}, s{sW}, 10
s_mov_b32 s{sBud}, {cfg.get('budget', 400000)}
s_mov_b32 s{sSCp}, {SCALE:#x}
s_mov_b32 s{sSCp+1}, {SCALE:#x}
v_mov_b32 v{vZ}, 0
; vKst = (n>>2)*4096 + g*256 + (n&3)*16
v_lshrrev_b32 v{t0}, 2, v{n}
v_lshlrev_b32 v{vKst}, 12, v{t0}
v_lshl_add_u32 v{vKst}, v{g}, 8, v{vKst}
v_and_b32 v{t0}, 3, v{n}
v_lshl_add_u32 v{vKst}, v{t0}, 4, v{vKst}
s_waitcnt lgkmcnt(0)
""")
    TQ = [[16, 17], [18, 19]]; TV = [[20, 21], [22, 23]]
    def mid():
        for j in range(9): p.e(x_dma(j, vXg), tag="xd")
        reg = [2*XBUF + 20480*x for x in range(4)]
        for T in range(2):
            p.e(f"s_lshr_b32 s{sD}, s{sW}, 1\ns_lshl_b32 s{sD}, s{sD}, 3\ns_and_b32 s{sE}, s{sW}, 1\ns_lshl_b32 s{sE}, s{sE}, 1\ns_add_u32 s{sD}, s{sD}, s{sE}\ns_add_u32 s{sD}, s{sD}, {4*T}")
            p.e(f"s_lshl_b32 s{sE}, s{sW}, 2\ns_add_u32 s{sE}, s{sE}, {2*T}")
            for k2 in range(2):
                p.e(coop_tr(TQ[k2][T], f"s{sD}", reg[2*k2], reg[2*k2 + 1], n, g, t0, t1))
                p.e(coop_tr(TV[k2][T], f"s{sE}", reg[2*k2], reg[2*k2 + 1], n, g, t0, t1))
    load_weights_coop(p, [(0, S_W0, TQ), (1, S_W1, TQ), (2, S_W2, TV)], (vGq, vGv), sC, sB, 5, wreg, mid)
    sQ, sK, sV = sC, sD, sE
    p.e(tl(cfg, 1, t0, t1, True))
    p.e(f"""
s_lshl_b32 s{sF}, s{sR}, 5
s_add_u32 s{sF}, s{sF}, s{sH}
s_lshl_b32 s{sQ}, s{sF}, 13
s_lshl_b32 s{sA}, s{sW}, 11
s_add_u32 s{sQ}, s{sQ}, s{sA}
s_add_u32 s{sQ}, s{sQ}, {WS_QX}
s_lshl_b32 s{sK}, s{sF}, 14
s_add_u32 s{sK}, s{sK}, {WS_KVX}
s_lshl_b32 s{sA}, s{sW}, 12
s_add_u32 s{sV}, s{sK}, s{sA}
s_lshr_b32 s{sA}, s{sW}, 1
s_lshl_b32 s{sA}, s{sA}, 10
s_add_u32 s{sK}, s{sK}, s{sA}
s_and_b32 s{sA}, s{sW}, 1
s_lshl_b32 s{sA}, s{sA}, 6
s_add_u32 s{sK}, s{sK}, s{sA}
s_mov_b32 s{sI}, 0
s_mov_b32 s{sP2}, {XBUF}
s_lshl_b32 s{sP3}, s{sH}, 5
s_lshl_b32 s{sA}, s{sR}, 2
s_add_u32 s{sP3}, s{sP3}, s{sA}
s_add_u32 s{sP3}, s{sP3}, s{sW}
s_lshl_b32 s{sP3}, s{sP3}, 2
s_add_u32 s{sP3}, s{sP3}, {F_KV}
""")
    p.e("s_waitcnt vmcnt(0)")
    PROG = f"v_mov_b32 v{t0}, s{sI}\ns_mov_b64 exec, 1\nbuffer_store_dword v{t0}, v{vZ}, {R(S_WS)}, s{sP3} offen{SC}\ns_mov_b64 exec, -1"
    def prog():
        p.wv("st"); p.e(PROG, tag="pg")
    p.raw(".p2align 6")
    p.e("L_q_loop:")
    p.fence(); p.vmq = [("xd", set()), ("pg", set())] + [("st", set())] * 6
    p.wv("xd")
    p.e(f"""
s_barrier
s_add_u32 s{sXs}, s{sXs}, {4*XBUF}
s_add_u32 s{sXm}, s{sXm}, s{sP2}
""")
    gemm_block(p, 6, wreg, acc, XS, vXr, vXg, lambda ti: ti < 4, prog)
    p.e(f"v_add_u32 v{vXr}, s{sP2}, v{vXr}\ns_sub_u32 s{sP2}, 0, s{sP2}")
    def pack(d, a, b):
        for i, x in enumerate((a, a + 2, b, b + 2)): p.e(f"v_cvt_pk_bf16_f32 v{d+i}, v{x}, v{x+1}")
    for tt in range(2):
        pack(XS + 4*tt, acc(0, tt), acc(1, tt))
        p.e(f"buffer_store_dwordx4 {vr(XS + 4*tt, 4)}, v{vL16}, {R(S_WS)}, s{sQ} offen offset:{1024*tt}{cfg.get('qfl', '')}", tag="st")
    for x in range(acc(2, 0), acc(4, 0), 2): p.e(f"v_pk_mul_f32 {vr(x, 2)}, {vr(x, 2)}, s[{sSCp}:{sSCp+1}]")
    for tt in range(2):
        pack(XS + 8 + 4*tt, acc(2, tt), acc(3, tt))
        p.e(f"buffer_store_dwordx4 {vr(XS + 8 + 4*tt, 4)}, v{vKst}, {R(S_WS)}, s{sK} offen offset:{128*tt}{cfg.get('kfl', SC)}", tag="st")
    for T in range(2):
        pack(acc(0, T), acc(4 + T, 0), acc(4 + T, 1))
        p.e(f"buffer_store_dwordx4 {vr(acc(0, T), 4)}, v{vL16}, {R(S_WS)}, s{sV} offen offset:{2048 + 1024*T}{cfg.get('kfl', SC)}", tag="st")
    p.e(f"""
s_add_u32 s{sQ}, s{sQ}, {4*32*8192}
s_add_u32 s{sK}, s{sK}, {4*32*16384}
s_add_u32 s{sV}, s{sV}, {4*32*16384}
s_add_u32 s{sI}, s{sI}, 1
s_cmp_lg_u32 s{sI}, 1
s_cbranch_scc1 L_q_n1
""")
    poll(p, "L_q_init", S_DBG, vZ, 0, 0, t0, f"v_readfirstlane_b32 s{sA}, v{t0}\ns_and_b32 s{sA}, s{sA}, 0xff\ns_cmp_eq_u32 s{sA}, 32")
    p.e(f"""
{PROG}
{tl(cfg, 2, t0, t1)}
s_waitcnt vmcnt(0)
L_q_n1:
s_cmp_lt_u32 s{sI}, 16
s_cbranch_scc1 L_q_loop
s_waitcnt vmcnt(0)
{PROG}
s_barrier
""")
    p.fence(); p.vmq = []
    p.e(tl(cfg, 3, t0, t1))
    Q, K, V, BI, ONE, DX, DM, KM, VM, P, PM, O, DL, M, MA, MS, AC, KG = 16, 32, 64, 80, 92, 96, 104, 108, 124, 132, 136, 140, 156, 160, 164, 176, 192, 208
    vMr, vL4, vMk, vEw, vVr = 14, 15, vGq, vGv, vXr
    sQ0, sQ1, sKx, sV0, sV1, sMH, sO, sMH8, sFO, sTg, sMH1 = range(50, 61)
    L_KX, L_VX = 9216, 13312
    p.e(f"""
s_lshr_b32 s{sA}, s{sW}, 1
s_and_b32 s{sB}, s{sW}, 1
s_lshl_b32 s{sQ0}, s{sF}, 13
s_lshl_b32 s{sC}, s{sA}, 10
s_add_u32 s{sQ0}, s{sQ0}, s{sC}
s_add_u32 s{sQ0}, s{sQ0}, {WS_QX}
s_lshl_b32 s{sKx}, s{sF}, 14
s_add_u32 s{sKx}, s{sKx}, {WS_KVX}
s_lshl_b32 s{sC}, s{sB}, 13
s_add_u32 s{sV0}, s{sKx}, s{sC}
s_mul_i32 s{sMH}, s{sR}, {MHS}
s_add_u32 s{sMH}, s{sMH}, {WS_MH}
s_and_b32 s{sTg}, s{sR}, 1
s_sub_u32 s{sTg}, s{sTg}, 1
s_lshl_b32 s{sC}, s{sR}, 1
s_add_u32 s{sC}, s{sC}, s{sA}
s_lshl_b32 s{sO}, s{sC}, 6
s_lshl_b32 s{sD}, s{sH}, 1
s_add_u32 s{sD}, s{sD}, s{sB}
s_add_u32 s{sO}, s{sO}, s{sD}
s_lshl_b32 s{sFO}, s{sO}, {cfg.get('fsh', 4)}
s_add_u32 s{sFO}, s{sFO}, {F_O}
s_lshl_b32 s{sO}, s{sO}, 11
s_add_u32 s{sO}, s{sO}, {WS_O}
s_mov_b32 s{sI}, 0
s_lshl_b32 s{sA}, s{sA}, 4
v_add_u32 v{t0}, s{sA}, v{n}
v_lshlrev_b32 v{t1}, 2, v{g}
v_sub_u32 v{t0}, v{t0}, v{t1}
v_mov_b32 v{t1}, {NEG:#x}
""")
    for kt in range(2):
        for r in range(4): p.e(f"v_cmp_le_i32 vcc, {16*kt + r}, v{t0}\nv_cndmask_b32 v{BI + 4*kt + r}, v{t1}, v{vZ}, vcc")
    p.e(f"v_cmp_gt_u32 vcc, 2, v{g}")
    for r in range(4): p.e(f"v_cndmask_b32 v{BI + 8 + r}, v{t1}, v{vZ}, vcc")
    for i in range(4): p.e(f"v_mov_b32 v{ONE+i}, 0x3f803f80")
    p.e(f"""
v_lshrrev_b32 v{t0}, 1, v{g}
v_lshlrev_b32 v{vMr}, 8, v{t0}
v_and_b32 v{t0}, 1, v{g}
v_lshl_add_u32 v{vMr}, v{t0}, 5, v{vMr}
v_bfe_u32 v{t0}, v{n}, 1, 2
v_lshl_add_u32 v{vMr}, v{t0}, 6, v{vMr}
v_and_b32 v{t0}, 1, v{n}
v_lshl_add_u32 v{vMr}, v{t0}, 4, v{vMr}
s_lshl_b32 s{sA}, s{sW}, 8
v_lshl_add_u32 v{vL4}, v{l}, 2, s{sA}
s_lshl_b32 s{sA}, s{sW}, 10
v_add_u32 v{vEw}, s{sA}, v{vL16}
s_lshl_b32 s{sB}, s{sB}, 11
v_add_u32 v{vVr}, s{sB}, v{vL16}
v_and_b32 v{t0}, 3, v{n}
v_cmp_eq_u32 vcc, 0, v{t0}
v_cndmask_b32 v{vMk}, 0, 1, vcc
""")
    p.e("L_at_loop:")
    p.fence()
    p.e(f"s_add_u32 s{sQ1}, s{sQ0}, 4096\ns_add_u32 s{sV1}, s{sV0}, 4096\ns_add_u32 s{sMH1}, s{sMH}, 4096\ns_add_u32 s{sMH8}, s{sMH}, 8192")
    for uT in range(4):
        p.e(f"buffer_load_dwordx4 {vr(Q + 4*uT, 4)}, v{vL16}, {R(S_WS)}, s{sQ0 if uT < 2 else sQ1} offen offset:{2048*(uT & 1)}", tag=f"Q{uT}")
        for kt in range(2):
            p.e(f"buffer_load_dwordx4 {vr(K + 16*kt + 4*uT, 4)}, v{vKst}, {R(S_WS)}, s{sKx} offen offset:{1024*(uT >> 1) + 64*(uT & 1) + 128*kt} sc1", tag=f"Q{uT}")
    for E in range(4):
        p.e(f"buffer_load_dwordx4 {vr(V + 4*E, 4)}, v{vL16}, {R(S_WS)}, s{sV0 if E < 2 else sV1} offen offset:{2048 + 1024*(E & 1)} sc1", tag="V")
    for uT in range(4):
        p.wv(f"Q{uT}")
        for kt in range(2):
            p.e(f"{MF} {vr(DX + 4*kt, 4)}, {vr(K + 16*kt + 4*uT, 4)}, {vr(Q + 4*uT, 4)}, {vr((DX if uT else BI) + 4*kt, 4)}")
    p.e(f"""
v_max3_f32 v{M}, v{DX}, v{DX+1}, v{DX+2}
v_max3_f32 v{M}, v{M}, v{DX+3}, v{DX+4}
v_max3_f32 v{M}, v{M}, v{DX+5}, v{DX+6}
v_max_f32 v{M}, v{M}, v{DX+7}
s_branch L_at_in
L_at_poll:
s_sleep {cfg.get('slq', 2)}
L_at_in:
buffer_load_dwordx4 {vr(MA, 4)}, v{vEw}, {R(S_WS)}, s{sMH} offen{SC}
buffer_load_dwordx4 {vr(MA+4, 4)}, v{vEw}, {R(S_WS)}, s{sMH1} offen{SC}
buffer_load_dword v{MA+8}, v{vL4}, {R(S_WS)}, s{sMH8} offen{SC}
s_sub_u32 s{sBud}, s{sBud}, 1
s_cbranch_scc1 L_exit_w
s_waitcnt vmcnt(0)
v_bitop3_b32 v{t0}, v{MA}, v{MA+4}, s{sTg} bitop3:0x7e
v_bitop3_b32 v{t1}, v{MA+8}, s{sTg}, v{vMk} bitop3:0x28
v_and_or_b32 v{t0}, v{t0}, 1, v{t1}
v_cmp_ne_u32 vcc, 0, v{t0}
s_cbranch_vccnz L_at_poll
{RT(0)}
ds_write_b128 v{vEw}, {vr(MA, 4)}
ds_write_b128 v{vEw}, {vr(MA+4, 4)} offset:4096
ds_write_b32 v{vL4}, v{MA+8} offset:8192
s_waitcnt lgkmcnt(0)
s_barrier
""")
    def rdm(ks): p.e(f"ds_read_b128 {vr(MS + 4*(ks & 3), 4)}, v{vMr} offset:{512*ks}", tag=f"m{ks}")
    for ks in range(3): rdm(ks)
    for ks in range(18):
        if ks + 3 < 18: rdm(ks + 3)
        p.wl(f"m{ks}")
        x = vr(MS + 4*(ks & 3), 4)
        for j in range(4):
            wv = vr(wreg(2 + j, ks), 4); a = vr(AC + 4*j, 4)
            A_, B_ = (wv, x) if j < 2 else (x, wv)
            p.e(f"{MF} {a}, {A_}, {B_}, {a if ks else 0}")
    for x in range(AC, AC + 8): p.e(f"v_mul_f32 v{x}, s{sSCp}, v{x}")
    for i in range(4): p.e(f"v_cvt_pk_bf16_f32 v{KG+i}, v{AC+2*i}, v{AC+2*i+1}")
    p.e(f"ds_write_b128 v{vEw}, {vr(KG, 4)} offset:{L_KX}", tag="e")
    for i in range(4, 8): p.e(f"v_cvt_pk_bf16_f32 v{KG+i}, v{AC+2*i}, v{AC+2*i+1}")
    p.e(f"ds_write_b128 v{vEw}, {vr(KG+4, 4)} offset:{L_VX}", tag="e")
    p.e("s_waitcnt lgkmcnt(0)\ns_barrier\n" + RT(1))
    for uT in range(4): p.e(f"ds_read_b128 {vr(KM + 4*uT, 4)}, v{vL16} offset:{L_KX + 1024*uT}", tag=f"k{uT}")
    for b in range(2): p.e(f"ds_read_b128 {vr(VM + 4*b, 4)}, v{vVr} offset:{L_VX + 1024*b}", tag="vm")
    for uT in range(4):
        p.wl(f"k{uT}")
        p.e(f"{MF} {vr(DM, 4)}, {vr(KM + 4*uT, 4)}, {vr(Q + 4*uT, 4)}, {vr(DM if uT else BI + 8, 4)}")
    p.e(f"""
v_max3_f32 v{M}, v{M}, v{DM}, v{DM+1}
v_max3_f32 v{M+1}, v{M}, v{DM+2}, v{DM+3}
v_max3_f32 v{M}, v{M}, v{DM+2}, v{DM+3}
v_permlane16_swap_b32 v{M}, v{M+1}
v_max_f32 v{M+2}, v{M}, v{M+1}
v_max_f32 v{M+3}, v{M}, v{M+1}
v_permlane32_swap_b32 v{M+2}, v{M+3}
v_max_f32 v{M}, v{M+2}, v{M+3}
""")
    for x in range(DX, DX + 12, 2):
        p.e(f"v_pk_add_f32 {vr(x, 2)}, {vr(x, 2)}, {vr(M, 2)} op_sel_hi:[1,0] neg_lo:[0,1] neg_hi:[0,1]")
    for x in range(DX, DX + 12): p.e(f"v_exp_f32 v{x}, v{x}")
    for i in range(6): p.e(f"v_cvt_pk_bf16_f32 v{P+i}, v{DX+2*i}, v{DX+2*i+1}")
    p.e(f"{MF} {vr(DL, 4)}, {vr(ONE, 4)}, {vr(P, 4)}, 0")
    for E in range(4): p.e(f"{MF} {vr(O + 4*E, 4)}, {vr(V + 4*E, 4)}, {vr(P, 4)}, 0")
    p.wl("vm")
    M16 = "v_mfma_f32_16x16x16_bf16"
    p.e(f"{M16} {vr(DL, 4)}, {vr(ONE, 2)}, {vr(PM, 2)}, {vr(DL, 4)}")
    for E in range(4): p.e(f"{M16} {vr(O + 4*E, 4)}, {vr(VM + 2*E, 2)}, {vr(PM, 2)}, {vr(O + 4*E, 4)}")
    p.e(f"v_rcp_f32 v{DL}, v{DL}")
    for b in range(2):
        for x in range(O + 8*b, O + 8*b + 8): p.e(f"v_mul_f32 v{x}, v{x}, v{DL}")
        for i in range(4): p.e(f"v_cvt_pk_bf16_f32 v{O + 8*b + i}, v{O + 8*b + 2*i}, v{O + 8*b + 2*i + 1}")
        p.e(f"buffer_store_dwordx4 {vr(O + 8*b, 4)}, v{vL16}, {R(S_WS)}, s{sO} offen offset:{1024*b}{SC}", tag="st")
    p.e(f"""
s_add_u32 s{sI}, s{sI}, 1
v_mov_b32 v{t1}, s{sI}
s_add_u32 s{sQ0}, s{sQ0}, {4*32*8192}
s_add_u32 s{sKx}, s{sKx}, {4*32*16384}
s_add_u32 s{sV0}, s{sV0}, {4*32*16384}
s_add_u32 s{sMH}, s{sMH}, {4*MHS}
s_add_u32 s{sO}, s{sO}, {8*131072}
{RT(2)}
s_waitcnt vmcnt(0)
{RT(3)}
s_mov_b64 exec, 1
buffer_store_dword v{t1}, v{vZ}, {R(S_WS)}, s{sFO} offen{SC}
s_mov_b64 exec, -1
s_cmp_lt_u32 s{sI}, 16
s_cbranch_scc1 L_at_loop
s_waitcnt vmcnt(0)
{tl(cfg, 5, t0, t1)}
{RTS(t0, t1)}
s_endpgm
""")
    return p.text()

TS = 456; L_T = 2*XBUF; L_G = L_T + 192*TS
def role_aw(cfg):
    p = Prog()
    RT = lambda i: f"s_memrealtime s[{80+2*i}:{81+2*i}]" if cfg.get('rtl') else ""
    RTS = lambda a, b: "".join(f"v_mov_b32 v{a}, s{80+2*x}\nbuffer_store_dword v{a}, v{b}, s[4:7], s95 offen offset:{(6, 7, 14, 15)[x]*4}\n" for x in range(4)) if cfg.get('rtl') else ""
    NT = cfg.get('nteam', 5)
    sHG, sRT, sTM, sCG = sP0, sP1, sP2, sP3
    vL16, vXg, vXr, vTw, vG0, vG1, vTr, vZ, l, n, g, t0, t1 = range(1, 14)
    ACC, XS, WB = 16, 64, 80
    wreg = lambda ti, ks: WB + 72*ti + 4*ks
    acc = lambda ti, tt: ACC + 8*ti + 4*tt
    sTog, sGw = 50, 51
    p.e("L_role_aw:")
    srd(p, S_WS, 104, WS_BYTES); srd(p, S_X, 0, 2359296); srd(p, S_W0, 8, 1990656); srd(p, S_W1, 16, 663552); srd(p, S_W2, 64, 4718592)
    srd(p, S_DBG, 96, 256); srd(p, S_OUT, 88, 2359296); srd(p, S_G, 80, 1152)
    if cfg.get('mall', False):
        for b, slot in ((68, 40), (72, 48), (76, 56)): srd(p, b, slot, 4718592)
        p.e(f"s_lshl_b32 s{sA}, s{sCG}, 15\ns_add_u32 s{sB}, s{sA}, {96*32768}\nv_lshlrev_b32 v2, 7, v0\ns_waitcnt lgkmcnt(0)")
        for x, b in enumerate((68, 72, 76, S_W2)):
            p.e(f"buffer_load_dword v{64+2*x}, v2, {R(b)}, s{sA} offen\nbuffer_load_dword v{65+2*x}, v2, {R(b)}, s{sB} offen", tag="!pf")
    lanes(p, l, n, g)
    x_addr(p, vXg, vXr, l, n, g, t0, t1)
    tr_addr(p, vTr, n, g, t0, 64, 8)
    p.e(f"""
v_lshlrev_b32 v{vL16}, 4, v{l}
s_mul_i32 s{sB}, s{sW}, 20480
s_add_u32 s{sB}, s{sB}, {L_T}
v_add_u32 v{vTr}, s{sB}, v{vTr}
v_mov_b32 v{vZ}, 0
""")
    for pr, vg in ((0, vG0), (1, vG1)):
        p.e(f"""
; piece P = min(8w + {4*pr} + (l&3), 26): (P/9)*1152 + (P%9)*16 + (l>>2)*3456
s_lshl_b32 s{sA}, s{sW}, 3
s_add_u32 s{sA}, s{sA}, {4*pr}
v_and_b32 v{t0}, 3, v{l}
v_add_u32 v{t0}, s{sA}, v{t0}
v_min_u32 v{t0}, 26, v{t0}
v_mul_u32_u24 v{t1}, 57, v{t0}
v_lshrrev_b32 v{t1}, 9, v{t1}
v_mul_u32_u24 v{t1}, {1152 - 144}, v{t1}
v_lshl_add_u32 v{t1}, v{t0}, 4, v{t1}
v_lshrrev_b32 v{t0}, 2, v{l}
v_mul_u32_u24 v{t0}, 3456, v{t0}
v_add_u32 v{vg}, v{t0}, v{t1}
""")
    p.e(f"""
s_mul_i32 s{sC}, s{sHG}, 144
s_mul_i32 s{sD}, s{sRT}, 11
s_and_b32 s{sE}, s{sW}, 1
s_add_u32 s{sD}, s{sD}, s{sE}
s_sub_u32 s{sD}, s{sD}, 1
s_max_i32 s{sE}, s{sD}, 0
s_lshr_b32 s{sF}, s{sW}, 1
s_lshl_b32 s{sF}, s{sF}, 6
s_mul_i32 s{sXs}, s{sE}, 18432
s_add_u32 s{sXs}, s{sXs}, s{sF}
s_mul_i32 s{sD}, s{sD}, 18432
s_add_u32 s{sD}, s{sD}, s{sF}
s_lshl_b32 s{sXm}, s{sW}, 10
s_mov_b32 s{sBud}, {cfg.get('budget', 400000)}
v_mul_u32_u24 v{vTw}, {TS}, v{n}
v_lshl_add_u32 v{vTw}, v{g}, 3, v{vTw}
s_lshl_b32 s{sA}, s{sW}, 7
s_add_u32 s{sA}, s{sA}, {L_T}
v_add_u32 v{vTw}, s{sA}, v{vTw}
v_lshlrev_b32 v14, 2, v{n}
v_add_u32 v14, {L_G}, v14
s_waitcnt lgkmcnt(0)
""")
    def mid():
        for j in range(9): p.e(x_dma(j, vXg), tag="xd")
    load_weights(p, [(S_W0, vG0, sC), (S_W0, vG1, sC)], 3456, vTr, sB, 5, wreg, mid)
    p.e(f"s_cmp_lg_u32 s{sW}, 3\ns_cbranch_scc1 L_a_nogate\nv_lshlrev_b32 v{t0}, 4, v{g}")
    for ks in range(18): p.e(f"buffer_load_dwordx4 {vr(wreg(2, ks), 4)}, v{t0}, {R(S_G)}, 0 offen offset:{64*ks}", tag="gw")
    p.e(f"""
L_a_nogate:
{tl(cfg, 1, t0, t1, True)}
s_mov_b32 s{sXs}, s{sD}
s_mov_b32 s{sI}, 0
s_mov_b32 s{sTog}, {XBUF}
""")
    p.raw(".p2align 6")
    p.e("L_a_loop:")
    p.fence()
    p.e(f"""
s_waitcnt vmcnt(0)
s_barrier
s_add_u32 s{sXs}, s{sXs}, {XBUF}
s_add_u32 s{sXm}, s{sXm}, s{sTog}
""")
    gemm_block(p, 4, wreg, acc, XS, vXr, vXg, lambda ti: True)
    p.e(f"v_add_u32 v{vXr}, s{sTog}, v{vXr}\ns_sub_u32 s{sTog}, 0, s{sTog}")
    def put(ti):
        for tt in range(2):
            a = acc(ti, tt)
            p.e(f"v_cvt_pk_bf16_f32 v{a}, v{a}, v{a+1}\nv_cvt_pk_bf16_f32 v{a+1}, v{a+2}, v{a+3}")
            p.e(f"ds_write_b64 v{vTw}, {vr(a, 2)} offset:{16*TS*tt + 32*ti}", tag="tw")
    put(0); put(1)
    p.e(f"s_cmp_eq_u32 s{sW}, 3\ns_cbranch_scc1 L_a_gate")
    put(2); put(3)
    p.e(f"""
s_branch L_a_nog2
L_a_gate:
ds_write_b32 v14, v{acc(2, 0)}
ds_write_b32 v14, v{acc(2, 1)} offset:64
L_a_nog2:
v_add_u32 v{vTw}, {32*TS}, v{vTw}
v_add_u32 v14, 128, v14
s_add_u32 s{sI}, s{sI}, 1
s_cmp_lt_u32 s{sI}, 6
s_cbranch_scc1 L_a_loop
s_waitcnt vmcnt(0) lgkmcnt(0)
s_barrier
{tl(cfg, 2, t0, t1)}
""")
    p.fence()
    Qr, Kr, Vr, S_, Or, PL, PH, vRow, vA, vTok, vGl = 16, 26, 100, 176, 184, 204, 212, 14, 15, 2, 3
    CA = f2u(18 ** -0.5 * math.log2(math.e))
    p.e(f"""
s_mov_b32 s{sI}, 0
s_mul_i32 s{sC}, s{sW}, 36
s_add_u32 s{sC}, s{sC}, {L_T}
s_mul_i32 s{sD}, s{sRT}, 176
s_mov_b32 s{sE}, {CA:#x}
s_mov_b32 s{sF}, {f2u(-math.log2(math.e)):#x}
L_la_loop:
v_add_u32 v{t0}, s{sI}, v{l}
v_min_u32 v{t0}, 175, v{t0}
v_add_u32 v{vTok}, s{sD}, v{t0}
v_add_u32 v{t0}, 16, v{t0}
v_mul_u32_u24 v{vRow}, {TS}, v{t0}
v_add_u32 v{vRow}, s{sC}, v{vRow}
v_lshlrev_b32 v{t0}, 2, v{t0}
v_add_u32 v{t0}, {L_G}, v{t0}
""")
    p.e(f"ds_read_b32 v{vGl}, v{t0}", tag="gl")
    def rd9(d, a, off, tag):
        for i in range(4): p.e(f"ds_read2_b32 {vr(d + 2*i, 2)}, v{a} offset0:{off//4 + 2*i} offset1:{off//4 + 2*i + 1}", tag=tag)
        p.e(f"ds_read_b32 v{d+8}, v{a} offset:{off + 32}", tag=tag)
    rd9(Qr, vRow, 0, "q")
    koff = lambda j: Kr + 10*(j & 3)
    for j in range(8):
        p.e(f"v_subrev_u32 v{vA}, {2*j*TS}, v{vRow}")
        rd9(koff(j), vA, 144, f"k{j}")
        if j >= 1:
            p.wl(f"k{j-1}")
            for i in range(9): p.e(f"v_dot2_f32_bf16 v{S_+j-1}, v{Qr+i}, v{koff(j-1)+i}, {f'v{S_+j-1}' if i else 0}")
    p.wl("k7")
    for i in range(9): p.e(f"v_dot2_f32_bf16 v{S_+7}, v{Qr+i}, v{koff(7)+i}, {f'v{S_+7}' if i else 0}")
    voff = lambda j: Vr + 10*(j & 3)
    for j in range(2):
        p.e(f"v_subrev_u32 v{vA}, {2*j*TS}, v{vRow}")
        rd9(voff(j), vA, 288, f"v{j}")
    p.e(f"v_mov_b32 v{t1}, {NEG:#x}")
    for j in range(8):
        p.e(f"v_mul_f32 v{S_+j}, s{sE}, v{S_+j}")
    for j in range(1, 8):
        p.e(f"v_cmp_le_u32 vcc, {2*j}, v{vTok}\nv_cndmask_b32 v{S_+j}, v{t1}, v{S_+j}, vcc")
    p.e(f"""
v_max3_f32 v{t0}, v{S_}, v{S_+1}, v{S_+2}
v_max3_f32 v{t0}, v{t0}, v{S_+3}, v{S_+4}
v_max3_f32 v{t0}, v{t0}, v{S_+5}, v{S_+6}
v_max_f32 v{t0}, v{t0}, v{S_+7}
""")
    for j in range(8): p.e(f"v_sub_f32 v{S_+j}, v{S_+j}, v{t0}")
    for j in range(8): p.e(f"v_exp_f32 v{S_+j}, v{S_+j}")
    for j in range(8): p.e(f"v_cvt_pk_bf16_f32 v{PL+j}, v{S_+j}, v{vZ}")
    for j in range(8): p.e(f"v_lshlrev_b32 v{PH+j}, 16, v{PL+j}")
    p.e(f"""
v_add_f32 v{t0}, v{PH}, v{PH+1}
v_add_f32 v{t1}, v{PH+2}, v{PH+3}
v_add_f32 v{t0}, v{t0}, v{PH+4}
v_add_f32 v{t1}, v{t1}, v{PH+5}
v_add_f32 v{t0}, v{t0}, v{PH+6}
v_add_f32 v{t1}, v{t1}, v{PH+7}
v_add_f32 v{t0}, v{t0}, v{t1}
v_mul_f32 v{t1}, s{sF}, v{vGl}
v_exp_f32 v{vGl}, v{t1}
v_exp_f32 v{t1}, -v{t1}
v_add_f32 v{vGl}, 1.0, v{vGl}
v_add_f32 v{t1}, 1.0, v{t1}
v_mul_f32 v{t0}, v{t0}, v{vGl}
v_rcp_f32 v{t0}, v{t0}
v_rcp_f32 v{t1}, v{t1}
""")
    for j in range(8):
        if j + 2 < 8:
            p.e(f"v_subrev_u32 v{vA}, {2*(j+2)*TS}, v{vRow}")
            rd9(voff(j + 2), vA, 288, f"v{j+2}")
        p.wl(f"v{j}")
        for i in range(9):
            for hh, P_ in ((0, PL), (1, PH)):
                o = Or + 2*i + hh
                p.e(f"v_dot2_f32_bf16 v{o}, v{voff(j)+i}, v{P_+j}, {f'v{o}' if j else 0}")
    p.e(f"""
s_or_b32 s{sA}, s{sHG}, s{sW}
s_cmp_lg_u32 s{sA}, 0
s_cbranch_scc1 L_la_noomg
v_lshlrev_b32 v{vA}, 2, v{vTok}
v_min_u32 v{vA}, 8192, v{vA}
s_mov_b32 s{sA}, {WS_OMG}
buffer_store_dword v{t1}, v{vA}, {R(S_WS)}, s{sA} offen{SC}
L_la_noomg:
""")
    for i in range(18): p.e(f"v_mul_f32 v{Or+i}, v{Or+i}, v{t0}")
    for i in range(9): p.e(f"v_cvt_pk_bf16_f32 v{Or+i}, v{Or+2*i}, v{Or+2*i+1}")
    for i in range(4): p.e(f"ds_write2_b32 v{vRow}, v{Or+2*i}, v{Or+2*i+1} offset0:{2*i} offset1:{2*i+1}", tag="ow")
    p.e(f"ds_write_b32 v{vRow}, v{Or+8} offset:32", tag="ow")
    p.e(f"""
s_add_u32 s{sI}, s{sI}, 64
s_cmp_lt_u32 s{sI}, 192
s_cbranch_scc1 L_la_loop
s_waitcnt lgkmcnt(0)
s_barrier
v_mul_u32_u24 v{vRow}, {TS}, v{n}
v_lshl_add_u32 v{vRow}, v{g}, 4, v{vRow}
s_add_u32 s{sA}, s{sW}, 1
s_mul_i32 s{sA}, s{sA}, {16*TS}
s_add_u32 s{sA}, s{sA}, {L_T}
v_add_u32 v{vRow}, s{sA}, v{vRow}
s_mul_i32 s{sD}, s{sRT}, 11
s_add_u32 s{sD}, s{sD}, s{sW}
s_mov_b32 s{sI}, s{sW}
s_mul_i32 s{sE}, s{sHG}, 2304
s_add_u32 s{sE}, s{sE}, {WS_OA}
L_oa_loop:
s_cmp_ge_u32 s{sD}, 128
s_cbranch_scc1 L_oa_done
""")
    p.fence()
    for x in range(3): p.e(f"ds_read2_b64 {vr(16 + 4*x, 4)}, v{vRow} offset0:{8*x} offset1:{8*x+1}", tag=f"o{x}")
    p.e(f"s_mul_i32 s{sA}, s{sD}, 18432\ns_add_u32 s{sA}, s{sA}, s{sE}")
    for x in range(3):
        p.wl(f"o{x}")
        if x == 2: p.e("s_mov_b64 exec, 0xffff")
        p.e(f"buffer_store_dwordx4 {vr(16 + 4*x, 4)}, v{vL16}, {R(S_WS)}, s{sA} offen offset:{1024*x}{SC}", tag="st")
    p.e(f"""
s_mov_b64 exec, -1
v_add_u32 v{vRow}, {64*TS}, v{vRow}
s_add_u32 s{sD}, s{sD}, 4
s_add_u32 s{sI}, s{sI}, 4
s_cmp_lt_u32 s{sI}, 11
s_cbranch_scc1 L_oa_loop
L_oa_done:
s_waitcnt vmcnt(0)
s_barrier
s_cmp_lg_u32 s{sW}, 0
s_cbranch_scc1 L_a_sig
v_mov_b32 v{t0}, 1
s_mov_b64 exec, 1
buffer_atomic_add v{t0}, v{vZ}, {R(S_DBG)}, 0 offen offset:4 sc1
s_mov_b64 exec, -1
L_a_sig:
{tl(cfg, 3, t0, t1)}
""")
    poll(p, "L_w_init", S_DBG, vZ, 0, 0, t0, f"v_readfirstlane_b32 s{sB}, v{t0}\ns_and_b32 s{sA}, s{sB}, 0xff\ns_cmp_eq_u32 s{sA}, 32")
    p.e(f"""
; the class that shares its supply with the chain's die stays out of the output stage (same word, same verdict everywhere):
s_xor_b32 s{sA}, s{sCG}, 96
s_cmp_ge_u32 s{sCG}, 32
s_cselect_b32 s{sA}, s{sA}, s{sCG}
s_bitcmp1_b32 s{sB}, 13
s_cselect_b32 s{sCG}, s{sA}, s{sCG}
; team = idx/12, column group = idx%12
s_mul_i32 s{sTM}, s{sCG}, 43
s_lshr_b32 s{sTM}, s{sTM}, 9
s_mul_i32 s{sA}, s{sTM}, 12
s_sub_u32 s{sCG}, s{sCG}, s{sA}
s_cmp_ge_u32 s{sTM}, {NT}
s_cbranch_scc1 L_exit_w
""")
    p.fence(); p.vmq = []; p.ldsq = []
    vD0, vD1, vD2, vTrB, vTrA, vOl, vRw, vOut, vFl, vOm = 2, 3, 4, 5, 6, 7, 14, 15, 9, 10
    AB, AA, ST, WA, WBB = 16, 28, 40, 68, 128
    for d, vd in enumerate((vD0, vD1, vD2)):
        p.e(f"""
v_add_u32 v{t0}, {64*d}, v{l}
v_mul_u32_u24 v{t1}, 171, v{t0}
v_lshrrev_b32 v{t1}, 10, v{t1}
v_mul_u32_u24 v{t1}, {1152 - 96}, v{t1}
v_lshl_add_u32 v{vd}, v{t0}, 4, v{t1}
""")
    tr_addr(p, vTrB, n, g, t0, 96, 4)
    tr_addr(p, vTrA, n, g, t0, 96, 8)
    sRing, sWb, sWa, sOb, sOA, sOut, sOm, sFO, sRed = range(50, 59)
    p.e(f"""
s_lshl_b32 s{sRing}, s{sW}, 15
v_add_u32 v{vTrB}, s{sRing}, v{vTrB}
v_add_u32 v{vTrA}, s{sRing}, v{vTrA}
v_add_u32 v{vOl}, s{sRing}, v{vL16}
s_mul_i32 s{sA}, s{sCG}, 96
s_mul_i32 s{sWb}, s{sW}, {1024*1152}
s_add_u32 s{sWb}, s{sWb}, s{sA}
s_mul_i32 s{sWa}, s{sW}, {160*1152}
s_add_u32 s{sWa}, s{sWa}, s{sA}
; out address: n*1152 + 8g + 32w + 96cg ; rows 16*T
v_mul_u32_u24 v{vOut}, 1152, v{n}
v_lshl_add_u32 v{vOut}, v{g}, 3, v{vOut}
s_lshl_b32 s{sB}, s{sW}, 5
s_add_u32 s{sA}, s{sA}, s{sB}
s_mul_i32 s{sOut}, s{sTM}, 18432
s_add_u32 s{sOA}, s{sOut}, {WS_OA}
s_add_u32 s{sOut}, s{sOut}, s{sA}
s_lshl_b32 s{sOb}, s{sTM}, 17
s_add_u32 s{sOb}, s{sOb}, s{sRing}
s_add_u32 s{sOb}, s{sOb}, {WS_O}
s_lshl_b32 s{sOm}, s{sTM}, 6
s_add_u32 s{sOm}, s{sOm}, {WS_OMG}
v_lshlrev_b32 v{vFl}, {cfg.get('fsh', 4)}, v{l}
v_lshlrev_b32 v{vOm}, 2, v{n}
v_add_u32 v{vRw}, 131072, v{vL16}
""")
    items = [('A', k) for k in range(5)] + [('B', k) for k in range(32)]
    nslot = 10; D = nslot - 1
    def issue(i):
        kind, k = items[i]
        p.e(f"s_add_u32 s{sA}, s{sWa if kind == 'A' else sWb}, {32*k*1152}")
        for d, vd in enumerate((vD0, vD1, vD2)):
            p.e(f"s_add_u32 m0, s{sRing}, {3072*(i % nslot) + 1024*d}")
            p.e(f"buffer_load_dwordx4 v{vd}, {R(S_W1 if kind == 'A' else S_W2)}, s{sA} offen lds", tag=f"d{i}")
    for i in range(D): issue(i)
    for i, (kind, k) in enumerate(items):
        p.wv(f"d{i}")
        for ct in range(3):
            for q in range(2):
                if kind == 'A': p.e(f"ds_read_b64_tr_b16 {vr(WA + 12*k + 4*ct + 2*q, 2)}, v{vTrA} offset:{3072*(i % nslot) + 96*4*q + 32*ct}", tag="tr")
                else: p.e(f"ds_read_b64_tr_b16 {vr(WBB + 12*k + 4*ct + 2*q, 2)}, v{vTrB} offset:{3072*(i % nslot) + 96*16*q + 32*ct}", tag="tr")
        p.e("s_waitcnt lgkmcnt(0)")
        if i + D < len(items): issue(i + D)
    p.e(tl(cfg, 4, t0, t1))
    poll(p, "L_w_adone", S_DBG, vZ, 0, 4, t0, f"v_readfirstlane_b32 s{sA}, v{t0}\ns_cmp_eq_u32 s{sA}, 96")
    p.e(f"s_mov_b32 s{sI}, 0\ns_mul_i32 s{sWa}, s{sW}, 5\ns_mul_i32 s{sRed}, s{sW}, 3072\nv_add_u32 v{vD0}, s{sRed}, v{vRw}\ns_lshl_b32 s{sA}, s{sW}, 10\nv_add_u32 v{vRw}, s{sA}, v{vRw}")
    vNx, vOmg = vD1, vD2
    sOp = 59
    def flagaddr(T): return f"s_and_b32 s{sFO}, s{T}, 7\ns_lshl_b32 s{sFO}, s{sFO}, {6 + cfg.get('fsh', 4)}\ns_add_u32 s{sFO}, s{sFO}, {F_O}\ns_lshr_b32 s{sI}, s{T}, 3"
    def oa_loads():
        for k in range(5):
            p.e(f"s_add_u32 s{sA}, s{sWa}, {k}\ns_min_u32 s{sA}, s{sA}, 17\ns_lshl_b32 s{sA}, s{sA}, 10\ns_add_u32 s{sA}, s{sA}, s{sOA}")
            p.e(f"buffer_load_dwordx4 {vr(ST + 4*k, 4)}, v{vL16}, {R(S_WS)}, s{sA} offen sc1", tag=f"a{k}")
        p.e(f"buffer_load_dword v{vOmg}, v{vOm}, {R(S_WS)}, s{sOm} offen sc1", tag="om")
    def a_part():
        for k in range(5):
            p.wv(f"a{k}")
            for ct in range(3): p.e(f"{MF} {vr(AA + 4*ct, 4)}, {vr(WA + 12*k + 4*ct, 4)}, {vr(ST + 4*k, 4)}, {vr(AA + 4*ct, 4) if k else 0}")
    PRE = cfg.get('wpre', 16)
    def o_dma(ks=range(PRE)):
        for k in ks:
            if k % 4 == 0: p.e(f"s_add_u32 s{sA}, s{sOb}, {1024*k}\ns_add_u32 m0, s{sRing}, {1024*k}")
            p.e(f"buffer_load_dwordx4 v{vL16}, {R(S_WS)}, s{sA} offen offset:{1024*(k % 4)} sc1 lds", tag=f"o{k}")
        if 31 not in ks: return
        p.e(f"s_add_u32 s{sB}, s{sTM}, {NT}\n" + flagaddr(sB))
        p.e(f"buffer_load_dword v{vNx}, v{vFl}, {R(S_WS)}, s{sFO} offen{SC}", tag="nx")
    def epilogue(nm):
        E = AB
        p.e("s_waitcnt lgkmcnt(0)\ns_barrier")
        for x in range(4): p.e(f"ds_read_b128 {vr(E + 4*x, 4)}, v{vRw} offset:{3072*x}", tag="rr")
        p.e(f"""
s_waitcnt lgkmcnt(0)
v_pk_add_f32 {vr(E, 2)}, {vr(E, 2)}, {vr(E+4, 2)}
v_pk_add_f32 {vr(E+2, 2)}, {vr(E+2, 2)}, {vr(E+6, 2)}
v_pk_add_f32 {vr(E+8, 2)}, {vr(E+8, 2)}, {vr(E+12, 2)}
v_pk_add_f32 {vr(E+10, 2)}, {vr(E+10, 2)}, {vr(E+14, 2)}
v_pk_add_f32 {vr(E, 2)}, {vr(E, 2)}, {vr(E+8, 2)}
v_pk_add_f32 {vr(E+2, 2)}, {vr(E+2, 2)}, {vr(E+10, 2)}
v_cvt_pk_bf16_f32 v{ST+20}, v{E}, v{E+1}
v_cvt_pk_bf16_f32 v{ST+21}, v{E+2}, v{E+3}
v_xor_b32 v{vRw}, 16384, v{vRw}
""")
        p.e(f"buffer_store_dwordx2 {vr(ST+20, 2)}, v{vOut}, {R(S_OUT)}, s{sOp} offen{cfg.get('outfl', '')}", tag="out")
    p.e(f"s_cmp_eq_u32 s{sW}, 3\ns_cselect_b32 s{sA}, 0x400000, 0\nv_add_u32 v{vOut}, s{sA}, v{vOut}")
    p.e("L_w_wait:")
    p.fence()
    p.e(flagaddr(sTM))
    oa_loads(); a_part()
    poll(p, "L_w_poll", S_WS, vFl, f"s{sFO}", 0, t0, f"v_cmp_ge_u32 vcc, s{sI}, v{t0}\ns_nop 1\ns_cmp_eq_u64 vcc, 0", sleep=cfg.get('slw', 2))
    p.e(RT(0))
    o_dma()
    p.e("s_branch L_w_b")
    p.e("L_w_ready:")
    p.fence(); p.vmq = []; p.ldsq = []
    oa_loads(); o_dma(); epilogue("r"); a_part()
    p.vmq = [x for x in p.vmq if x[0] != "out"]
    p.e("L_w_b:")
    def rdo(k):
        p.wv(f"o{k}")
        p.e(f"ds_read_b128 {vr(ST + 4*(k % 4), 4)}, v{vOl} offset:{1024*k}", tag=f"r{k}")
    rdo(0); p.e(RT(1)); rdo(1)
    for k in range(32):
        if k + PRE < 32: o_dma([k + PRE])
        if k + 2 < 32: rdo(k + 2)
        p.wl(f"r{k}")
        for ct in range(3): p.e(f"{MF} {vr(AB + 4*ct, 4)}, {vr(WBB + 12*k + 4*ct, 4)}, {vr(ST + 4*(k % 4), 4)}, {vr(AB + 4*ct, 4) if k else 0}")
    p.e(f"""
{RT(2)}
s_mov_b32 s{sOp}, s{sOut}
s_add_u32 s{sOut}, s{sOut}, {NT*18432}
s_add_u32 s{sOA}, s{sOA}, {NT*18432}
s_add_u32 s{sOb}, s{sOb}, {NT*131072}
s_add_u32 s{sOm}, s{sOm}, {NT*64}
s_add_u32 s{sTM}, s{sTM}, {NT}
""")
    for ct in range(3):
        for r in range(4): p.e(f"v_fma_f32 v{AB + 4*ct + r}, v{AB + 4*ct + r}, v{vOmg}, v{AA + 4*ct + r}")
        p.e(f"ds_write_b128 v{vD0}, {vr(AB + 4*ct, 4)} offset:{1024*ct}", tag="rw")
    p.e(f"""
v_xor_b32 v{vD0}, 16384, v{vD0}
s_cmp_ge_u32 s{sTM}, 128
s_cbranch_scc1 L_w_now
s_waitcnt vmcnt(0)
v_cmp_ge_u32 vcc, s{sI}, v{vNx}
s_cbranch_vccz L_w_ready
L_w_now:
""")
    p.vmq = []
    epilogue("n")
    p.e(f"""
s_cmp_lt_u32 s{sTM}, 128
{RT(3)}
s_cbranch_scc1 L_w_wait
s_waitcnt vmcnt(0)
{gate(cfg, 'gate_end', 'w')}
{tl(cfg, 5, t0, t1)}
{RTS(t0, t1)}
s_endpgm
""")
    return p.text()
```
